```python
import torch

def _softmax(x, axis=-1):
    return torch.softmax(x, dim=axis)
def _gelu(x):
    return torch.nn.functional.gelu(x, approximate="tanh")
def _silu(x):
    return torch.nn.functional.silu(x)
def _sigmoid(x):
    return torch.sigmoid(x)
def _layernorm(x, axis=-1, eps=1e-5):
    m = x.mean(dim=axis, keepdim=True)
    v = x.var(dim=axis, keepdim=True, unbiased=False)
    return (x - m) / torch.sqrt(v + eps)
def _scatter_add(tgt, idx, src, axis=0):
    return tgt.clone().index_add_(axis, idx, src)
def _segment_sum(src, seg, n):
    out = torch.zeros((n,) + src.shape[1:], dtype=src.dtype)
    return out.index_add_(0, seg, src)
def _pad(x, pw):
    flat = tuple(v for pair in reversed(pw) for v in pair)
    return torch.nn.functional.pad(x, flat)

kernel_name = 'sequential_preLN__mha_block__glu_gated_reglu__prompt'

def setup_inputs():

    _w = (lambda a: (lambda t: t.to(torch.bfloat16) if t.is_floating_point() else t)(torch.as_tensor(a)))
    def _A_setup():
        B, S, D, H = 1, 2048, 1024, 32
        return {
            "x": _w((lambda *s: torch.randn(*s, dtype=torch.bfloat16) * 0.05)(B, S, D)),
            "wqkv": _w((lambda *s: torch.randn(*s, dtype=torch.bfloat16) * 0.05)(D, 3 * D)),
            "wo": _w((lambda *s: torch.randn(*s, dtype=torch.bfloat16) * 0.05)(D, D)),
        }
    _A_in = _A_setup()

    def _B_setup():
        B, S, D, F = 1, 2048, 1024, 3584
        return {
            "x": _w((lambda *s: torch.randn(*s, dtype=torch.bfloat16) * 0.05)(B, S, D)),
            "W_gate": _w((lambda *s: torch.randn(*s, dtype=torch.bfloat16) * 0.8)(D, F) * (2.0 / D) ** 0.5),
            "W_up": _w((lambda *s: torch.randn(*s, dtype=torch.bfloat16) * 0.8)(D, F) * (2.0 / D) ** 0.5),
            "W_down": _w((lambda *s: torch.randn(*s, dtype=torch.bfloat16) * 0.8)(F, D) * (1.0 / F) ** 0.5),
        }
    _B_in = _B_setup()

    return {
        "A_x": _A_in["x"],
        "A_wqkv": _A_in["wqkv"],
        "A_wo": _A_in["wo"],
        "B_x": _B_in["x"],
        "B_W_gate": _B_in["W_gate"],
        "B_W_up": _B_in["W_up"],
        "B_W_down": _B_in["W_down"],
    }

def reference(A_x, A_wqkv, A_wo, B_x, B_W_gate, B_W_up, B_W_down):
    def _A_ref(x, wqkv, wo):
        B, S, D = x.shape
        H = 32
        Dh = D // H
        qkv = (lambda x, *d: x.permute(*d))((x @ wqkv).reshape(B, S, 3, H, Dh), 2, 0, 3, 1, 4)
        q, k, v = qkv[0], qkv[1], qkv[2]
        scores = torch.einsum("bhqd,bhkd->bhqk", q, k) * (Dh ** -0.5)
        p = _softmax(scores, axis=-1)
        o = torch.einsum("bhqk,bhkd->bhqd", p, v)
        return (lambda x, *d: x.permute(*d))(o, 0, 2, 1, 3).reshape(B, S, D) @ wo

    def _B_ref(x, W_gate, W_up, W_down):
        gate = torch.einsum("bsd,df->bsf", x, W_gate)
        up = torch.einsum("bsd,df->bsf", x, W_up)
        gate = gate * (lambda x, dt: x.to(dt))(gate > 0, gate.dtype)
        h = gate * up
        return torch.einsum("bsf,fd->bsd", h, W_down)

    x = A_x
    h = x + _A_ref(_layernorm(x, axis=-1), A_wqkv, A_wo)
    h2 = h + _B_ref(_layernorm(h, axis=-1), B_W_gate, B_W_up, B_W_down)
    return h2
```

```python
import re

class Asm:
    def __init__(self):
        self.lines = []
    def __call__(self, s):
        for ln in s.split("\n"):
            ln = ln.strip()
            if ln:
                self.lines.append(ln)
    def ext(self, lst):
        for s in lst:
            self(s)
    def label(self, n):
        self.lines.append(n + ":")
    def text(self):
        out = []
        for l in self.lines:
            if l.endswith(":") or l.startswith("."):
                out.append(l)
            else:
                out.append("  " + l)
        return "\n".join(out) + "\n"

def vr(b, n=1, p="v"):
    return f"{p}{b}" if n == 1 else f"{p}[{b}:{b+n-1}]"
class R:
    def __init__(self, p, b, n=1):
        self.p, self.b, self.n = p, b, n
    def __str__(self):
        return vr(self.b, self.n, self.p)
    def __getitem__(self, i):
        if isinstance(i, slice):
            st = i.start or 0
            en = i.stop if i.stop is not None else self.n
            assert 0 <= st < en <= self.n, (st, en, self.n)
            return R(self.p, self.b + st, en - st)
        assert 0 <= i < self.n, (i, self.n)
        return R(self.p, self.b + i, 1)
    def __format__(self, spec):
        return str(self)

class Alloc:
    def __init__(self, p, start, limit):
        self.p, self.cur, self.limit = p, start, limit
    def __call__(self, n=1, align=1):
        if n >= 2 and align == 1:
            align = 2
        self.cur = (self.cur + align - 1) // align * align
        r = R(self.p, self.cur, n)
        self.cur += n
        assert self.cur <= self.limit, f"out of {self.p} regs"
        return r

def interleave(spine, fillers, per_gap=None, start_gap=0):
    n = len(spine)
    out = []
    if per_gap is None:
        g = n - start_gap
        cnt = [0] * n
        for i in range(len(fillers)):
            cnt[start_gap + (i * g) // max(len(fillers), 1)] += 1
    else:
        cnt = list(per_gap) + [0] * (n - len(per_gap))
        assert sum(cnt) >= len(fillers), (sum(cnt), len(fillers))
    k = 0
    for i, m in enumerate(spine):
        out.append(m)
        for _ in range(cnt[i]):
            if k < len(fillers):
                out.append(fillers[k]); k += 1
    assert k == len(fillers)
    return out

_reg_re = re.compile(r"\b([vas])(\d+)\b|\b([vas])\[(\d+):(\d+)\]|\b(vcc|exec|m0|scc)\b")
def regs_of(op):
    s = set()
    for m in _reg_re.finditer(op):
        if m.group(1):
            s.add((m.group(1), int(m.group(2))))
        elif m.group(3):
            for i in range(int(m.group(4)), int(m.group(5)) + 1):
                s.add((m.group(3), i))
        else:
            s.add((m.group(6), 0))
    return s

TRANS = ("v_exp_f32", "v_log_f32", "v_rcp_f32", "v_rsq_f32", "v_sqrt_f32", "v_exp_f16")
def parse(line):
    line = line.split(";")[0].strip()
    parts = line.split(None, 1)
    op = parts[0]
    rest = parts[1] if len(parts) > 1 else ""
    ops = [x.strip() for x in re.split(r",\s*(?![^\[]*\])", rest)] if rest else []
    d = dict(op=op, text=line, W=set(), Rd=set(), kind="other", srcC=set(), AB=set())
    def rs(xs):
        s = set()
        for x in xs:
            s |= regs_of(x)
        return s
    if op.startswith("v_mfma"):
        d["kind"] = "mfma"
        d["W"] = regs_of(ops[0]); d["AB"] = rs(ops[1:3]); d["srcC"] = regs_of(ops[3].split()[0])
        d["Rd"] = d["AB"] | d["srcC"]
        d["passes"] = 8 if "32x32x16" in op else (4 if "16x16x32" in op else 2)
    elif op.startswith("buffer_load") or op.startswith("global_load"):
        lds = " lds" in (" " + line + " ").replace(",", " ") and re.search(r"\blds\b", line)
        d["kind"] = "vmem"
        if op.startswith("buffer_load") and lds:
            d["Rd"] = rs(ops) | {("m0", 0)}; d["dma"] = True
        else:
            d["W"] = regs_of(ops[0]); d["Rd"] = rs(ops[1:]); d["load"] = True
    elif op.startswith("buffer_store") or op.startswith("global_store") or op.startswith("buffer_atomic") or op.startswith("global_atomic"):
        d["kind"] = "vmem"; d["Rd"] = rs(ops); d["store"] = True
        if op.startswith("buffer"):
            d["data"] = regs_of(ops[0])
        else:
            d["data"] = regs_of(ops[1])
        d["wide"] = op.endswith("x4") or op.endswith("x3")
    elif op.startswith("ds_read") or op.startswith("ds_bpermute") or op.startswith("ds_swizzle"):
        d["kind"] = "ds"; d["W"] = regs_of(ops[0]); d["Rd"] = rs(ops[1:]); d["load"] = True
    elif op.startswith("ds_write"):
        d["kind"] = "ds"; d["Rd"] = rs(ops)
    elif op.startswith("s_load") or op.startswith("s_memtime") or op.startswith("s_memrealtime"):
        d["kind"] = "smem"; d["W"] = regs_of(ops[0]); d["Rd"] = rs(ops[1:]); d["load"] = True
    elif op == "s_waitcnt":
        d["kind"] = "wait"
        m = re.search(r"vmcnt\((\d+)\)", line); d["vm"] = int(m.group(1)) if m else None
        m = re.search(r"lgkmcnt\((\d+)\)", line); d["lgkm"] = int(m.group(1)) if m else None
    elif op == "s_nop":
        d["kind"] = "nop"; d["n"] = int(ops[0], 0) + 1
    elif op.startswith("s_cmp") or op.startswith("s_cbranch") or op in ("s_branch", "s_barrier", "s_endpgm", "s_setprio", "s_sleep"):
        d["kind"] = "salu"; d["Rd"] = rs(ops)
    elif op.startswith("s_"):
        d["kind"] = "salu"; d["W"] = regs_of(ops[0]); d["Rd"] = rs(ops[1:])
        if "saveexec" in op:
            d["W"] |= {("exec", 0)}
    elif op.startswith("v_"):
        d["kind"] = "valu"
        if op.startswith("v_cmp"):
            d["W"] = regs_of(ops[0]); d["Rd"] = rs(ops[1:])
        elif op.startswith("v_permlane32_swap") or op.startswith("v_permlane16_swap"):
            d["W"] = rs(ops[:2]); d["Rd"] = rs(ops[:2]); d["perml"] = True
        elif op.startswith("v_readfirstlane") or op.startswith("v_readlane"):
            d["W"] = regs_of(ops[0]); d["Rd"] = rs(ops[1:]); d["rdlane"] = True
        elif op.startswith("v_add_co") or op.startswith("v_sub_co") or op.startswith("v_addc_co"):
            d["W"] = rs(ops[:2]); d["Rd"] = rs(ops[2:])
        else:
            d["W"] = regs_of(ops[0]); d["Rd"] = rs(ops[1:])
            if op.startswith("v_fmac") or op.startswith("v_dot2c") or op.startswith("v_pk_fmac") or "UNUSED_PRESERVE" in line:
                d["Rd"] |= d["W"]
            if op.startswith("v_cndmask") and len(ops) == 3:
                d["Rd"] |= {("vcc", 0)}
        d["trans"] = op.replace("_e32", "").replace("_e64", "") in TRANS
        d["dot"] = op.startswith("v_dot")
        d["dpp"] = ("row_" in line or "quad_perm" in line or "wave_" in line)
    else:
        raise ValueError("unknown instr: " + line)
    return d

def expand(lines, reps=2):
    out = []
    stack = []
    cur = out
    for l in lines:
        if l.startswith(";LOOP"):
            stack.append(cur); cur = []
        elif l.startswith(";ENDLOOP"):
            body = cur; cur = stack.pop()
            for _ in range(reps):
                cur.extend(body)
        elif l.startswith(";") or l.endswith(":") or l.startswith("."):
            continue
        else:
            cur.append(l)
    return out

def check(lines, name="", reps=3):
    ins = [parse(l) for l in expand(lines, reps)]
    errs = []
    pos = []
    p = 0
    for d in ins:
        pos.append(p)
        p += d["n"] if d["kind"] == "nop" else 1
    N = len(ins)
    def dist(i, j):
        return pos[j] - pos[i] - (ins[i]["n"] if ins[i]["kind"] == "nop" else 1)
    isv = lambda s: {r for r in s if r[0] in "va"}
    iss = lambda s: {r for r in s if r[0] == "s" or r[0] == "vcc"}
    for j, c in enumerate(ins):
        for i in range(j - 1, max(-1, j - 24), -1):
            a = ins[i]
            dd = dist(i, j)
            if dd >= 20:
                break
            need = 0; why = ""
            if a["kind"] == "valu":
                wv = isv(a["W"])
                if c["kind"] == "mfma" and wv & c["Rd"]:
                    need, why = (3 if a.get("dot") else 2), "valu->mfma"
                if c["kind"] == "valu":
                    if a.get("trans") and not c.get("trans") and wv & c["Rd"]:
                        need, why = max(need, 1), "trans->valu"
                    if a.get("dot") and (wv & (c["Rd"] | c["W"])) and a["op"] != c["op"]:
                        need, why = max(need, 3), "dot->other"
                    if c.get("perml") and wv & c["Rd"]:
                        need, why = max(need, 2), "valu->permlane"
                    if c.get("dpp") and wv & c["Rd"]:
                        need, why = max(need, 2), "valu->dpp"
                    if c.get("rdlane") and wv & c["Rd"]:
                        need, why = max(need, 1), "valu->readlane"
                    if iss(a["W"]) & c["Rd"]:
                        need, why = max(need, 2), "valu sgpr->valu"
                if a.get("dot") and c["kind"] in ("vmem", "ds") and wv & c["Rd"]:
                    need, why = max(need, 3), "dot->mem"
                if a.get("trans") and c["kind"] in ("vmem","ds") and wv & c["Rd"]:
                    need, why = max(need, 1), "trans->mem"
                if c["kind"] == "vmem" and iss(a["W"]) & c["Rd"]:
                    need, why = max(need, 5), "valu sgpr->vmem"
                if c["kind"] in ("salu",) and iss(a["W"]) & c["Rd"]:
                    need, why = max(need, 1), "valu sgpr->salu(pad)"
            if a["kind"] == "mfma":
                ps = a["passes"]
                big = {2: 5, 4: 8, 8: 12}[ps]
                if c["kind"] == "mfma":
                    if a["W"] & c["AB"]:
                        need, why = big, "mfma D->AB"
                    elif a["W"] & c["srcC"]:
                        if a["W"] == c["srcC"] and c["passes"] == ps:
                            need = 2 if ps == 2 else 0; why = "chain"
                        else:
                            need, why = {2: 4, 4: 6, 8: 10}[ps], "mfma D->C overlap"
                    elif a["W"] & c["W"]:
                        need, why = {2: 4, 4: 6, 8: 10}[ps], "mfma WAW(guess)"
                elif c["kind"] in ("valu", "vmem", "ds"):
                    if a["W"] & (c["Rd"] | c["W"]):
                        need, why = big, "mfma D->valu/mem"
                    if c["kind"] == "valu" and a["srcC"] & c["W"]:
                        need, why = max(need, {2: 1, 4: 3, 8: 7}[ps]), "mfma C WAR"
            if a["kind"] == "salu" and ("m0", 0) in a["W"] and c.get("dma"):
                need, why = 1, "m0->dma"
            if a["kind"] == "vmem" and a.get("store") and a.get("wide") and c["kind"] in ("valu",) and a["data"] & c["W"]:
                need, why = 2, "store data WAR"
            if a["kind"] == "vmem" and a.get("store") and a.get("wide") and c["kind"] in ("ds", "vmem", "mfma") and a["data"] & c["W"]:
                need, why = 1, "store data WAR"
            if a["kind"] in ("valu", "salu") and ("exec", 0) in a["W"] and a["kind"] == "valu" and c["kind"] == "mfma":
                need, why = 4, "exec->mfma"
            if need > dd:
                errs.append(f"[{name}] hazard {why}: need {need} have {dd}\n    {a['text']}\n    {c['text']}")
    vm = []
    lg = []
    for j, c in enumerate(ins):
        if c["kind"] == "wait":
            if c["vm"] is not None:
                vm = vm[len(vm) - c["vm"]:] if c["vm"] > 0 and len(vm) > c["vm"] else (vm if c["vm"] > 0 else [])
            if c["lgkm"] is not None:
                if c["lgkm"] == 0:
                    lg = []
                else:
                    if any(x[2] for x in lg):
                        errs.append(f"[{name}] counted lgkmcnt with smem outstanding: {c['text']}")
                    lg = lg[len(lg) - c["lgkm"]:] if len(lg) > c["lgkm"] else lg
            continue
        touched = c["Rd"] | c["W"]
        for (W, t) in vm:
            if W & touched:
                errs.append(f"[{name}] vm RAW/WAW unwaited:\n    {t}\n    {c['text']}")
        for (W, t, _) in lg:
            if W & touched:
                errs.append(f"[{name}] lgkm RAW/WAW unwaited:\n    {t}\n    {c['text']}")
        if c["kind"] == "vmem":
            vm.append((c["W"], c["text"]))
            if len(vm) > 63:
                errs.append(f"[{name}] >63 vm outstanding at {c['text']}")
        elif c["kind"] == "ds":
            lg.append((c["W"], c["text"], False))
        elif c["kind"] == "smem":
            lg.append((c["W"], c["text"], True))
    seen = set(); u = []
    for e in errs:
        if e not in seen:
            seen.add(e); u.append(e)
    return u
```

```python
import sys, math
from asmlib import *

MB = 1 << 20
QF = 0 * MB
KF = 4 * MB
VF = 8 * MB
OF = 12 * MB
AF = 16 * MB
HF = 32 * MB
ST = 36 * MB
CS = 37 * MB
STAMP = 200 * MB
KA_X, KA_WQKV, KA_WO, KA_BX, KA_WG, KA_WU, KA_WD, KA_OUT, KA_DBG, KA_WS = 0, 8, 16, 24, 32, 40, 48, 56, 64, 72
OOB = 0x7ff00000
ST_FLAGS = "sc1"
EPS = 1e-5
import struct
def f32(x):
    return "0x%08x" % struct.unpack("<I", struct.pack("<f", x))[0]

class Vm:
    def __init__(self):
        self.ops = []
    def issue(self, tag):
        self.ops.append(tag)
    def after(self, tag):
        idx = max(i for i, t in enumerate(self.ops) if t == tag)
        return len(self.ops) - 1 - idx

def mfma32(d, a, b, c=None):
    return f"v_mfma_f32_32x32x16_bf16 {d}, {a}, {b}, {c if c is not None else d}"
def mfma16(d, a, b, c=None):
    return f"v_mfma_f32_16x16x32_bf16 {d}, {a}, {b}, {c if c is not None else d}"

def srd(a, s, base_lo, base_hi, off, nbytes):
    if off:
        a(f"s_add_u32 s{s}, s{base_lo}, {off}\ns_addc_u32 s{s+1}, s{base_hi}, 0")
    else:
        a(f"s_mov_b32 s{s}, s{base_lo}\ns_mov_b32 s{s+1}, s{base_hi}")
    a(f"s_mov_b32 s{s+2}, {nbytes}\ns_mov_b32 s{s+3}, 0x20000")

def fold_loop(a, name, bodies, first, last, counter="s23"):
    for b in bodies[:first]:
        a.ext(b)
    ref = bodies[first]
    for b in bodies[first:last]:
        assert b == ref, "loop bodies differ:\n" + "\n".join(f"{x} | {y}" for x, y in zip(ref, b) if x != y)
    n = last - first
    a(f"s_mov_b32 {counter}, {n}")
    a(".p2align 4")
    a.label(f"L_{name}_loop")
    a.lines.append(";LOOP")
    a.ext(ref)
    a(f"s_sub_u32 {counter}, {counter}, 1\ns_cmp_lg_u32 {counter}, 0\ns_cbranch_scc1 L_{name}_loop")
    a.lines.append(";ENDLOOP")
    for b in bodies[last:]:
        a.ext(b)

def common_ids(a, lane, r32, hh):
    a(f"v_lshrrev_b32 {lane}, 6, v0")
    a(f"v_and_b32 {r32}, 31, v0")
    a(f"v_readfirstlane_b32 s20, {lane}")
    a(f"v_and_b32 {lane}, 63, v0")
    a(f"v_lshrrev_b32 {hh}, 5, {lane}")

def stamp(a, idx, kidx, tmp="v[250:251]"):
    if not STAMPS:
        return
    a(f"s_memrealtime s[90:91]\ns_memtime s[88:89]\ns_waitcnt lgkmcnt(0)")
    a(f"s_mov_b32 s{92+idx}, s90\ns_mov_b32 s{96+idx}, s88")
def stamp_flush(a, kidx, n, name):
    if not STAMPS:
        return
    a(f"s_load_dwordx2 s[88:89], s[0:1], {KA_WS}\ns_waitcnt lgkmcnt(0)")
    a(f"s_add_u32 s88, s88, {STAMP + kidx*32768}\ns_addc_u32 s89, s89, 0")
    a(f"s_lshl_b32 s87, s2, 7\ns_lshl_b32 s86, s20, 5\ns_add_u32 s87, s87, s86\nv_mov_b32 v1, s87")
    for i in range(8):
        a(f"v_mov_b32 v{4+i}, s{92+i}")
    a(f"s_mov_b64 exec, 1\nglobal_store_dwordx4 v1, v[4:7], s[88:89]\nglobal_store_dwordx4 v1, v[8:11], s[88:89] offset:16\ns_mov_b64 exec, -1")
STAMPS = False

def gemm_n64(a, name, kind, kidx):
    P3 = kind == "P3"
    nst = 16 if P3 else 56
    nk16 = nst * 4
    XOFF = OF if P3 else AF
    va = Alloc("v", 1, 256)
    lane, r32, hh = va(), va(), va()
    vx = va()
    vw = va(2)
    wa = va(2)
    t0, t1, t2, t3 = va(), va(), va(), va()
    acc = [va(16, 4), va(16, 4)]
    Wf = [[va(4, 4) for t in range(2)] for b in range(2)]
    NB = 16
    Xf = [va(4, 4) for _ in range(NB)]
    res = va(16, 4)
    stt = va(16, 4)
    DW = 5
    LRES = 65536
    stamp(a, 0, kidx)
    a(f"s_load_dwordx2 s[30:31], s[0:1], {KA_WS}")
    a(f"s_load_dwordx2 s[32:33], s[0:1], {KA_WO if P3 else KA_WD}")
    a(f"s_load_dwordx2 s[34:35], s[0:1], {KA_X if P3 else KA_OUT}")
    common_ids(a, lane, r32, hh)
    a("s_and_b32 s3, s2, 7\ns_lshr_b32 s28, s2, 3")
    a("s_and_b32 s21, s3, 3\ns_lshl_b32 s21, s21, 2\ns_and_b32 s29, s28, 3\ns_add_u32 s21, s21, s29")
    a("s_lshr_b32 s22, s3, 2\ns_lshl_b32 s22, s22, 3\ns_lshr_b32 s29, s28, 2\ns_add_u32 s22, s22, s29")
    a("s_lshl_b32 s27, s21, 2\ns_add_u32 s27, s27, s20")
    a(f"s_mul_i32 s29, s27, {nk16*1024}")
    a(f"v_lshlrev_b32 {vx}, 4, {lane}\nv_add_u32 {vx}, s29, {vx}")
    a(f"v_lshrrev_b32 {t0}, 3, {lane}\ns_lshl_b32 s29, s20, 4\nv_add_u32 {t0}, s29, {t0}\nv_lshlrev_b32 {t0}, 11, {t0}")
    a(f"v_and_b32 {t1}, 7, {lane}\nv_lshrrev_b32 {t2}, 2, {lane}\nv_and_b32 {t2}, 4, {t2}\nv_xor_b32 {t1}, {t1}, {t2}\nv_lshlrev_b32 {t1}, 4, {t1}")
    a(f"s_lshl_b32 s29, s22, 7\nv_add3_u32 {vw[0]}, {t0}, {t1}, s29")
    a(f"v_add_u32 {vw[1]}, {8*2048-1024}, {vw[0]}")
    a(f"v_lshrrev_b32 {t0}, 2, {lane}\nv_and_b32 {t0}, 3, {t0}")
    a(f"v_lshl_add_u32 {t1}, {hh}, 2, {t0}\nv_lshlrev_b32 {t1}, 7, {t1}")
    a(f"v_lshrrev_b32 {t0}, 1, {t0}\nv_lshlrev_b32 {t0}, 6, {t0}")
    a(f"v_lshrrev_b32 {t2}, 4, {lane}\nv_and_b32 {t2}, 1, {t2}\nv_lshlrev_b32 {t2}, 5, {t2}")
    a(f"v_add3_u32 {t1}, {t1}, {t0}, {t2}\nv_and_b32 {t0}, 3, {lane}\nv_lshl_add_u32 {wa[0]}, {t0}, 3, {t1}")
    a(f"v_xor_b32 {wa[1]}, 64, {wa[0]}")
    for r in range(16):
        a(f"v_mov_b32 {acc[0][r]}, 0\nv_mov_b32 {acc[1][r]}, 0")
    a("s_waitcnt lgkmcnt(0)")
    srd(a, 4, 30, 31, XOFF, 64 * nk16 * 1024)
    srd(a, 8, 32, 33, 0, nst * 64 * 2048)
    vm = Vm()
    if P3:
        srd(a, 12, 34, 35, 0, 2048 * 2048)
        srd(a, 16, 30, 31, HF, 5 * MB)
        a(f"v_lshrrev_b32 {t0}, 3, {lane}\ns_lshl_b32 s29, s27, 5\nv_add_u32 {t1}, s29, {t0}\nv_lshlrev_b32 {t1}, 11, {t1}")
        a(f"s_lshl_b32 s29, s22, 7\nv_add_u32 {t1}, s29, {t1}")
        a(f"v_lshrrev_b32 {t0}, 4, {lane}\nv_and_b32 {t2}, 7, {lane}\nv_xor_b32 {t2}, {t2}, {t0}")
        a(f"v_xor_b32 {t3}, 4, {t2}")
        a(f"v_lshl_add_u32 {t2}, {t2}, 4, {t1}\nv_lshl_add_u32 {t3}, {t3}, 4, {t1}")
        a(f"s_lshl_b32 s29, s20, 12\ns_add_u32 m0, s29, {LRES}")
        for i in range(4):
            a(f"s_mov_b32 s29, {i*(8*2048-1024)}")
            a(f"buffer_load_dwordx4 {t2 if i%2==0 else t3}, s[12:15], s29 offen offset:{i*1024} lds")
            vm.issue("res")
    else:
        srd(a, 12, 30, 31, HF, 5 * MB)
        srd(a, 16, 34, 35, 0, 2048 * 2048)
        a(f"s_lshl_b32 s29, s27, 16\ns_lshl_b32 s28, s22, 12\ns_add_u32 s29, s29, s28")
        a(f"v_lshlrev_b32 {t0}, 4, {lane}")
        for i in range(4):
            a(f"buffer_load_dwordx4 {res[4*i:4*i+4]}, {t0}, s[12:15], s29 offen offset:{i*1024}")
            vm.issue("res")
        a(f"s_lshl_b32 s29, s27, 8\nv_lshlrev_b32 {t1}, 3, {r32}\nv_lshl_add_u32 {t1}, {hh}, 17, {t1}\nv_add_u32 {t1}, s29, {t1}")
        for i in range(8):
            a(f"s_mov_b32 s29, {ST-HF + i*16384}")
            a(f"buffer_load_dwordx2 {stt[2*i:2*i+2]}, {t1}, s[12:15], s29 offen")
            vm.issue("res")
    a("s_mov_b32 s24, 0\ns_mov_b32 s25, 0\ns_lshl_b32 s26, s20, 11")
    def xload(sig):
        vm.issue(("x", sig))
        return f"buffer_load_dwordx4 {Xf[sig % NB]}, {vx}, s[4:7], s24 offen offset:{(sig%4)*1024}"
    def xbump():
        return [f"s_add_u32 s24, s24, 4096", f"s_cmp_ge_u32 s24, {nst*4096}", f"s_cselect_b32 s24, {OOB}, s24"]
    def wdma(slab):
        out = ["s_mov_b32 m0, s26", "s_add_u32 s26, s26, 8192"]
        for i in range(2):
            vm.issue(("w", slab))
            out.append(f"buffer_load_dwordx4 {vw[i]}, s[8:11], s25 offen offset:{i*1024} lds")
        out += ["s_and_b32 s26, s26, 0xffff", f"s_add_u32 s25, s25, {64*2048}"]
        return out
    def wreads(sig):
        i, s = divmod(sig, 4)
        out = []
        for t in range(2):
            for j in range(2):
                off = (i % 4) * 8192 + (16 * s + 8 * j) * 128
                out.append(f"ds_read_b64_tr_b16 {Wf[sig%2][t][2*j:2*j+2]}, {wa[t]} offset:{off}")
        return out
    for i in range(-DW, 0):
        for s in range(4):
            sig = 4 * i + s
            if sig + 15 >= 0:
                if s == 1 and sig + 15 > 0:
                    a.ext(xbump())
                a(xload(sig + 15))
            if s == 2:
                a.ext(wdma(i + DW))
    stamp(a, 1, kidx)
    a(f"s_waitcnt vmcnt({vm.after(('w', 0))})\ns_barrier")
    a.ext(wreads(0))
    bodies = []
    for it in range(nst // 4):
        b = []
        for i in range(4 * it, 4 * it + 4):
            for s in range(4):
                sig = 4 * i + s
                b.append(f"s_waitcnt vmcnt({vm.after(('x', sig))}) lgkmcnt(0)")
                if s == 3:
                    assert vm.after(('x', sig)) <= vm.after(('w', i + 1))
                    b.append("s_barrier")
                    if i % 4 == 3:
                        b.append(f"v_xor_b32 {wa[0]}, 0x8000, {wa[0]}")
                        b.append(f"v_xor_b32 {wa[1]}, 0x8000, {wa[1]}")
                m = [mfma32(acc[t], Wf[sig % 2][t], Xf[sig % NB]) for t in range(2)]
                rd = wreads(sig + 1)
                f2 = []
                if s == 1:
                    f2 += xbump()
                f2.append(xload(sig + 15))
                if s == 2:
                    f2 += wdma(i + DW)
                b += [m[0]] + rd + [m[1]] + f2
        bodies.append(b)
    fold_loop(a, name, bodies, 0, len(bodies))
    stamp(a, 2, kidx)
    a("s_waitcnt vmcnt(0) lgkmcnt(0)")
    pk = R("v", Xf[0].b, 16)
    tmp = R("v", Xf[4].b, 32)
    if P3:
        a(f"v_lshrrev_b32 {t0}, 1, {r32}\nv_and_b32 {t0}, 7, {t0}\nv_lshlrev_b32 {t0}, 4, {t0}")
        a(f"s_lshl_b32 s29, s20, 12\ns_add_u32 s29, s29, {LRES}\nv_lshlrev_b32 {t1}, 7, {r32}\nv_lshl_add_u32 {t1}, {hh}, 3, {t1}\nv_add_u32 {t1}, s29, {t1}")
        for c in range(8):
            a(f"v_xor_b32 {t2}, {16*c}, {t0}\nv_add_u32 {t2}, {t2}, {t1}")
            a(f"ds_read_b64 {res[2*c:2*c+2]}, {t2}")
        a("s_waitcnt lgkmcnt(0)")
    else:
        for i in range(1, 8):
            a(f"v_add_f32 {stt[0]}, {stt[0]}, {stt[2*i]}\nv_add_f32 {stt[1]}, {stt[1]}, {stt[2*i+1]}")
        a(f"v_mov_b32 {stt[2]}, {stt[0]}\nv_mov_b32 {stt[3]}, {stt[1]}\ns_nop 1")
        a(f"v_permlane32_swap_b32 {stt[0]}, {stt[2]}\nv_permlane32_swap_b32 {stt[1]}, {stt[3]}")
        a(f"v_add_f32 {stt[0]}, {stt[0]}, {stt[2]}\nv_add_f32 {stt[1]}, {stt[1]}, {stt[3]}")
        a(f"v_mul_f32 {stt[0]}, {f32(1/1024)}, {stt[0]}\nv_mul_f32 {stt[1]}, {f32(1/1024)}, {stt[1]}")
        a(f"v_fma_f32 {stt[1]}, -{stt[0]}, {stt[0]}, {stt[1]}\nv_max_f32 {stt[1]}, 0, {stt[1]}\nv_add_f32 {stt[1]}, {f32(EPS)}, {stt[1]}")
        a(f"v_rcp_f32 {stt[1]}, {stt[1]}\ns_nop 0")
    for t in range(2):
        for p in range(8):
            lo, hi = tmp[2 * p], tmp[2 * p + 1]
            a(f"v_lshlrev_b32 {lo}, 16, {res[8*t+p]}\nv_and_b32 {hi}, 0xffff0000, {res[8*t+p]}")
        for p in range(8):
            lo, hi = tmp[2 * p], tmp[2 * p + 1]
            if P3:
                a(f"v_add_f32 {lo}, {lo}, {acc[t][2*p]}\nv_add_f32 {hi}, {hi}, {acc[t][2*p+1]}")
            else:
                a(f"v_fmac_f32 {lo}, {stt[1]}, {acc[t][2*p]}\nv_fmac_f32 {hi}, {stt[1]}, {acc[t][2*p+1]}")
        for p in range(8):
            a(f"v_cvt_pk_bf16_f32 {pk[8*t+p]}, {tmp[2*p]}, {tmp[2*p+1]}")
    if P3:
        a(f"s_lshl_b32 s29, s27, 16\ns_lshl_b32 s28, s22, 12\ns_add_u32 s29, s29, s28\nv_lshlrev_b32 {t0}, 4, {lane}")
        for c in range(4):
            a(f"buffer_store_dwordx4 {pk[4*c:4*c+4]}, {t0}, s[16:19], s29 offen offset:{c*1024} {ST_FLAGS}")
        a(f"v_mov_b32 {t2}, 0\nv_mov_b32 {t3}, 0\nv_mov_b32 {t1}, 0x3f803f80")
        for p in range(16):
            a(f"v_dot2c_f32_bf16 {t2}, {pk[p]}, {t1}\nv_dot2c_f32_bf16 {t3}, {pk[p]}, {pk[p]}")
        a(f"s_nop 2\nv_mov_b32 {tmp[0]}, {t2}\nv_mov_b32 {tmp[1]}, {t3}\ns_nop 1")
        a(f"v_permlane32_swap_b32 {t2}, {tmp[0]}\nv_permlane32_swap_b32 {t3}, {tmp[1]}")
        a(f"v_add_f32 {tmp[0]}, {tmp[0]}, {t2}\nv_add_f32 {tmp[1]}, {tmp[1]}, {t3}")
        a(f"s_lshl_b32 s29, s22, 14\ns_lshl_b32 s28, s27, 8\ns_add_u32 s29, s29, s28\ns_add_u32 s29, s29, {ST-HF}")
        a(f"v_lshlrev_b32 {t0}, 3, {r32}\ns_mov_b32 exec_hi, 0")
        a(f"buffer_store_dwordx2 {tmp[0:2]}, {t0}, s[16:19], s29 offen {ST_FLAGS}\ns_mov_b32 exec_hi, -1")
    else:
        a(f"v_lshrrev_b32 {t0}, 1, {r32}\nv_and_b32 {t0}, 7, {t0}\nv_lshlrev_b32 {t0}, 4, {t0}")
        a(f"s_lshl_b32 s29, s20, 12\ns_add_u32 s29, s29, {LRES}\nv_lshlrev_b32 {t1}, 7, {r32}\nv_lshl_add_u32 {t1}, {hh}, 3, {t1}\nv_add_u32 {t1}, s29, {t1}")
        for c in range(8):
            a(f"v_xor_b32 {t2}, {16*c}, {t0}\nv_add_u32 {t2}, {t2}, {t1}")
            a(f"ds_write_b64 {t2}, {pk[2*c:2*c+2]}")
        a(f"v_lshlrev_b32 {t2}, 4, {lane}\nv_add_u32 {t2}, s29, {t2}\ns_waitcnt lgkmcnt(0)")
        for i in range(4):
            a(f"ds_read_b128 {tmp[4*i:4*i+4]}, {t2} offset:{i*1024}")
        a(f"v_lshrrev_b32 {t0}, 3, {lane}\ns_lshl_b32 s29, s27, 5\nv_add_u32 {t1}, s29, {t0}\nv_lshlrev_b32 {t1}, 11, {t1}")
        a(f"s_lshl_b32 s29, s22, 7\nv_add_u32 {t1}, s29, {t1}")
        a(f"v_lshrrev_b32 {t0}, 4, {lane}\nv_and_b32 {t2}, 7, {lane}\nv_xor_b32 {t2}, {t2}, {t0}\nv_xor_b32 {t3}, 4, {t2}")
        a(f"v_lshl_add_u32 {t2}, {t2}, 4, {t1}\nv_lshl_add_u32 {t3}, {t3}, 4, {t1}")
        for i in range(4):
            a(f"s_mov_b32 s29, {i*8*2048}\ns_waitcnt lgkmcnt({3-i})")
            a(f"buffer_store_dwordx4 {tmp[4*i:4*i+4]}, {t2 if i%2==0 else t3}, s[16:19], s29 offen")
    if STAMPS:
        a("s_waitcnt vmcnt(0)")
    stamp(a, 3, kidx)
    stamp_flush(a, kidx, 4, name)
    return dict(vgpr=va.cur, acc=256, lds=81920, block=256)

def gemm_p4(a, name, kidx):
    nst = 16
    SLAB = 28800; GU = 14336 + 128
    RING = 4
    va = Alloc("v", 1, 256)
    aa = Alloc("a", 0, 256)
    lane, r32, hh = va(), va(), va()
    vx = va(2)
    vw = va(7)
    wa = va()
    t0, t1, t2, t3 = va(), va(), va(), va()
    mean = va(2)
    pk = va(8, 4)
    acc = [[va(16, 4) for t in range(7)] for m in range(2)]
    Wf = [[aa(4, 4) for t in range(7)] for b in range(2)]
    NB = 8
    Xf = [[aa(4, 4) for m in range(2)] for _ in range(NB)]
    stt = aa(32, 4)
    stamp(a, 0, kidx)
    a(f"s_load_dwordx2 s[30:31], s[0:1], {KA_WS}")
    a(f"s_load_dwordx4 s[32:35], s[0:1], {KA_WG}")
    common_ids(a, lane, r32, hh)
    a("s_and_b32 s3, s2, 7\ns_lshr_b32 s28, s2, 3\ns_and_b32 s21, s28, 7\ns_lshr_b32 s29, s28, 3\ns_lshl_b32 s22, s3, 2\ns_add_u32 s22, s22, s29")
    a("s_lshl_b32 s27, s21, 3\ns_lshl_b32 s29, s20, 1\ns_add_u32 s27, s27, s29\ns_lshl_b32 s29, s27, 16")
    a(f"v_lshlrev_b32 {vx[0]}, 4, {lane}\nv_add_u32 {vx[0]}, s29, {vx[0]}\nv_add_u32 {vx[1]}, 0x10000, {vx[0]}")
    a(f"s_and_b32 s29, s20, 1\ns_mul_i32 s29, s29, 448\nv_add_u32 {t0}, s29, {lane}")
    a(f"s_mov_b32 s28, {(1<<32)//14 + 1}\ns_mul_i32 s36, s22, 224\ns_movk_i32 s37, {7168 - 14*16}")
    for i in range(7):
        a(f"v_add_u32 {t1}, {64*i}, {t0}\nv_mul_hi_u32 {t2}, {t1}, s28")
        a(f"v_mul_lo_u32 {t2}, {t2}, s37\nv_lshl_add_u32 {t2}, {t1}, 4, {t2}")
        a(f"s_sub_u32 s29, s36, {1024*(i%4)}\nv_add_u32 {vw[i]}, s29, {t2}")
    a(f"v_lshrrev_b32 {t0}, 2, {lane}\nv_and_b32 {t0}, 3, {t0}\nv_lshl_add_u32 {t0}, {hh}, 2, {t0}\nv_mul_u32_u24 {t0}, 224, {t0}")
    a(f"v_lshrrev_b32 {t1}, 4, {lane}\nv_and_b32 {t1}, 1, {t1}\nv_mul_u32_u24 {t1}, {GU}, {t1}")
    a(f"v_and_b32 {t2}, 3, {lane}\nv_lshlrev_b32 {t2}, 3, {t2}\nv_add3_u32 {wa}, {t0}, {t1}, {t2}")
    a("s_waitcnt lgkmcnt(0)")
    srd(a, 4, 30, 31, HF, 6 * MB)
    a("s_cmp_lt_u32 s20, 2\ns_cselect_b32 s8, s32, s34\ns_cselect_b32 s9, s33, s35")
    a(f"s_mov_b32 s10, {1024*7168}\ns_mov_b32 s11, 0x20000")
    srd(a, 16, 30, 31, AF, 64 * 224 * 1024)
    vm = Vm()
    a(f"s_lshr_b32 s29, s20, 1\ns_mul_i32 s38, s29, {GU}\ns_and_b32 s29, s20, 1\ns_mul_i32 s29, s29, 7168\ns_add_u32 s38, s38, s29")
    a("s_mov_b32 s24, 0\ns_mov_b32 s25, 0\ns_mov_b32 s26, 0\ns_mov_b32 s39, 0")
    def xload(sig, m):
        vm.issue(("x", sig))
        return f"buffer_load_dwordx4 {Xf[sig % NB][m]}, {vx[m]}, s[4:7], s24 offen offset:{(sig%4)*1024}"
    def xbump():
        return [f"s_add_u32 s24, s24, 4096", f"s_cmp_ge_u32 s24, {nst*4096}", f"s_cselect_b32 s24, {OOB}, s24"]
    def wdma(slab, part):
        out = []
        if part == 0:
            out.append("s_add_u32 m0, s26, s38")
            out.append("s_add_u32 s40, s26, s38")
            rng = range(0, 4)
        else:
            out.append("s_add_u32 m0, s40, 4096")
            out.append(f"s_add_u32 s26, s26, {SLAB}")
            rng = range(4, 7)
        for i in rng:
            vm.issue(("w", slab))
            out.append(f"buffer_load_dwordx4 {vw[i]}, s[8:11], s25 offen offset:{(i%4)*1024} lds")
        if part == 1:
            out += [f"s_cmp_ge_u32 s26, {RING*SLAB}", "s_cselect_b32 s26, 0, s26", f"s_add_u32 s25, s25, {64*7168}"]
        return out
    def wreads(sig):
        s = sig % 4
        out = []
        for t in range(7):
            for j in range(2):
                off = (16 * s + 8 * j) * 224 + 32 * t
                out.append(f"ds_read_b64_tr_b16 {Wf[sig%2][t][2*j:2*j+2]}, {wa} offset:{off}")
        return out
    def wslot_bump():
        return [f"s_add_u32 s41, s39, {SLAB}", f"s_cmp_ge_u32 s41, {RING*SLAB}", "s_cselect_b32 s41, 0, s41",
                "s_sub_u32 s42, s41, s39", "s_mov_b32 s39, s41", f"v_add_u32 {wa}, s42, {wa}"]
    CSL = RING * SLAB
    a(f"v_lshlrev_b32 {t0}, 4, {lane}\ns_mul_i32 s29, s22, 448\ns_add_u32 s29, s29, {CS-HF}\ns_add_u32 s28, s29, {3584*4-1024}")
    a(f"s_lshl_b32 s43, s20, 11\ns_add_u32 s43, s43, {CSL}\nv_lshlrev_b32 {t3}, 4, {hh}\nv_add_u32 {t3}, s43, {t3}")
    a(f"s_lshl_b32 s36, s27, 8\nv_lshlrev_b32 {t1}, 3, {r32}\nv_lshl_add_u32 {t1}, {hh}, 17, {t1}\nv_add_u32 {t1}, s36, {t1}")
    def vm_ops(sig):
        i, s = divmod(sig, 4)
        out = []
        xs = sig + 7
        if xs >= 0:
            if xs % 4 == 0 and xs > 0:
                out += xbump()
            out += [xload(xs, 0), xload(xs, 1)]
        slab = (i + 4) if s == 3 else (i + 3)
        if slab >= 0:
            if s == 3:
                out += wdma(slab, 0)
            elif s == 0:
                out += wdma(slab, 1)
        return out
    for sig in range(-13, 0):
        a.ext(vm_ops(sig))
        if sig == -9:
            for m in range(2):
                for i in range(8):
                    a(f"s_mov_b32 s36, {ST-HF + i*16384}")
                    a(f"buffer_load_dwordx2 {stt[16*m+2*i:16*m+2*i+2]}, {t1}, s[4:7], s36 offen offset:{256*m}")
                    vm.issue("st")
            a("s_mov_b32 m0, s43\ns_nop 0")
            a(f"buffer_load_dwordx4 {t0}, s[4:7], s29 offen lds")
            a(f"buffer_load_dwordx4 {t0}, s[4:7], s28 offen offset:1024 lds")
            vm.issue("cs"); vm.issue("cs")
    stamp(a, 1, kidx)
    a(f"s_waitcnt vmcnt({vm.after('cs')})")
    for t in range(7):
        for gu in range(2):
            for j in range(2):
                a(f"ds_read_b128 {acc[0][t][8*gu+4*j:8*gu+4*j+4]}, {t3} offset:{1024*gu+64*t+32*j}")
    for m in range(2):
        for i in range(8):
            a(f"v_accvgpr_read_b32 {pk[i]}, {stt[16*m+2*i]}")
        for i in range(1, 8):
            a(f"v_add_f32 {pk[0]}, {pk[0]}, {pk[i]}")
        a(f"v_mov_b32 {pk[1]}, {pk[0]}\ns_nop 1\nv_permlane32_swap_b32 {pk[0]}, {pk[1]}")
        a(f"v_add_f32 {pk[0]}, {pk[0]}, {pk[1]}\nv_mul_f32 {mean[m]}, {f32(-1/1024)}, {pk[0]}")
    a(f"v_mov_b32 {pk[0]}, {mean[0]}\nv_mov_b32 {pk[1]}, {mean[0]}\nv_mov_b32 {pk[2]}, {mean[1]}\nv_mov_b32 {pk[3]}, {mean[1]}")
    a(f"s_waitcnt lgkmcnt(0)")
    for t in range(7):
        for p in range(8):
            a(f"v_pk_mul_f32 {acc[1][t][2*p:2*p+2]}, {acc[0][t][2*p:2*p+2]}, {pk[2:4]}")
            a(f"v_pk_mul_f32 {acc[0][t][2*p:2*p+2]}, {acc[0][t][2*p:2*p+2]}, {pk[0:2]}")
    a(f"s_waitcnt vmcnt({vm.after(('w', 0))})\ns_barrier")
    a.ext(wreads(0))
    bodies = []
    for it in range(nst // 2):
        b = []
        for i in range(2 * it, 2 * it + 2):
            for s in range(4):
                sig = 4 * i + s
                b.append(f"s_waitcnt vmcnt({vm.after(('x', sig))}) lgkmcnt(0)")
                pre = []
                if s == 3:
                    assert vm.after(('x', sig)) <= vm.after(('w', i + 1))
                    b.append("s_barrier")
                if s == 2:
                    post = wslot_bump()
                else:
                    post = []
                m = []
                for t in range(7):
                    for mm in range(2):
                        m.append(mfma32(acc[mm][t], Wf[sig % 2][t], Xf[sig % NB][mm]))
                rd = wreads(sig + 1)
                ops = vm_ops(sig)
                fl = rd + ops + post
                cnt = [2] * 7 + [0] * 7
                rest = len(ops) + len(post)
                for k in range(rest):
                    cnt[7 + (k * 7) // rest] += 1
                b += interleave(m, fl, per_gap=cnt)
        bodies.append(b)
    fold_loop(a, name, bodies, 0, len(bodies))
    stamp(a, 2, kidx)
    a("s_nop 7\ns_nop 7")
    a(f"s_mul_i32 s29, s27, {224*1024}\ns_mul_i32 s28, s22, {7*1024}\ns_add_u32 s29, s29, s28\nv_lshlrev_b32 {t0}, 4, {lane}")
    k = 0
    for m in range(2):
        for t in range(7):
            A = acc[m][t]
            P = pk[4 * (k % 2):4 * (k % 2) + 4]
            for e in range(8):
                a(f"v_max_f32 {A[e]}, 0, {A[e]}")
            for p in range(4):
                a(f"v_pk_mul_f32 {A[2*p:2*p+2]}, {A[2*p:2*p+2]}, {A[8+2*p:8+2*p+2]}")
            for p in range(4):
                a(f"v_cvt_pk_bf16_f32 {P[p]}, {A[2*p]}, {A[2*p+1]}")
            if t == 4:
                a("s_add_u32 s29, s29, 4096")
            a(f"buffer_store_dwordx4 {P}, {t0}, s[16:19], s29 offen offset:{(t%4)*1024} {ST_FLAGS}")
            k += 1
        a(f"s_add_u32 s29, s29, {224*1024 - 4096}")
    if STAMPS:
        a("s_waitcnt vmcnt(0)")
    stamp(a, 3, kidx)
    stamp_flush(a, kidx, 4, name)
    return dict(vgpr=256 + aa.cur, acc=256, lds=RING * SLAB + 8192, block=256)

def colsum_k(a, name, kidx):
    a(f"s_cmp_ge_u32 s2, 14\ns_cbranch_scc1 L_{name}_end")
    a(f"s_load_dwordx2 s[30:31], s[0:1], {KA_WS}\ns_load_dwordx4 s[32:35], s[0:1], {KA_WG}\ns_waitcnt lgkmcnt(0)")
    a("s_cmp_lt_u32 s2, 7\ns_cselect_b32 s8, s32, s34\ns_cselect_b32 s9, s33, s35\ns_cselect_b32 s3, 0, 7\ns_sub_u32 s3, s2, s3")
    a(f"s_mov_b32 s10, {1024*7168}\ns_mov_b32 s11, 0x20000")
    srd(a, 4, 30, 31, CS, 2 * 3584 * 4)
    a("s_lshl_b32 s12, s3, 10\nv_lshlrev_b32 v1, 2, v0\nv_add_u32 v1, s12, v1\nv_mov_b32 v2, 0\nv_mov_b32 v3, 0\ns_mov_b32 s13, 0")
    a.label(f"L_{name}_loop")
    for u in range(8):
        a(f"buffer_load_dword v{8+u}, v1, s[8:11], s13 offen\ns_add_u32 s13, s13, 7168")
    a("s_waitcnt vmcnt(0)")
    for u in range(8):
        a(f"v_lshlrev_b32 v4, 16, v{8+u}\nv_and_b32 v5, 0xffff0000, v{8+u}\nv_add_f32 v2, v2, v4\nv_add_f32 v3, v3, v5")
    a(f"s_cmp_lt_u32 s13, {1024*7168}\ns_cbranch_scc1 L_{name}_loop")
    a("s_lshl_b32 s12, s2, 11\nv_lshlrev_b32 v1, 3, v0\nbuffer_store_dwordx2 v[2:3], v1, s[4:7], s12 offen")
    return dict(vgpr=32, acc=32, lds=0, block=256)

def gemm_p1(a, name, kidx):
    nst = 16
    XS, WS_ = 16384, 24576
    WB = 4 * XS
    va = Alloc("v", 1, 256)
    lane, r32, hh = va(), va(), va()
    vxd = va(4)
    vwd = va(6)
    xa = [[va() for sl in range(2)] for ss in range(4)]
    wa = [[va() for par in range(2)] for grp in range(2)]
    t0, t1, t2, t3 = va(), va(), va(), va()
    ones = va()
    rs, rq = va(), va()
    cs = va(3)
    acc = [[va(16, 4) for g in range(3)] for sl in range(2)]
    Xf = [[va(4, 4) for sl in range(2)] for b in range(2)]
    Wf = [[va(4, 4) for g in range(3)] for b in range(2)]
    tmp = va(48, 4)
    stamp(a, 0, kidx)
    a(f"s_load_dwordx2 s[30:31], s[0:1], {KA_WS}")
    a(f"s_load_dwordx4 s[32:35], s[0:1], {KA_X}")
    common_ids(a, lane, r32, hh)
    a("s_and_b32 s3, s2, 7\ns_lshr_b32 s28, s2, 3")
    a("s_and_b32 s21, s3, 1\ns_lshl_b32 s21, s21, 3\ns_and_b32 s29, s28, 7\ns_add_u32 s21, s21, s29")
    a("s_lshr_b32 s22, s3, 1\ns_lshl_b32 s22, s22, 2\ns_lshr_b32 s29, s28, 3\ns_add_u32 s22, s22, s29")
    a("s_and_b32 s44, s20, 1\ns_lshr_b32 s45, s20, 1")
    a(f"v_lshrrev_b32 {t0}, 3, {lane}\ns_lshl_b32 s29, s21, 7\ns_lshl_b32 s28, s20, 5\ns_add_u32 s29, s29, s28")
    a(f"v_add_u32 {t1}, s29, {t0}\nv_lshlrev_b32 {t1}, 11, {t1}")
    a(f"v_lshrrev_b32 {t0}, 4, {lane}\nv_and_b32 {t2}, 7, {lane}\nv_xor_b32 {t2}, {t2}, {t0}\nv_xor_b32 {t3}, 4, {t2}")
    a(f"v_lshl_add_u32 {t2}, {t2}, 4, {t1}\nv_lshl_add_u32 {t3}, {t3}, 4, {t1}")
    for i in range(4):
        a(f"v_add_u32 {vxd[i]}, {i*(8*2048-1024)}, {t2 if i%2==0 else t3}")
    a(f"v_lshrrev_b32 {t0}, 3, {lane}\nv_mul_u32_u24 {t0}, 6144, {t0}")
    a(f"v_and_b32 {t1}, 7, {lane}\nv_lshrrev_b32 {t2}, 2, {lane}\nv_and_b32 {t2}, 4, {t2}\nv_xor_b32 {t1}, {t1}, {t2}")
    a(f"v_lshl_add_u32 {t0}, {t1}, 4, {t0}\ns_lshl_b32 s36, s22, 7\ns_mul_i32 s37, s20, 6")
    for i in range(6):
        a(f"s_add_u32 s28, s37, {i}\ns_lshr_b32 s29, s28, 3\ns_lshl_b32 s29, s29, 11\ns_and_b32 s28, s28, 7\ns_mul_i32 s28, s28, {8*6144}")
        a(f"s_add_u32 s28, s28, s29\ns_add_u32 s28, s28, s36\ns_sub_u32 s28, s28, {1024*(i%4)}\nv_add_u32 {vwd[i]}, s28, {t0}")
    a(f"v_lshrrev_b32 {t0}, 1, {r32}\nv_and_b32 {t0}, 7, {t0}\nv_xor_b32 {t0}, {t0}, {hh}\ns_lshl_b32 s28, s44, 1\nv_xor_b32 {t0}, s28, {t0}")
    a(f"s_lshl_b32 s28, s44, 13\ns_lshl_b32 s29, s45, 12\ns_add_u32 s28, s28, s29\nv_lshlrev_b32 {t1}, 7, {r32}\nv_add_u32 {t1}, s28, {t1}")
    for ss in range(4):
        a(f"v_xor_b32 {t2}, {2*ss}, {t0}\nv_lshl_add_u32 {xa[ss][0]}, {t2}, 4, {t1}\nv_xor_b32 {xa[ss][1]}, 0x1000, {xa[ss][0]}")
    a(f"v_lshrrev_b32 {t0}, 2, {lane}\nv_and_b32 {t0}, 3, {t0}\nv_lshl_add_u32 {t1}, {hh}, 3, {t0}\nv_lshlrev_b32 {t1}, 7, {t1}")
    a(f"v_lshrrev_b32 {t0}, 1, {t0}\nv_xor_b32 {t0}, s45, {t0}\nv_lshlrev_b32 {t0}, 6, {t0}")
    a(f"v_lshrrev_b32 {t2}, 4, {lane}\nv_and_b32 {t2}, 1, {t2}\nv_lshlrev_b32 {t2}, 5, {t2}\nv_add3_u32 {t1}, {t1}, {t0}, {t2}")
    a(f"v_and_b32 {t0}, 3, {lane}\nv_lshl_add_u32 {t1}, {t0}, 3, {t1}\ns_lshl_b32 s28, s44, 11")
    for grp in range(2):
        a(f"s_add_u32 s29, s28, {WB + grp*2*WS_}\nv_add_u32 {wa[grp][0]}, s29, {t1}")
        a(f"s_sub_u32 s29, {WB + grp*2*WS_}, s28\nv_add_u32 {wa[grp][1]}, s29, {t1}")
    a(f"v_mov_b32 {ones}, 0x3f803f80\nv_mov_b32 {rs}, 0\nv_mov_b32 {rq}, 0\nv_mov_b32 {cs[0]}, 0\nv_mov_b32 {cs[1]}, 0\nv_mov_b32 {cs[2]}, 0")
    a("s_waitcnt lgkmcnt(0)")
    srd(a, 4, 32, 33, 0, 2048 * 2048)
    srd(a, 8, 34, 35, 0, 1024 * 6144)
    srd(a, 16, 30, 31, QF, 12 * MB)
    a(f"s_lshl_b32 s38, s20, 12\ns_mul_i32 s39, s20, 6144\ns_add_u32 s39, s39, {WB}\ns_mov_b32 s24, 0\ns_mov_b32 s25, 0")
    vm = Vm()
    def dma(slab, part):
        sl = slab % 4
        out = []
        if part == 0:
            out.append(f"s_add_u32 m0, s38, {sl*XS}")
            regs = [(vxd[i], "s[4:7]", "s24", i) for i in range(4)]
        elif part == 1:
            out.append(f"s_add_u32 m0, s39, {sl*WS_}")
            regs = [(vwd[i], "s[8:11]", "s25", i) for i in range(4)]
        else:
            out.append(f"s_add_u32 m0, s39, {sl*WS_+4096}")
            regs = [(vwd[4+i], "s[8:11]", "s25", i) for i in range(2)]
        if part == 0:
            out.append("s_nop 0")
        elif part == 1:
            out += ["s_add_u32 s24, s24, 128", "s_cmp_ge_u32 s24, 2048", f"s_cselect_b32 s24, {OOB}, s24"]
        else:
            out.append("s_nop 0")
        for (v, sr, so, i) in regs:
            vm.issue(("d", slab))
            out.append(f"buffer_load_dwordx4 {v}, {sr}, {so} offen offset:{i*1024} lds")
        if part == 2:
            out.append(f"s_add_u32 s25, s25, {64*6144}")
        return out
    def xreads(sig):
        i, ss = divmod(sig, 4)
        return [f"ds_read_b128 {Xf[sig%2][sl]}, {xa[ss][sl]} offset:{(i%4)*XS}" for sl in range(2)]
    def wreads(sig, g):
        i, ss = divmod(sig, 4)
        sl = i % 4
        return [f"ds_read_b64_tr_b16 {Wf[sig%2][g][2*j:2*j+2]}, {wa[sl//2][ss%2]} offset:{(sl%2)*WS_ + g*8192 + 2048*ss + 512*j}" for j in range(2)]
    def vm_ops(sig):
        i, s = divmod(sig, 4)
        if s == 3: return dma(i + 4, 0) if i + 4 >= 0 else []
        if s == 0: return dma(i + 3, 1) if i + 3 >= 0 else []
        if s == 1: return dma(i + 3, 2) if i + 3 >= 0 else []
        return []
    for sig in range(-13, 0):
        a.ext(vm_ops(sig))
    for sl in range(2):
        for g in range(3):
            for r in range(16):
                a(f"v_mov_b32 {acc[sl][g][r]}, 0")
    stamp(a, 1, kidx)
    a(f"s_waitcnt vmcnt({vm.after(('d', 0))})\ns_barrier")
    a.ext(xreads(0) + wreads(0, 0) + wreads(0, 1) + wreads(0, 2))
    bodies = []
    for it in range(nst // 4):
        b = []
        for i in range(4 * it, 4 * it + 4):
            for s in range(4):
                sig = 4 * i + s
                cur, prv = sig % 2, 1 - sig % 2
                if s == 3:
                    b.append(f"s_waitcnt vmcnt({vm.after(('d', i + 1))}) lgkmcnt(0)")
                    b.append("s_barrier")
                else:
                    b.append("s_waitcnt lgkmcnt(0)")
                m = []
                for g in range(3):
                    for sl in range(2):
                        if g < 2:
                            m.append(mfma32(acc[sl][g], Wf[cur][g], Xf[cur][sl]))
                        else:
                            m.append(mfma32(acc[sl][g], Xf[cur][sl], Wf[cur][g]))
                rowd = []
                for r in range(4):
                    rowd.append(f"v_dot2c_f32_bf16 {rs}, {Xf[cur][0][r]}, {ones}")
                    rowd.append(f"v_dot2c_f32_bf16 {rq}, {Xf[cur][0][r]}, {Xf[cur][0][r]}")
                def cd(buf, g, r):
                    return f"v_dot2c_f32_bf16 {cs[g]}, {Wf[buf][g][r]}, {ones}"
                ops = vm_ops(sig)
                if s % 2 == 0:
                    cold = [cd(cur, 0, 0), cd(cur, 1, 0), cd(cur, 0, 1), cd(cur, 1, 1), cd(cur, 0, 2), cd(cur, 0, 3)]
                    rd = xreads(sig + 1) + wreads(sig + 1, 0) + wreads(sig + 1, 1) + wreads(sig + 1, 2)
                    dots = []
                    for k in range(8):
                        dots.append(rowd[k])
                        if k < 6: dots.append(cold[k])
                    fl = []
                    for k in range(4):
                        fl += rd[2*k:2*k+2] + dots[3*k:3*k+3]
                    fl += ops + dots[12:]
                else:
                    cold = [cd(prv, 1, 2), cd(prv, 2, 0), cd(prv, 1, 3), cd(prv, 2, 1), cd(prv, 2, 2), cd(prv, 2, 3)]
                    fl = xreads(sig + 1) + cold[0:3] + wreads(sig + 1, 0) + cold[3:6] + wreads(sig + 1, 1) + rowd[0:3] + wreads(sig + 1, 2) + rowd[3:6] + ops + rowd[6:]
                cnt = [5, 5, 5, 5]
                rest = len(fl) - 20
                cnt += [(rest + 1) // 2, rest // 2]
                b += interleave(m, fl, per_gap=cnt)
        bodies.append(b)
    fold_loop(a, name, bodies, 0, len(bodies))
    stamp(a, 2, kidx)
    a("s_waitcnt vmcnt(0) lgkmcnt(0)\ns_barrier")
    TA, TB, TC = 0, 512, 1024
    for (x, y) in ((rs, tmp[0]), (rq, tmp[1]), (cs[0], tmp[2]), (cs[1], tmp[3]), (cs[2], tmp[4])):
        a(f"v_mov_b32 {y}, {x}")
    a("s_nop 1")
    for (x, y) in ((rs, tmp[0]), (rq, tmp[1]), (cs[0], tmp[2]), (cs[1], tmp[3]), (cs[2], tmp[4])):
        a(f"v_permlane32_swap_b32 {x}, {y}")
    for (x, y) in ((rs, tmp[0]), (rq, tmp[1]), (cs[0], tmp[2]), (cs[1], tmp[3]), (cs[2], tmp[4])):
        a(f"v_add_f32 {x}, {x}, {y}")
    a(f"v_mul_f32 {rs}, {f32(1/1024)}, {rs}\nv_mul_f32 {rq}, {f32(1/1024)}, {rq}")
    a(f"v_fma_f32 {rq}, -{rs}, {rs}, {rq}\nv_max_f32 {rq}, 0, {rq}\nv_add_f32 {rq}, {f32(EPS)}, {rq}\nv_rsq_f32 {rq}, {rq}\ns_nop 0")
    a(f"v_mul_f32 {rs}, {rs}, {rq}\nv_sub_f32 {rs}, 0, {rs}")
    a(f"s_lshl_b32 s28, s44, 8\ns_lshl_b32 s29, s45, 7\ns_add_u32 s28, s28, s29\nv_lshlrev_b32 {t0}, 2, {r32}\nv_add_u32 {t1}, s28, {t0}")
    a(f"ds_write_b32 {t1}, {rq} offset:{TA}\nds_write_b32 {t1}, {rs} offset:{TB}")
    a(f"s_mul_i32 s28, s44, 768\ns_add_u32 s28, s28, s29\nv_add_u32 {t2}, s28, {t0}")
    for g in range(3):
        a(f"ds_write_b32 {t2}, {cs[g]} offset:{TC + 256*g}")
    a("s_waitcnt lgkmcnt(0)\ns_barrier")
    a1, b1 = tmp[0], tmp[1]
    a(f"v_xor_b32 {t1}, 128, {t1}\nds_read_b32 {a1}, {t1} offset:{TA}\nds_read_b32 {b1}, {t1} offset:{TB}")
    a(f"v_add_u32 {t2}, s29, {t0}\nds_read_b32 {tmp[2]}, {t2} offset:{TC+512}\nds_read_b32 {tmp[3]}, {t2} offset:{TC+768+512}")
    a(f"v_lshlrev_b32 {t3}, 4, {hh}\nv_add_u32 {t3}, s29, {t3}")
    cq = R("v", Xf[0][0].b, 16); assert Xf[1][1].b == Xf[0][0].b + 12
    c2 = R("v", Wf[0][0].b, 16)
    ab = tmp[4:12]
    pkq = tmp[12:20]
    t16 = tmp[20:36]
    a(f"s_lshl_b32 s46, s21, 2\ns_lshl_b32 s28, s44, 1\ns_add_u32 s46, s46, s28")
    a(f"s_lshl_b32 s47, s22, 1\ns_add_u32 s47, s47, s45\ns_lshl_b32 s47, s47, 17")
    a(f"s_add_u32 s28, s46, s45\ns_lshl_b32 s28, s28, 11\ns_add_u32 s48, s47, s28")
    a(f"s_xor_b32 s28, s45, 1\ns_add_u32 s28, s46, s28\ns_lshl_b32 s28, s28, 11\ns_add_u32 s49, s47, s28")
    a(f"v_lshlrev_b32 {t0}, 4, {lane}")
    CQ = (32 ** -0.5) * math.log2(math.e)
    for g in range(2):
        for j in range(4):
            a(f"ds_read_b128 {cq[4*j:4*j+4]}, {t3} offset:{TC + 256*g + 32*j}")
            a(f"ds_read_b128 {c2[4*j:4*j+4]}, {t3} offset:{TC + 768 + 256*g + 32*j}")
        a("s_waitcnt lgkmcnt(0)")
        if g == 0:
            a(f"v_add_f32 {cs[2]}, {tmp[2]}, {tmp[3]}")
            for k, src in enumerate((rq, rs, a1, b1)):
                a(f"v_mul_f32 {ab[2*k]}, {f32(CQ)}, {src}\nv_mul_f32 {ab[2*k+1]}, {f32(CQ)}, {src}")
        else:
            for k, src in enumerate((rq, rs, a1, b1)):
                a(f"v_mov_b32 {ab[2*k]}, {src}\nv_mov_b32 {ab[2*k+1]}, {src}")
        for p in range(8):
            a(f"v_pk_add_f32 {cq[2*p:2*p+2]}, {cq[2*p:2*p+2]}, {c2[2*p:2*p+2]}")
        for sl in range(2):
            A = acc[sl][g]
            for p in range(8):
                a(f"v_pk_mul_f32 {t16[2*p:2*p+2]}, {cq[2*p:2*p+2]}, {ab[4*sl+2:4*sl+4]}")
            for p in range(8):
                a(f"v_pk_fma_f32 {A[2*p:2*p+2]}, {A[2*p:2*p+2]}, {ab[4*sl:4*sl+2]}, {t16[2*p:2*p+2]}")
            for p in range(8):
                a(f"v_cvt_pk_bf16_f32 {A[p]}, {A[2*p]}, {A[2*p+1]}")
            a(f"s_add_u32 s28, s{48+sl}, {g*4*MB}")
            a(f"buffer_store_dwordx4 {A[0:4]}, {t0}, s[16:19], s28 offen {ST_FLAGS}")
            a(f"buffer_store_dwordx4 {A[4:8]}, {t0}, s[16:19], s28 offen offset:1024 {ST_FLAGS}")
    a(f"v_mov_b32 {tmp[2]}, {cs[2]}\nv_mov_b32 {tmp[3]}, {cs[2]}")
    a(f"s_lshl_b32 s28, s44, 8\nv_add_u32 {t3}, s28, {t3}")
    for sl in range(2):
        if sl == 1:
            a(f"v_xor_b32 {t3}, 128, {t3}")
        for j in range(4):
            a(f"ds_read_b128 {cq[4*j:4*j+4]}, {t3} offset:{TA + 32*j}")
            a(f"ds_read_b128 {c2[4*j:4*j+4]}, {t3} offset:{TB + 32*j}")
        a("s_waitcnt lgkmcnt(0)")
        A = acc[sl][2]
        for p in range(8):
            a(f"v_pk_mul_f32 {t16[2*p:2*p+2]}, {c2[2*p:2*p+2]}, {tmp[2:4]}")
        for p in range(8):
            a(f"v_pk_fma_f32 {A[2*p:2*p+2]}, {A[2*p:2*p+2]}, {cq[2*p:2*p+2]}, {t16[2*p:2*p+2]}")
        for p in range(8):
            a(f"v_cvt_pk_bf16_f32 {A[p]}, {A[2*p]}, {A[2*p+1]}")
        a(f"s_add_u32 s28, s{48+sl}, {8*MB}")
        a(f"buffer_store_dwordx4 {A[0:4]}, {t0}, s[16:19], s28 offen {ST_FLAGS}")
        a(f"buffer_store_dwordx4 {A[4:8]}, {t0}, s[16:19], s28 offen offset:1024 {ST_FLAGS}")
    if STAMPS:
        a("s_waitcnt vmcnt(0)")
    stamp(a, 3, kidx)
    stamp_flush(a, kidx, 4, name)
    return dict(vgpr=va.cur, acc=256, lds=163840, block=256)

def attn_p2(a, name, kidx):
    va = Alloc("v", 1, 256)
    lane, r32, hh = va(), va(), va()
    vl = va()
    t0, t1, t2, t3 = va(), va(), va(), va()
    As = va(4, 4)
    Q = [[va(4, 4) for m in range(2)] for sl in range(4)]
    O = [va(16, 4) for sl in range(4)]
    L = [va(4, 4) for sl in range(4)]
    S = [va(16, 4) for b in range(2)]
    P = va(8, 4)
    NB = 4
    Kf = [[va(4, 4) for m in range(2)] for b in range(NB)]
    Vf = [[va(4, 4) for m in range(2)] for b in range(NB)]
    NKT = 32
    stamp(a, 0, kidx)
    a(f"s_load_dwordx2 s[30:31], s[0:1], {KA_WS}")
    common_ids(a, lane, r32, hh)
    a("s_and_b32 s3, s2, 7\ns_lshr_b32 s28, s2, 3\ns_and_b32 s21, s28, 3\ns_lshl_b32 s3, s3, 2\ns_add_u32 s21, s21, s3\ns_lshr_b32 s22, s28, 2")
    a("s_and_b32 s44, s20, 1\ns_lshr_b32 s45, s20, 1")
    a(f"v_lshlrev_b32 {vl}, 4, {lane}")
    a(f"v_lshrrev_b32 {t0}, 4, {lane}\nv_lshrrev_b32 {t1}, 2, {lane}\nv_xor_b32 {t0}, {t0}, {t1}\nv_and_b32 {t0}, 1, {t0}")
    a(f"v_cmp_eq_u32 vcc, 0, {t0}\nv_mov_b32 {t1}, 0x3f803f80\ns_nop 0\nv_cndmask_b32 {As[0]}, 0, {t1}, vcc")
    a(f"v_mov_b32 {As[1]}, {As[0]}\nv_mov_b32 {As[2]}, {As[0]}\nv_mov_b32 {As[3]}, {As[0]}")
    a("s_lshl_b32 s36, s21, 17")
    a("s_lshl_b32 s37, s22, 3\ns_lshl_b32 s28, s44, 2\ns_add_u32 s37, s37, s28")
    a("s_lshl_b32 s28, s45, 16\ns_add_u32 s24, s36, s28")
    a(f"s_add_u32 s38, s24, {KF + NKT*2048}\ns_add_u32 s39, s24, {VF + NKT*2048}")
    a(f"s_add_u32 s25, s24, {VF}\ns_add_u32 s24, s24, {KF}")
    a("s_xor_b32 s40, s45, 1\ns_lshl_b32 s40, s40, 1")
    a("s_waitcnt lgkmcnt(0)")
    srd(a, 4, 30, 31, 0, 12 * MB)
    srd(a, 16, 30, 31, OF, 4 * MB)
    vm = Vm()
    def kload(kt):
        out = []
        for m in range(2):
            vm.issue(("k", kt))
            out.append(f"buffer_load_dwordx4 {Kf[kt%NB][m]}, {vl}, s[4:7], s24 offen offset:{1024*m}")
        out += ["s_add_u32 s24, s24, 2048", "s_cmp_ge_u32 s24, s38", f"s_cselect_b32 s24, {OOB}, s24"]
        return out
    def vload(kt):
        out = []
        for m in range(2):
            vm.issue(("v", kt))
            out.append(f"buffer_load_dwordx4 {Vf[kt%NB][m]}, {vl}, s[4:7], s25 offen offset:{1024*m}")
        out += ["s_add_u32 s25, s25, 2048", "s_cmp_ge_u32 s25, s39", f"s_cselect_b32 s25, {OOB}, s25"]
        return out
    a.ext(kload(0))
    for sl in range(4):
        a(f"s_xor_b32 s28, s40, {sl}\ns_add_u32 s28, s28, s37\ns_lshl_b32 s28, s28, 11\ns_add_u32 s28, s28, s36")
        for m in range(2):
            a(f"buffer_load_dwordx4 {Q[sl][m]}, {vl}, s[4:7], s28 offen offset:{1024*m}")
            vm.issue(("q", sl))
    a.ext(vload(0) + kload(1) + vload(1) + kload(2) + vload(2) + kload(3))
    for sl in range(4):
        for r in range(16):
            a(f"v_mov_b32 {O[sl][r]}, 0")
        for r in range(4):
            a(f"v_mov_b32 {L[sl][r]}, 0")
    for r in range(8):
        a(f"v_mov_b32 {P[r]}, 0")
    for r in range(4):
        a(f"v_mov_b32 {Vf[3][1][r]}, 0")
    stamp(a, 1, kidx)
    a(f"s_waitcnt vmcnt({vm.after(('q', 0))})")
    a(mfma32(S[0], Kf[0][0], Q[0][0], 0))
    a(mfma32(S[0], Kf[0][1], Q[0][1]))
    a(f"s_waitcnt vmcnt({vm.after(('q', 3))})\ns_nop 7\ns_nop 3")
    def unit(u):
        kt, sl = divmod(u, 4)
        b = u % 2
        kn, sn = divmod(u + 1, 4)
        kp, sp = divmod(u - 1, 4)
        Sb = S[b]
        e = [f"v_exp_f32 {Sb[i]}, {Sb[i]}" for i in range(16)]
        c = [f"v_cvt_pk_bf16_f32 {P[i]}, {Sb[2*i]}, {Sb[2*i+1]}" for i in range(8)]
        out = []
        if sl == 3:
            out.append(f"s_waitcnt vmcnt({vm.after(('k', kn))})")
        out.append(mfma32(S[1 - b], Kf[kn % NB][0], Q[sn][0], 0))
        out += [e[0], e[1], e[2], e[3]]
        out.append(mfma32(S[1 - b], Kf[kn % NB][1], Q[sn][1]))
        out += [e[4], e[5], e[6], c[0], c[1]]
        out.append(mfma32(O[sp], Vf[kp % NB][1], P[4:8]))
        out += [e[7], e[8], e[9], c[2], c[3]]
        out.append(mfma16(L[sp], As, P[4:8]))
        out += [e[10], e[11]]
        if sl == 0:
            out.append(f"s_waitcnt vmcnt({vm.after(('v', kt))})")
        out.append(mfma32(O[sl], Vf[kt % NB][0], P[0:4]))
        out += [e[12], e[13], e[14], c[4], c[5]]
        out.append(mfma16(L[sl], As, P[0:4]))
        out += [e[15], c[6], c[7]]
        if sl == 3:
            out += kload(kt + 4)
        if sl == 1:
            out += vload(kt + 3)
        return out
    bodies = []
    for it in range(NKT // 4):
        b = []
        for u in range(16 * it, 16 * it + 16):
            b += unit(u)
        bodies.append(b)
    for k in range(len(bodies[0])):
        if bodies[0][k] != bodies[1][k]:
            n0 = int(bodies[0][k].split("(")[1].split(")")[0]); n1 = int(bodies[1][k].split("(")[1].split(")")[0])
            assert n1 <= n0, (bodies[0][k], bodies[1][k])
            bodies[0][k] = bodies[1][k]
    fold_loop(a, name, bodies, 0, len(bodies))
    a("s_nop 0")
    a(mfma32(O[3], Vf[3][1], P[4:8]))
    a(mfma16(L[3], As, P[4:8]))
    stamp(a, 2, kidx)
    a(f"s_lshl_b32 s28, s20, 13\nv_add_u32 {t0}, s28, {vl}\ns_xor_b32 s28, s28, 0x4000\nv_add_u32 {t1}, s28, {vl}")
    a(f"s_lshl_b32 s28, s20, 9\nv_lshlrev_b32 {t2}, 2, {lane}\nv_add_u32 {t2}, s28, {t2}\nv_xor_b32 {t3}, 0x400, {t2}")
    for sl in range(2):
        for j in range(4):
            a(f"ds_write_b128 {t0}, {O[sl][4*j:4*j+4]} offset:{sl*4096 + j*1024}")
        a(f"ds_write_b32 {t2}, {L[sl][0]} offset:{32768 + sl*256}")
    a("s_waitcnt lgkmcnt(0)\ns_barrier")
    for sl in range(2):
        for j in range(4):
            a(f"ds_read_b128 {S[sl][4*j:4*j+4]}, {t1} offset:{sl*4096 + j*1024}")
        a(f"ds_read_b32 {L[sl][1]}, {t3} offset:{32768 + sl*256}")
    a("s_waitcnt lgkmcnt(0)")
    for sl in range(2):
        a(f"v_add_f32 {L[2+sl][0]}, {L[2+sl][0]}, {L[sl][1]}")
        for p in range(8):
            a(f"v_pk_add_f32 {O[2+sl][2*p:2*p+2]}, {O[2+sl][2*p:2*p+2]}, {S[sl][2*p:2*p+2]}")
    a(f"s_mov_b32 s28, {f32(2.0**-60)}\ns_mov_b32 s29, {f32(2.0**60)}")
    a(f"v_cmp_nge_f32 vcc, {L[2][0]}, s28\nv_cmp_nle_f32 s[48:49], {L[2][0]}, s29\nv_cmp_nge_f32 s[50:51], {L[3][0]}, s28\nv_cmp_nle_f32 s[52:53], {L[3][0]}, s29")
    a("s_nop 1\ns_or_b64 s[48:49], s[48:49], vcc\ns_or_b64 s[50:51], s[50:51], s[52:53]\ns_or_b64 s[48:49], s[48:49], s[50:51]")
    if FORCE_SLOW:
        a("s_mov_b64 s[48:49], -1\ns_cmp_eq_u32 s2, s2")
    a(f"s_cbranch_scc1 L_{name}_slow")
    a.label(f"L_{name}_fin")
    for sl in range(2, 4):
        a(f"v_rcp_f32 {L[sl][2]}, {L[sl][0]}\ns_nop 0\nv_mov_b32 {L[sl][3]}, {L[sl][2]}")
        for p in range(8):
            a(f"v_pk_mul_f32 {O[sl][2*p:2*p+2]}, {O[sl][2*p:2*p+2]}, {L[sl][2:4]}")
        for p in range(8):
            a(f"v_cvt_pk_bf16_f32 {O[sl][p]}, {O[sl][2*p]}, {O[sl][2*p+1]}")
        a(f"s_xor_b32 s28, s40, {sl}\ns_add_u32 s28, s28, s37\ns_lshl_b32 s28, s28, 16\ns_lshl_b32 s29, s21, 11\ns_add_u32 s28, s28, s29")
        a(f"buffer_store_dwordx4 {O[sl][0:4]}, {vl}, s[16:19], s28 offen {ST_FLAGS}")
        a(f"buffer_store_dwordx4 {O[sl][4:8]}, {vl}, s[16:19], s28 offen offset:1024 {ST_FLAGS}")
    if STAMPS:
        a("s_waitcnt vmcnt(0)")
    stamp(a, 3, kidx)
    stamp_flush(a, kidx, 4, name)
    s = Asm()
    s.label(f"L_{name}_slow")
    mx, mn, al, tt = t0, t1, t2, t3
    for sl in range(2, 4):
        s(f"s_waitcnt vmcnt(0)\nv_mov_b32 {mx}, 0xff800000\nv_mov_b32 {L[sl][0]}, 0")
        for r in range(16):
            s(f"v_mov_b32 {O[sl][r]}, 0")
        s(f"s_add_u32 s24, s36, {KF}\ns_add_u32 s25, s36, {VF}\ns_mov_b32 s23, 64")
        s.label(f"L_{name}_slow{sl}")
        s.lines.append(";LOOP")
        for m in range(2):
            s(f"buffer_load_dwordx4 {Kf[0][m]}, {vl}, s[4:7], s24 offen offset:{1024*m}")
            s(f"buffer_load_dwordx4 {Vf[0][m]}, {vl}, s[4:7], s25 offen offset:{1024*m}")
        s("s_add_u32 s24, s24, 2048\ns_add_u32 s25, s25, 2048\ns_waitcnt vmcnt(0)")
        s(mfma32(S[0], Kf[0][0], Q[sl][0], 0))
        s(mfma32(S[0], Kf[0][1], Q[sl][1]))
        s("s_nop 7\ns_nop 7")
        s(f"v_max_f32 {mn}, {S[0][0]}, {S[0][1]}")
        for p in range(1, 8):
            s(f"v_max3_f32 {mn}, {mn}, {S[0][2*p]}, {S[0][2*p+1]}")
        s(f"v_mov_b32 {tt}, {mn}\ns_nop 1\nv_permlane32_swap_b32 {mn}, {tt}\nv_max3_f32 {mn}, {mn}, {tt}, {mx}")
        s(f"v_sub_f32 {al}, {mx}, {mn}\nv_exp_f32 {al}, {al}\nv_mov_b32 {mx}, {mn}")
        for i in range(16):
            s(f"v_sub_f32 {S[0][i]}, {S[0][i]}, {mn}")
        for i in range(16):
            s(f"v_exp_f32 {S[0][i]}, {S[0][i]}")
        s(f"v_mul_f32 {L[sl][0]}, {L[sl][0]}, {al}")
        for i in range(16):
            s(f"v_mul_f32 {O[sl][i]}, {O[sl][i]}, {al}")
        for i in range(8):
            s(f"v_cvt_pk_bf16_f32 {P[i]}, {S[0][2*i]}, {S[0][2*i+1]}")
        for i in range(8):
            s(f"v_lshlrev_b32 {tt}, 16, {P[i]}\nv_add_f32 {L[sl][0]}, {L[sl][0]}, {tt}\nv_and_b32 {tt}, 0xffff0000, {P[i]}\nv_add_f32 {L[sl][0]}, {L[sl][0]}, {tt}")
        s(mfma32(O[sl], Vf[0][0], P[0:4]))
        s(mfma32(O[sl], Vf[0][1], P[4:8]))
        s("s_nop 7\ns_nop 7")
        s(f"s_sub_u32 s23, s23, 1\ns_cmp_lg_u32 s23, 0\ns_cbranch_scc1 L_{name}_slow{sl}")
        s.lines.append(";ENDLOOP")
        s(f"v_mov_b32 {tt}, {L[sl][0]}\ns_nop 1\nv_permlane32_swap_b32 {L[sl][0]}, {tt}\nv_add_f32 {L[sl][0]}, {L[sl][0]}, {tt}")
    s(f"s_branch L_{name}_fin")
    return dict(vgpr=va.cur, acc=256, lds=32768 + 2048, block=256, tail=s)
FORCE_SLOW = False

def build(path, phases):
    hdr = open("sequential_preLN__mha_block__glu_gated_reglu__prompt.s.ref").read().split("\n")
    hdr = [l for l in hdr if l.startswith(";") and "@launch" not in l and "Override launch" not in l and "grid=ceil" not in l]
    ks = []
    nerr = 0
    for kidx, (name, fn) in enumerate(phases):
        a = Asm()
        a(f"s_cmp_ge_u32 s2, 256\ns_cbranch_scc1 L_{name}_end")
        info = fn(a, name, kidx)
        errs = check(a.lines, name)
        a.label(f"L_{name}_end")
        a("s_endpgm")
        if "tail" in info:
            errs += check(info["tail"].lines, name + "_tail")
            a.lines += info["tail"].lines
        for e in errs:
            print(e)
        nerr += len(errs)
        ks.append((name, a, info))
    out = list(hdr)
    for (name, a, info) in ks:
        out.append(f"; @launch kernel={name}_kernel grid=(256,1,1) block=({info['block']},1,1) lds={info['lds']}")
    out.append('.amdgcn_target "amdgcn-amd-amdhsa--gfx950"')
    out.append(".text")
    for (name, a, info) in ks:
        out.append(f".globl {name}_kernel\n.p2align 8\n.type {name}_kernel,@function\n{name}_kernel:")
        out.append(a.text())
    out.append('.section .rodata,"a"')
    for (name, a, info) in ks:
        vg = info["vgpr"]
        acc = min(info["acc"], (vg + 3) // 4 * 4)
        if STAMPS: vg = max(vg, 12)
        out.append(f""".p2align 6
.amdhsa_kernel {name}_kernel
  .amdhsa_next_free_vgpr {vg}
  .amdhsa_next_free_sgpr 102
  .amdhsa_accum_offset {acc}
  .amdhsa_group_segment_fixed_size 0
  .amdhsa_kernarg_size 80
  .amdhsa_user_sgpr_count 2
  .amdhsa_user_sgpr_kernarg_segment_ptr 1
  .amdhsa_system_sgpr_workgroup_id_x 1
.end_amdhsa_kernel""")
    open(path, "w").write("\n".join(out) + "\n")
    print(f"wrote {path}: {nerr} checker errors; vgprs:", {n: i['vgpr'] for n, _, i in ks})

if __name__ == "__main__":
    import argparse
    ap = argparse.ArgumentParser()
    ap.add_argument("-o", default="v1.s")
    ap.add_argument("--stamps", action="store_true")
    ap.add_argument("--slow", action="store_true")
    args = ap.parse_args()
    STAMPS = args.stamps
    FORCE_SLOW = args.slow
    phases = [("p1", gemm_p1), ("cs", colsum_k), ("p2", attn_p2),
              ("p3", lambda a, n, k: gemm_n64(a, n, "P3", k)), ("p4", gemm_p4), ("p5", lambda a, n, k: gemm_n64(a, n, "P5", k))]
    build(args.o, phases)
```

```python
import sys, math, re, struct
from asmlib import *

MB = 1 << 20
QF = 0 * MB; KF = 4 * MB; VF = 8 * MB
OF = 12 * MB
AF = 16 * MB
HF = 32 * MB
ST = 36 * MB
CS = 37 * MB
RA = 37 * MB + 65536
CQ = RA + 16384
FLG = 38 * MB
WSZ = 39 * MB
STAMP = 200 * MB
OOB = 0x7ff00000
EPS = 1e-5
SC = "sc1"
STAMPS = False
FORCE_SLOW = False
SPIN_MAX = 1 << 22
def f32(x):
    return "0x%08x" % struct.unpack("<I", struct.pack("<f", x))[0]
def mf32(d, a, b, c=None):
    return f"v_mfma_f32_32x32x16_bf16 {d}, {a}, {b}, {c if c is not None else d}"
def mf16(d, a, b, c=None):
    return f"v_mfma_f32_16x16x32_bf16 {d}, {a}, {b}, {c if c is not None else d}"

S_WG, S_XCD, S_IDX, S_W = "s2", "s3", "s4", "s5"
WS = "s[8:11]"; SA = "s[12:15]"; SB = "s[16:19]"; SCc = "s[20:23]"
P_X, P_WQKV, P_WO, P_BX, P_WG, P_WU, P_WD, P_OUT, P_DBG, P_WS = 64, 66, 68, 70, 72, 74, 76, 78, 80, 82
lane, vl, t16, g4, r32, hh, vst = (R("v", i) for i in range(1, 8))
V0 = 8

class Prog(Asm):
    def it(self, name):
        self.lines.append(f";ITER {name}")
    def endit(self):
        self.lines.append(";ENDITER")
    def resolve(self):
        ops = []
        out = []
        for l in self.lines:
            m = re.search(r"vmcnt\(@([^)]*)\)", l)
            if m:
                tags = m.group(1).split("&")
                n = 10 ** 9
                for tg in tags:
                    idx = [i for i, t in enumerate(ops) if t == tg]
                    assert idx, f"tag {tg} not issued before wait"
                    n = min(n, len(ops) - 1 - idx[-1])
                l = l.replace(m.group(0), f"vmcnt({min(n, 63)})")
            if re.match(r"(buffer_|global_)", l):
                m = re.search(r";@(\S+)", l)
                ops.append(m.group(1) if m else None)
                l = l.split(";@")[0].strip()
            out.append(l)
        self.lines = out
    def fold(self, counter="s24"):
        blocks = []
        cur = None
        for l in self.lines:
            if l.startswith(";ITER"):
                cur = (l.split()[1], [])
            elif l.startswith(";ENDITER"):
                blocks.append(("it", cur[0], cur[1])); cur = None
            elif cur is not None:
                cur[1].append(l)
            else:
                blocks.append(("line", l))
        strip = lambda L: [re.sub(r"vmcnt\(\d+\)", "vmcnt()", x) for x in L]
        nums = lambda L: [int(m) for x in L for m in re.findall(r"vmcnt\((\d+)\)", x)]
        for i in range(len(blocks) - 2, -1, -1):
            b, c = blocks[i], blocks[i + 1]
            if b[0] == "it" and c[0] == "it" and b[1] == c[1] and b[2] != c[2] and strip(b[2]) == strip(c[2]):
                if all(y <= x for x, y in zip(nums(b[2]), nums(c[2]))):
                    blocks[i] = ("it", b[1], list(c[2]))
                else:
                    print("   cannot unify", b[1], nums(b[2]), nums(c[2]))
        out = []
        i = 0; k = 0
        while i < len(blocks):
            b = blocks[i]
            if b[0] == "line":
                out.append(b[1]); i += 1; continue
            j = i
            while j + 1 < len(blocks) and blocks[j + 1][0] == "it" and blocks[j + 1][1] == b[1] and blocks[j + 1][2] == b[2]:
                j += 1
            n = j - i + 1
            if n == 1:
                out += b[2]
                print(f"  iter {b[1]}: single ({len(b[2])} instrs)")
            else:
                k += 1
                print(f"  iter {b[1]}: loop x{n} ({len(b[2])} instrs)")
                out += [f"s_mov_b32 {counter}, {n}", ".p2align 4", f"L_{b[1]}_{k}:", ";LOOP"] + b[2] + \
                       [f"s_sub_u32 {counter}, {counter}, 1", f"s_cmp_lg_u32 {counter}, 0", f"s_cbranch_scc1 L_{b[1]}_{k}", ";ENDLOOP"]
            i = j + 1
        self.lines = out

def srd(a, s, ptr, nbytes):
    a(f"s_mov_b32 s{s}, s{ptr}\ns_mov_b32 s{s+1}, s{ptr+1}\ns_mov_b32 s{s+2}, {nbytes}\ns_mov_b32 s{s+3}, 0x20000")

def stamp(a, k):
    if not STAMPS:
        return
    a(f"s_memrealtime s[90:91]\ns_memtime s[88:89]\ns_waitcnt lgkmcnt(0)")
    a(f"v_writelane_b32 {vst}, s90, {k}\nv_writelane_b32 {vst}, s88, {32+k}")

def spread(spine, fillers, maxper=None, start=0, end=None):
    n = len(spine); end = n if end is None else end
    g = end - start
    cnt = [0] * n
    for i in range(len(fillers)):
        cnt[start + (i * g) // len(fillers)] += 1
    return interleave(spine, fillers, per_gap=cnt)

tails = []
def publish(a, val, tag, tmp):
    a(f"s_lshl_b32 s25, {S_WG}, 7\ns_lshl_b32 s26, {S_W}, 2\ns_add_u32 s25, s25, s26\ns_add_u32 s25, s25, {FLG}")
    a(f"v_mov_b32 {tmp[0]}, {val}\nv_mov_b32 {tmp[1]}, 0")
    a(f"s_waitcnt vmcnt(@{tag})")
    a(f"buffer_store_dword {tmp[0]}, {tmp[1]}, {WS}, s25 offen {SC}")
def poll(a, name, vaddr, vneed, t4):
    a(f"s_mov_b32 s26, {SPIN_MAX}\ns_mov_b32 s25, {FLG}")
    a.label(f"L_{name}_poll")
    a(f"buffer_load_dwordx4 {t4}, {vaddr}, {WS}, s25 offen {SC}\ns_waitcnt vmcnt(0)")
    a(f"v_min_u32 {t4[0]}, {t4[0]}, {t4[1]}\nv_min3_u32 {t4[0]}, {t4[0]}, {t4[2]}, {t4[3]}")
    a(f"v_cmp_lt_u32 vcc, {t4[0]}, {vneed}\ns_sub_u32 s26, s26, 1\ns_cselect_b32 s27, 0, vcc_lo\ns_cselect_b32 s28, 0, vcc_hi")
    a(f"s_or_b32 s27, s27, s28\ns_cbranch_scc0 L_{name}_ok\ns_sleep 1\ns_branch L_{name}_poll")
    a.label(f"L_{name}_ok")

def xsum16_32(a, x, y):
    a(f"v_mov_b32 {y}, {x}\ns_nop 1\nv_permlane16_swap_b32 {x}, {y}\nv_add_f32 {x}, {x}, {y}")
    a(f"v_mov_b32 {y}, {x}\ns_nop 1\nv_permlane32_swap_b32 {x}, {y}\nv_add_f32 {x}, {x}, {y}")

def entry(a):
    a(f"s_load_dwordx16 s[64:79], s[0:1], 0\ns_load_dwordx4 s[80:83], s[0:1], 64")
    a(f"v_lshrrev_b32 {lane}, 6, v0\nv_and_b32 {r32}, 31, v0\nv_readfirstlane_b32 {S_W}, {lane}\nv_and_b32 {lane}, 63, v0")
    a(f"v_lshlrev_b32 {vl}, 4, {lane}\nv_and_b32 {t16}, 15, {lane}\nv_lshrrev_b32 {g4}, 4, {lane}\nv_lshrrev_b32 {hh}, 5, {lane}")
    a(f"s_and_b32 {S_XCD}, {S_WG}, 7\ns_lshr_b32 {S_IDX}, {S_WG}, 3")
    if STAMPS:
        a(f"v_mov_b32 {vst}, 0")

def phase1(a):
    XS, HS, WB, NW = 16384, 12288, 65536, 7
    TAB = WB + NW * HS
    va = Alloc("v", V0, 256); aa = Alloc("a", 0, 256)
    vxd = va(4); vwd = va(3); xa = va(2); wa = va(2)
    t0, t1, t2, t3 = va(), va(), va(), va()
    acc = [[[va(4, 4) for dt in range(2)] for sg in range(3)] for mt in range(4)]
    Xf = [[aa(4, 4) for mt in range(4)] for b in range(2)]
    Wf = [[[aa(4, 4) for dt in range(2)] for sg in range(3)] for b in range(2)]
    sx = va(16, 4)
    sacc = va(16, 4)
    sw = aa(32, 4); ident = aa(4, 4)
    u = va(8, 4)
    cq = va(16, 4); cv = va(2); dbg = va()
    MI, NJ, WM, WN = "s32", "s33", "s34", "s35"
    sX, sW, sDW, sRW, mX, mW = "s36", "s37", "s38", "s39", "s40", "s41"
    stamp(a, 0)
    a(f"s_and_b32 {MI}, {S_XCD}, 1\ns_lshl_b32 {MI}, {MI}, 3\ns_and_b32 s29, {S_IDX}, 7\ns_add_u32 {MI}, {MI}, s29")
    a(f"s_lshr_b32 {NJ}, {S_XCD}, 1\ns_lshl_b32 {NJ}, {NJ}, 2\ns_lshr_b32 s29, {S_IDX}, 3\ns_add_u32 {NJ}, {NJ}, s29")
    a(f"s_and_b32 {WM}, {S_W}, 1\ns_lshr_b32 {WN}, {S_W}, 1")
    a(f"v_lshrrev_b32 {t0}, 3, {lane}\ns_lshl_b32 s29, {MI}, 7\ns_lshl_b32 s28, {S_W}, 5\ns_add_u32 s29, s29, s28")
    a(f"v_add_u32 {t1}, s29, {t0}\nv_lshlrev_b32 {t1}, 11, {t1}")
    a(f"v_and_b32 {t2}, 7, {lane}\nv_xor_b32 {t2}, {t2}, {g4}\nv_xor_b32 {t3}, 4, {t2}")
    a(f"v_lshl_add_u32 {vxd[0]}, {t2}, 4, {t1}\nv_lshl_add_u32 {t3}, {t3}, 4, {t1}")
    a(f"v_add_u32 {vxd[1]}, {15360}, {t3}\nv_add_u32 {vxd[2]}, {2*15360}, {vxd[0]}\nv_add_u32 {vxd[3]}, {3*15360}, {t3}")
    a(f"v_mul_u32_u24 {t0}, 6144, {t0}\nv_and_b32 {t1}, 1, {g4}\nv_lshlrev_b32 {t1}, 1, {t1}\nv_and_b32 {t2}, 7, {lane}\nv_xor_b32 {t1}, {t1}, {t2}")
    a(f"s_lshl_b32 s30, {NJ}, 7\ns_mul_i32 s31, {S_W}, 3")
    for i in range(3):
        a(f"s_add_u32 s28, s31, {i}\ns_lshr_b32 s29, s28, 2\ns_lshl_b32 s29, s29, 11\ns_add_u32 s29, s29, s30\ns_and_b32 s28, s28, 3")
        a(f"s_and_b32 s27, s28, 1\ns_lshl_b32 s27, s27, 2\ns_mul_i32 s28, s28, {8*6144}\ns_add_u32 s28, s28, s29\ns_sub_u32 s28, s28, {1024*i}")
        a(f"v_xor_b32 {t2}, s27, {t1}\nv_lshl_add_u32 {t2}, {t2}, 4, {t0}\nv_add_u32 {vwd[i]}, s28, {t2}")
    a("s_waitcnt lgkmcnt(0)")
    srd(a, 12, P_X, 2048 * 2048)
    srd(a, 16, P_WQKV, 1024 * 6144)
    a(f"s_mov_b32 {sX}, 0\ns_mov_b32 {sW}, 0\ns_mov_b32 {sDW}, 0\ns_mov_b32 {sRW}, 0")
    a(f"s_lshl_b32 {mX}, {S_W}, 12\ns_mul_i32 {mW}, {S_W}, 3072\ns_add_u32 {mW}, {mW}, {WB}")
    def xdma(slab):
        o = [f"s_add_u32 m0, {mX}, {(slab%4)*XS}", "s_nop 0"]
        o += [f"buffer_load_dwordx4 {vxd[i]}, {SA}, {sX} offen offset:{i*1024} lds ;@x{slab}" for i in range(4)]
        o += [f"s_add_u32 {sX}, {sX}, 128"]
        return o
    def wdma(hs):
        o = [f"s_add_u32 m0, {mW}, {sDW}", f"s_add_u32 {sDW}, {sDW}, {HS}"]
        o += [f"buffer_load_dwordx4 {vwd[i]}, {SB}, {sW} offen offset:{i*1024} lds ;@w{hs}" for i in range(3)]
        o += [f"s_cmp_ge_u32 {sDW}, {NW*HS}\ns_cselect_b32 {sDW}, 0, {sDW}", f"s_add_u32 {sW}, {sW}, {32*6144}"]
        return o
    def dmas(sig):
        i, s = divmod(sig, 2)
        o = []
        if s == 1:
            if 0 <= i + 4 < 16: o += xdma(i + 4)
            if 0 <= 2 * i + 7 < 32: o += wdma(2 * i + 7)
        else:
            if 0 <= 2 * i + 6 < 32: o += wdma(2 * i + 6)
        return o
    for sig in range(-7, -3):
        a.ext(dmas(sig))
    srd(a, 8, P_WS, WSZ)
    srd(a, 20, P_DBG, 256)
    a(f"s_lshl_b32 s25, {S_WG}, 7\ns_lshl_b32 s26, {S_W}, 2\ns_add_u32 s25, s25, s26\ns_add_u32 s25, s25, {FLG}\nv_mov_b32 {t0}, 0")
    a(f"buffer_store_dword {t0}, {t0}, {WS}, s25 offen {SC}")
    a(f"s_lshl_b32 s42, {MI}, 7\ns_lshl_b32 s28, {NJ}, 3\ns_add_u32 s42, s42, s28\ns_lshl_b32 s28, {S_W}, 1\ns_add_u32 s42, s42, s28")
    a(f"v_lshlrev_b32 {t0}, 11, {hh}\nv_lshl_add_u32 {t0}, {r32}, 4, {t0}\ns_lshl_b32 s28, s42, 11")
    for i in range(4):
        a(f"buffer_load_dwordx4 {sx[4*i:4*i+4]}, {t0}, {SA}, s28 offen offset:{512*i} ;@sx")
    a(f"v_lshrrev_b32 {t0}, 2, {r32}\nv_mul_u32_u24 {t0}, 6144, {t0}\nv_and_b32 {t1}, 3, {lane}\nv_lshl_add_u32 {t0}, {t1}, 5, {t0}\nv_lshl_add_u32 {t0}, {hh}, 4, {t0}")
    a(f"s_and_b32 s28, {MI}, 3\ns_lshl_b32 s28, s28, 2\ns_add_u32 s28, s28, {S_W}\ns_mul_i32 s28, s28, {64*6144}")
    a(f"s_lshr_b32 s43, {MI}, 2\ns_lshl_b32 s29, s43, 11\ns_add_u32 s28, s28, s29\ns_add_u32 s28, s28, s30\ns_cmp_eq_u32 s43, 3\ns_cselect_b32 s28, {OOB}, s28")
    for i in range(8):
        a(f"buffer_load_dwordx4 {sw[4*i:4*i+4]}, {t0}, {SB}, s28 offen ;@sw\ns_add_u32 s28, s28, {8*6144}")
    for sig in range(-3, 0):
        a.ext(dmas(sig))
    a(f"v_lshrrev_b32 {t0}, 1, {t16}\nv_xor_b32 {t0}, {t0}, {g4}\ns_lshl_b32 s28, {WM}, 13\nv_lshlrev_b32 {t1}, 7, {t16}\nv_add_u32 {t1}, s28, {t1}")
    a(f"v_lshl_add_u32 {xa[0]}, {t0}, 4, {t1}\nv_xor_b32 {xa[1]}, 64, {xa[0]}")
    a(f"v_lshrrev_b32 {t0}, 2, {lane}\nv_and_b32 {t0}, 3, {t0}\nv_lshl_add_u32 {t1}, {g4}, 3, {t0}\nv_lshlrev_b32 {t1}, 7, {t1}")
    a(f"v_lshrrev_b32 {t0}, 1, {t0}\nv_and_b32 {t2}, 1, {g4}\nv_lshl_add_u32 {t0}, {t2}, 1, {t0}\ns_lshl_b32 s28, {WN}, 1\nv_xor_b32 {t0}, s28, {t0}")
    a(f"v_lshl_add_u32 {t1}, {t0}, 5, {t1}\nv_and_b32 {t0}, 3, {lane}\nv_lshl_add_u32 {t1}, {t0}, 3, {t1}\nv_add_u32 {wa[0]}, {WB}, {t1}\nv_xor_b32 {wa[1]}, 32, {wa[0]}")
    a(f"v_lshrrev_b32 {t0}, 3, {r32}\nv_and_b32 {t1}, 7, {r32}\nv_and_b32 {t2}, 1, {t1}\nv_lshlrev_b32 {t2}, 4, {t2}\nv_mov_b32 {t3}, 0x3f80\nv_lshlrev_b32 {t3}, {t2}, {t3}")
    a(f"v_cmp_eq_u32 vcc, {t0}, {hh}\nv_lshrrev_b32 {t1}, 1, {t1}\ns_nop 0\nv_cndmask_b32 {t3}, 0, {t3}, vcc")
    for r in range(4):
        a(f"v_cmp_eq_u32 vcc, {r}, {t1}\ns_nop 1\nv_cndmask_b32 {t2}, 0, {t3}, vcc\nv_accvgpr_write_b32 {ident[r]}, {t2}")
    def xreads(sig):
        i, s = divmod(sig, 2)
        return [f"ds_read_b128 {Xf[sig%2][mt]}, {xa[s]} offset:{(i%4)*XS + mt*2048}" for mt in range(4)]
    def wreads(sig):
        return [f"ds_read_b64_tr_b16 {Wf[sig%2][sg][dt][2*j:2*j+2]}, {wa[dt]} offset:{sg*4096 + 512*j}" for sg in range(3) for dt in range(2) for j in range(2)]
    def wbump():
        return [f"s_add_u32 s44, {sRW}, {HS}", f"s_cmp_ge_u32 s44, {NW*HS}\ns_cselect_b32 s44, 0, s44", f"s_sub_u32 s45, s44, {sRW}",
                f"s_mov_b32 {sRW}, s44", f"v_add_u32 {wa[0]}, s45, {wa[0]}", f"v_add_u32 {wa[1]}, s45, {wa[1]}"]
    stamp(a, 1)
    a("s_waitcnt vmcnt(@w1&x0)\ns_barrier")
    a.ext(xreads(0) + wreads(0) + wbump())
    side = {k: [] for k in range(32)}
    ss, sq, lo, hi = u[0], u[1], u[2], u[3]
    q = ["s_waitcnt vmcnt(@sw)", f"v_mov_b32 {ss}, 0", f"v_mov_b32 {sq}, 0"]
    q += [mf32(sacc, sw[0:4], ident, 0)] + [mf32(sacc, sw[4*i:4*i+4], ident) for i in range(1, 8)]
    for r in range(16):
        q += [f"v_lshlrev_b32 {lo}, 16, {sx[r]}", f"v_and_b32 {hi}, 0xffff0000, {sx[r]}", f"v_add_f32 {ss}, {ss}, {lo}", f"v_fmac_f32 {sq}, {lo}, {lo}",
              f"v_add_f32 {ss}, {ss}, {hi}", f"v_fmac_f32 {sq}, {hi}, {hi}"]
    for cb in range(4):
        q += [f"v_add_f32 {sacc[cb]}, {sacc[cb]}, {sacc[4+cb]}", f"v_add_f32 {sacc[8+cb]}, {sacc[8+cb]}, {sacc[12+cb]}"]
    for cb in range(4):
        q += [f"v_add_f32 {sacc[cb]}, {sacc[cb]}, {sacc[8+cb]}"]
    for cb in range(4):
        q += [f"v_mov_b32 {sacc[4+cb]}, {sacc[cb]}"]
    dpp = lambda x, m: f"v_add_f32_dpp {x}, {x}, {x} {m} row_mask:0xf bank_mask:0xf"
    q += [dpp(ss, "quad_perm:[1,0,3,2]"), dpp(sq, "quad_perm:[1,0,3,2]")]
    q += [f"v_permlane32_swap_b32 {sacc[cb]}, {sacc[4+cb]}" for cb in range(2)]
    q += [dpp(ss, "quad_perm:[2,3,0,1]"), dpp(sq, "quad_perm:[2,3,0,1]")]
    q += [f"v_permlane32_swap_b32 {sacc[cb]}, {sacc[4+cb]}" for cb in range(2, 4)]
    q += [dpp(ss, "row_half_mirror"), dpp(sq, "row_half_mirror")]
    q += [f"v_add_f32 {sacc[cb]}, {sacc[cb]}, {sacc[4+cb]}" for cb in range(2)]
    q += [dpp(ss, "row_mirror"), dpp(sq, "row_mirror")]
    q += [f"v_add_f32 {sacc[cb]}, {sacc[cb]}, {sacc[4+cb]}" for cb in range(2, 4)]
    q += [f"v_mov_b32 {lo}, {ss}", f"v_mov_b32 {hi}, {sq}", f"s_lshl_b32 s28, {S_W}, 8", f"s_add_u32 s28, s28, {TAB}", f"v_lshl_add_u32 {t0}, {t16}, 4, s28", f"v_and_b32 {t1}, 16, {lane}", f"v_lshl_add_u32 {t0}, {t1}, 6, {t0}"]
    q += [f"v_permlane16_swap_b32 {ss}, {lo}", f"v_permlane16_swap_b32 {sq}, {hi}",
          f"ds_write_b128 {t0}, {sacc[0:4]}"]
    q += [f"v_add_f32 {ss}, {ss}, {lo}", f"v_add_f32 {sq}, {sq}, {hi}", f"v_mul_f32 {ss}, {f32(-1/1024)}, {ss}", f"v_mul_f32 {sq}, {f32(1/1024)}, {sq}",
          f"v_fma_f32 {sq}, -{ss}, {ss}, {sq}", f"v_max_f32 {sq}, 0, {sq}", f"v_add_f32 {sq}, {f32(EPS)}, {sq}", f"v_rsq_f32 {sq}, {sq}",
          f"v_lshlrev_b32 {t0}, 2, {hh}", f"s_lshl_b32 s28, s42, 2", f"s_add_u32 s28, s28, {RA}",
          f"buffer_store_dword {sq}, {t0}, {WS}, s28 offen {SC}", f"s_add_u32 s28, s28, 8192", f"buffer_store_dword {ss}, {t0}, {WS}, s28 offen {SC}"]
    per = (len(q) + 5) // 6
    for k in range(6):
        side[3 + k] += q[k * per:(k + 1) * per]
    q = [f"v_lshlrev_b32 {t0}, 4, {t16}", f"v_lshl_add_u32 {t0}, {g4}, 2, {t0}", f"v_add_u32 {t0}, {TAB}, {t0}"]
    q += [f"ds_read_b32 {u[4+k]}, {t0} offset:{256*k}" for k in range(4)]
    q += [f"s_and_b32 s28, {MI}, 3", f"s_mul_i32 s28, s28, {3072*4}", "s_lshl_b32 s29, s43, 12", "s_add_u32 s28, s28, s29", f"s_lshl_b32 s29, {NJ}, 8",
          "s_add_u32 s28, s28, s29", f"s_add_u32 s28, s28, {CQ}", f"s_lshl_b32 s29, {S_W}, 2", "s_or_b32 s29, s29, s43", f"s_cmp_lt_u32 s29, 3\ns_cselect_b32 s28, s28, {OOB}",
          f"v_lshlrev_b32 {t0}, 2, {lane}", "s_waitcnt lgkmcnt(0)",
          f"v_add_f32 {u[4]}, {u[4]}, {u[5]}", f"v_add_f32 {u[6]}, {u[6]}, {u[7]}", f"v_add_f32 {u[4]}, {u[4]}, {u[6]}",
          f"buffer_store_dword {u[4]}, {t0}, {WS}, s28 offen {SC} ;@sdone"]
    side[9] += q
    side[11] += [f"v_mov_b32 {t0}, 1", f"v_mov_b32 {t1}, {S_WG}", f"s_cmp_eq_u32 {S_W}, 0\ns_cselect_b32 s28, 0, {OOB}",
                f"buffer_store_byte {t0}, {t1}, {SCc}, s28 offen {SC}"]
    side[24] += [f"v_lshlrev_b32 {t0}, 2, {lane}", f"buffer_load_dword {dbg}, {t0}, {SCc}, 0 offen {SC} ;@dbg"]
    la, lb = u[0:4], u[4:8]
    q = ["s_waitcnt vmcnt(@dbg)", f"v_cmp_ne_u32 vcc, 0x01010101, {dbg}\ns_lshl_b32 s28, {MI}, 9\ns_lshl_b32 s29, {WM}, 8\ns_cmp_lg_u64 vcc, 0\n"
         "s_cbranch_scc1 L_p1_dbgspin\nL_p1_dbgok:", "s_add_u32 s28, s28, s29", f"s_add_u32 s28, s28, {RA}", "s_add_u32 s29, s28, 8192",
         f"v_lshlrev_b32 {t0}, 2, {t16}", f"v_lshlrev_b32 {t1}, 4, {g4}"]
    for mt in range(4):
        q += [f"buffer_load_dword {la[mt]}, {t0}, {WS}, s28 offen offset:{64*mt} {SC}", f"buffer_load_dword {lb[mt]}, {t0}, {WS}, s29 offen offset:{64*mt} {SC}"]
    side[26] += q
    q = []
    for mt in range(4):
        q += [f"buffer_load_dwordx4 {sx[4*mt:4*mt+4]}, {t1}, {WS}, s28 offen offset:{64*mt} {SC}", f"buffer_load_dwordx4 {sacc[4*mt:4*mt+4]}, {t1}, {WS}, s29 offen offset:{64*mt} {SC}"]
    q += [f"s_lshl_b32 s28, {NJ}, 8", f"s_lshl_b32 s29, {WN}, 7", "s_add_u32 s28, s28, s29", f"s_add_u32 s28, s28, {CQ}", "s_add_u32 s29, s28, 4096",
          f"v_and_b32 {t2}, 3, {t16}", f"v_mul_u32_u24 {t2}, {3072*4}, {t2}", f"v_add_u32 {t1}, {t1}, {t2}", f"v_mul_u32_u24 {t2}, {3072*4}, {g4}", f"v_add_u32 {t0}, {t0}, {t2}"]
    q += [f"buffer_load_dwordx4 {cq[0:4]}, {t1}, {WS}, s28 offen {SC}", f"buffer_load_dwordx4 {cq[4:8]}, {t1}, {WS}, s28 offen offset:64 {SC}",
          f"buffer_load_dwordx4 {cq[8:12]}, {t1}, {WS}, s29 offen {SC}", f"buffer_load_dwordx4 {cq[12:16]}, {t1}, {WS}, s29 offen offset:64 {SC}",
          "s_add_u32 s29, s29, 4096",
          f"buffer_load_dword {cv[0]}, {t0}, {WS}, s29 offen {SC}", f"buffer_load_dword {cv[1]}, {t0}, {WS}, s29 offen offset:64 {SC} ;@cons"]
    side[27] += q
    q = ["s_waitcnt vmcnt(@cons)"]
    q += [dpp(cq[k], "quad_perm:[1,0,3,2]") for k in range(16)] + [dpp(cq[k], "quad_perm:[2,3,0,1]") for k in range(16)]
    side[30] += q
    q = [f"v_mov_b32 {t0}, {cv[0]}", f"v_mov_b32 {t1}, {cv[1]}", "s_nop 0", f"v_permlane16_swap_b32 {cv[0]}, {t0}", f"v_permlane16_swap_b32 {cv[1]}, {t1}",
         f"v_add_f32 {cv[0]}, {cv[0]}, {t0}", f"v_add_f32 {cv[1]}, {cv[1]}, {t1}", f"v_mov_b32 {t0}, {cv[0]}", f"v_mov_b32 {t1}, {cv[1]}", "s_nop 0",
         f"v_permlane32_swap_b32 {cv[0]}, {t0}", f"v_permlane32_swap_b32 {cv[1]}, {t1}", f"v_add_f32 {cv[0]}, {cv[0]}, {t0}", f"v_add_f32 {cv[1]}, {cv[1]}, {t1}"]
    side[31] += q
    t = Asm()
    t.label("L_p1_dbgspin")
    t(f"s_mov_b32 s26, {SPIN_MAX}\nv_lshlrev_b32 {t0}, 2, {lane}")
    t.label("L_p1_dbgspin2")
    t(f"s_sleep 2\nbuffer_load_dword {dbg}, {t0}, {SCc}, 0 offen {SC}\ns_waitcnt vmcnt(0)\nv_cmp_ne_u32 vcc, 0x01010101, {dbg}")
    t("s_sub_u32 s26, s26, 1\ns_cbranch_scc1 L_p1_dbgok\ns_cmp_lg_u64 vcc, 0\ns_cbranch_scc1 L_p1_dbgspin2\ns_branch L_p1_dbgok")
    tails.append(t)
    for sig in range(32):
        i, s = divmod(sig, 2)
        if sig % 8 == 0:
            a.it("p1")
        cur = sig % 2
        if s == 1 and i < 15:
            extra = "&sdone" if sig == 11 else ""
            a(f"s_waitcnt vmcnt(@w{2*i+3}&x{i+1}{extra}) lgkmcnt(0)\ns_barrier")
        else:
            a("s_waitcnt lgkmcnt(0)")
        m = []
        for sg in range(3):
            for dt in range(2):
                for mt in range(4):
                    c = 0 if sig == 0 else None
                    if sg < 2:
                        m.append(mf16(acc[mt][sg][dt], Wf[cur][sg][dt], Xf[cur][mt], c))
                    else:
                        m.append(mf16(acc[mt][sg][dt], Xf[cur][mt], Wf[cur][sg][dt], c))
        if sig < 31:
            fl = xreads(sig + 1) + wreads(sig + 1) + wbump()
        else:
            fl = []
        rest = dmas(sig) + side[sig]
        if fl:
            cnt = [1] * 16 + [0] * 8
            extra = fl[16:] + rest
            if len(extra) <= 16:
                for k in range(len(extra)): cnt[16 + (k * 8) // len(extra)] += 1
                a.ext(interleave(m, fl[:16] + extra, per_gap=cnt))
            else:
                seq = []; rd = fl[:16]; ex = rest; tailb = fl[16:]
                per = (len(ex) + 23) // 24
                cnt = []
                for gidx in range(24):
                    c = 0
                    if gidx < 16:
                        seq.append(rd[gidx]); c += 1
                    if gidx == 16:
                        seq += tailb; c += len(tailb)
                    take = ex[:per]; ex = ex[per:]
                    seq += take; c += len(take)
                    cnt.append(c)
                a.ext(interleave(m, seq, per_gap=cnt))
        else:
            a.ext(spread(m, rest) if rest else m)
        if sig % 8 == 7:
            a.endit()
    stamp(a, 2)
    CQS = (32 ** -0.5) * math.log2(math.e)
    a(f"s_lshl_b32 s28, {NJ}, 1\ns_add_u32 s28, s28, {WN}\ns_lshl_b32 s28, s28, 17\ns_lshl_b32 s29, {MI}, 13\ns_add_u32 s28, s28, s29\ns_lshl_b32 s29, {WM}, 12\ns_add_u32 s46, s28, s29")
    a(f"v_lshlrev_b32 {t0}, 9, {g4}\nv_lshl_add_u32 {t0}, {t16}, 4, {t0}")
    a(f"v_and_b32 {t1}, 1, {g4}\nv_lshlrev_b32 {t1}, 9, {t1}\nv_lshl_add_u32 {t1}, {hh}, 8, {t1}\nv_lshl_add_u32 {t1}, {t16}, 4, {t1}")
    laq = R("v", vxd.b, 4)
    for mt in range(4):
        a(f"v_mul_f32 {laq[mt]}, {f32(CQS)}, {la[mt]}")
    def sel(r):
        base = r.b & ~1
        return R("v", base, 2), r.b & 1
    for sg in range(2):
        a(f"s_add_u32 s28, s46, {sg*4*MB}")
        for mt in range(4):
            bp, bo = sel(lb[mt]); ap, ao = sel(laq[mt] if sg == 0 else la[mt])
            A = [acc[mt][sg][0], acc[mt][sg][1]]
            for dt in range(2):
                for p in range(2):
                    a(f"v_pk_fma_f32 {A[dt][2*p:2*p+2]}, {cq[8*sg+4*dt+2*p:8*sg+4*dt+2*p+2]}, {bp}, {A[dt][2*p:2*p+2]} op_sel:[0,{bo},0] op_sel_hi:[1,{bo},1]")
            for dt in range(2):
                for p in range(2):
                    a(f"v_pk_mul_f32 {A[dt][2*p:2*p+2]}, {A[dt][2*p:2*p+2]}, {ap} op_sel:[0,{ao}] op_sel_hi:[1,{ao}]")
            a(f"v_cvt_pk_bf16_f32 {A[0][0]}, {A[0][0]}, {A[0][1]}\nv_cvt_pk_bf16_f32 {A[0][1]}, {A[0][2]}, {A[0][3]}")
            a(f"v_cvt_pk_bf16_f32 {A[0][2]}, {A[1][0]}, {A[1][1]}\nv_cvt_pk_bf16_f32 {A[0][3]}, {A[1][2]}, {A[1][3]}")
            a(f"buffer_store_dwordx4 {A[0]}, {t0}, {WS}, s28 offen offset:{(mt>>1)*2048 + (mt&1)*256} {SC}")
    a(f"s_add_u32 s28, s46, {8*MB}")
    for mt in range(4):
        A = [acc[mt][2][0], acc[mt][2][1]]
        for dt in range(2):
            for p in range(2):
                a(f"v_pk_fma_f32 {A[dt][2*p:2*p+2]}, {sacc[4*mt+2*p:4*mt+2*p+2]}, {cv}, {A[dt][2*p:2*p+2]} op_sel:[0,{dt},0] op_sel_hi:[1,{dt},1]")
        for dt in range(2):
            for p in range(2):
                a(f"v_pk_mul_f32 {A[dt][2*p:2*p+2]}, {A[dt][2*p:2*p+2]}, {sx[4*mt+2*p:4*mt+2*p+2]}")
        a(f"v_cvt_pk_bf16_f32 {A[0][0]}, {A[0][0]}, {A[0][1]}\nv_cvt_pk_bf16_f32 {A[0][1]}, {A[0][2]}, {A[0][3]}")
        a(f"v_cvt_pk_bf16_f32 {A[0][2]}, {A[1][0]}, {A[1][1]}\nv_cvt_pk_bf16_f32 {A[0][3]}, {A[1][2]}, {A[1][3]}\ns_nop 1")
        a(f"v_permlane32_swap_b32 {A[0][0]}, {A[0][2]}\nv_permlane32_swap_b32 {A[0][1]}, {A[0][3]}")
        a(f"buffer_store_dwordx4 {A[0]}, {t1}, {WS}, s28 offen offset:{mt*1024} {SC} ;@p1st")

EXO = 131072
EXL = 122880
def w64_dma_voff(a, vw, t0, t1, nj):
    a(f"v_lshrrev_b32 {t0}, 3, {lane}\nv_and_b32 {t1}, 6, {t0}\ns_lshl_b32 s29, {S_W}, 4\nv_add_u32 {t0}, s29, {t0}\nv_lshlrev_b32 {t0}, 11, {t0}")
    a(f"v_and_b32 {vw[0]}, 7, {lane}\nv_xor_b32 {t1}, {t1}, {vw[0]}\nv_lshl_add_u32 {t0}, {t1}, 4, {t0}")
    a(f"s_lshl_b32 s29, {nj}, 7\nv_add_u32 {vw[0]}, s29, {t0}\nv_add_u32 {vw[1]}, {8*2048-1024}, {vw[0]}")
def mn35(a, MI, NJ):
    a(f"s_and_b32 {MI}, {S_XCD}, 3\ns_lshl_b32 {MI}, {MI}, 2\ns_and_b32 s29, {S_IDX}, 3\ns_add_u32 {MI}, {MI}, s29")
    a(f"s_lshr_b32 {NJ}, {S_XCD}, 2\ns_lshl_b32 {NJ}, {NJ}, 3\ns_lshr_b32 s29, {S_IDX}, 2\ns_add_u32 {NJ}, {NJ}, s29")
MI3, NJ3 = "s50", "s51"
VW3 = R("v", 250, 2)

def phase2(a):
    va = Alloc("v", V0, 250); aa = Alloc("a", 0, 256)
    vl2 = va(); vcs = va()
    t0, t1, t2, t3 = va(), va(), va(), va()
    As = va(4, 4)
    O = [va(16, 4) for sl in range(4)]
    L = [va(4, 4) for sl in range(4)]
    S = [va(16, 4) for b in range(2)]
    P = va(8, 4)
    cacc = va(16, 4)
    Q = [[aa(4, 4) for m in range(2)] for sl in range(4)]
    Kf = [[aa(4, 4) for m in range(2)] for b in range(4)]
    Vf = [[aa(4, 4) for m in range(2)] for b in range(4)]
    cw = [aa(4, 4) for k in range(2)]
    ident = R("a", 112, 4)
    HD, QB, QG, KH = "s32", "s33", "s34", "s35"
    sK, sV, sKe, sVe, sHB, sQT, sSX, sWo, sMo, sCS = "s36", "s37", "s38", "s39", "s40", "s41", "s42", "s43", "s44", "s45"
    assert aa.cur <= 112
    a(f"s_and_b32 {HD}, {S_IDX}, 3\ns_lshl_b32 s28, {S_XCD}, 2\ns_add_u32 {HD}, {HD}, s28\ns_lshr_b32 {QB}, {S_IDX}, 2")
    a(f"s_and_b32 {QG}, {S_W}, 1\ns_lshr_b32 {KH}, {S_W}, 1")
    a(f"s_lshl_b32 {sHB}, {HD}, 17\ns_lshl_b32 {sQT}, {QB}, 3\ns_lshl_b32 s28, {QG}, 2\ns_add_u32 {sQT}, {sQT}, s28")
    a(f"s_lshl_b32 s28, {KH}, 16\ns_add_u32 s28, s28, {sHB}\ns_add_u32 {sK}, s28, {KF}\ns_add_u32 {sV}, s28, {VF}")
    a(f"s_add_u32 {sKe}, {sK}, 65536\ns_add_u32 {sVe}, {sV}, 65536\ns_xor_b32 {sSX}, {KH}, 1\ns_lshl_b32 {sSX}, {sSX}, 1")
    pa, pn = S[0][0], S[0][1]
    a(f"s_lshr_b32 s28, {HD}, 1\ns_and_b32 s29, s28, 3\ns_lshl_b32 s29, s29, 6\ns_lshr_b32 s28, s28, 2\ns_lshl_b32 s28, s28, 1\ns_add_u32 s28, s28, s29")
    a(f"v_and_b32 {pa}, 7, {t16}\nv_lshlrev_b32 {pa}, 3, {pa}\nv_lshrrev_b32 {pn}, 3, {t16}\nv_add3_u32 {pa}, {pa}, {pn}, s28\nv_lshlrev_b32 {pa}, 7, {pa}\nv_mov_b32 {pn}, 2")
    publish(a, 2, "p1st", S[1][0:2])
    stamp(a, 3)
    a(f"v_add_u32 {vl2}, 4096, {vl}")
    a(f"v_lshrrev_b32 {t1}, 2, {lane}\nv_xor_b32 {t0}, {g4}, {t1}\nv_and_b32 {t0}, 1, {t0}")
    a(f"v_cmp_eq_u32 vcc, 0, {t0}\nv_mov_b32 {t1}, 0x3f803f80\ns_nop 0\nv_cndmask_b32 {As[0]}, 0, {t1}, vcc")
    a(f"v_mov_b32 {As[1]}, {As[0]}\nv_mov_b32 {As[2]}, {As[0]}\nv_mov_b32 {As[3]}, {As[0]}")
    for sl in range(4):
        for r in range(16):
            a(f"v_mov_b32 {O[sl][r]}, 0")
        for r in range(4):
            a(f"v_mov_b32 {L[sl][r]}, 0")
    for r in range(8):
        a(f"v_mov_b32 {P[r]}, 0")
    for r in range(4):
        a(f"v_accvgpr_write_b32 {Vf[3][1][r]}, 0\nv_accvgpr_write_b32 {cw[0][r]}, 0\nv_accvgpr_write_b32 {cw[1][r]}, 0")
    for r in range(16):
        a(f"v_mov_b32 {cacc[r]}, 0")
    mn35(a, MI3, NJ3)
    w64_dma_voff(a, VW3, t0, t1, NJ3)
    srd(a, 12, P_WO, 1024 * 2048)
    a(f"s_lshr_b32 s28, {S_WG}, 1\ns_cmp_ge_u32 s28, 56\ns_cselect_b32 s16, s{P_WU}, s{P_WG}\ns_cselect_b32 s17, s{P_WU+1}, s{P_WG+1}\ns_cselect_b32 s29, 56, 0")
    a(f"s_mov_b32 s18, {1024*7168}\ns_mov_b32 s19, 0x20000\ns_sub_u32 s28, s28, s29\ns_lshl_b32 s28, s28, 7")
    a(f"s_and_b32 s29, {S_WG}, 1\ns_lshl_b32 s29, s29, 2\ns_add_u32 s29, s29, {S_W}\ns_mul_i32 s29, s29, {128*7168}\ns_add_u32 {sCS}, s28, s29")
    a(f"s_cmp_ge_u32 {S_WG}, 224\ns_cselect_b32 {sCS}, {OOB}, {sCS}")
    a(f"v_lshrrev_b32 {t0}, 2, {r32}\nv_mul_u32_u24 {t0}, 7168, {t0}\nv_and_b32 {t1}, 3, {lane}\nv_lshl_add_u32 {t0}, {t1}, 5, {t0}\nv_lshl_add_u32 {vcs}, {hh}, 4, {t0}")
    a(f"s_mov_b32 {sWo}, 0\ns_lshl_b32 {sMo}, {S_W}, 11\ns_lshl_b32 s48, {S_W}, 13\ns_add_u32 s48, s48, {EXO}")
    srd(a, 20, P_WD, 3584 * 2048)
    a(f"s_lshl_b32 s28, {S_WG}, 2\ns_add_u32 s28, s28, {S_W}\ns_mul_i32 s47, s28, {56*128}\nv_min_u32 {t2}, 55, {lane}\nv_lshlrev_b32 {t2}, 7, {t2}")
    a("s_barrier")
    poll(a, "p2", pa, pn, S[1][0:4])
    stamp(a, 4)
    def kload(kt):
        k = kt % 4
        return [f"buffer_load_dwordx4 {Kf[k][m]}, {vl if k < 2 else vl2}, {WS}, {sK} offen offset:{(k%2)*2048 + 1024*m} {SC} ;@k{kt}" for m in range(2)]
    def vload(kt):
        k = kt % 4
        return [f"buffer_load_dwordx4 {Vf[k][m]}, {vl if k < 2 else vl2}, {WS}, {sV} offen offset:{(k%2)*2048 + 1024*m} {SC} ;@v{kt}" for m in range(2)]
    kbump = [f"s_add_u32 {sK}, {sK}, 8192", f"s_cmp_ge_u32 {sK}, {sKe}\ns_cselect_b32 {sK}, {OOB}, {sK}"]
    vbump = [f"s_add_u32 {sV}, {sV}, 8192", f"s_cmp_ge_u32 {sV}, {sVe}\ns_cselect_b32 {sV}, {OOB}, {sV}"]
    a.ext(kload(0))
    for sl in range(4):
        a(f"s_xor_b32 s29, {sSX}, {sl}\ns_add_u32 s29, s29, {sQT}\ns_lshl_b32 s29, s29, 11\ns_add_u32 s29, s29, {sHB}")
        for m in range(2):
            a(f"buffer_load_dwordx4 {Q[sl][m]}, {vl}, {WS}, s29 offen offset:{1024*m} {SC} ;@q{sl}")
    a.ext(vload(0) + kload(1) + vload(1) + kload(2) + vload(2) + kload(3) + kbump)
    a(f"buffer_load_dword {t3}, {t2}, {SCc}, s47 offen")
    a("s_waitcnt vmcnt(@q0)")
    a(mf32(S[0], Kf[0][0], Q[0][0], 0))
    a(mf32(S[0], Kf[0][1], Q[0][1]))
    a("s_waitcnt vmcnt(@q3)\ns_nop 7\ns_nop 3")
    def unit(u):
        kt, sl = divmod(u, 4)
        b = u % 2
        kn, sn = divmod(u + 1, 4)
        kp, sp = divmod(u - 1, 4)
        Sb = S[b]
        x = {}
        k4 = kt % 4
        if sl == 3:
            ld = kload(kt + 4); x[0] = [ld[0]]; x[8] = [ld[1]]
            if k4 == 3: x[12] = kbump
        if sl == 1:
            ld = vload(kt + 3); x[0] = [ld[0]]; x[8] = [ld[1]]
            if k4 == 0: x[12] = vbump
        if sl == 2:
            if k4 in (0, 2):
                x[0] = [f"s_mov_b32 m0, {sMo}", f"s_add_u32 {sMo}, {sMo}, 8192"]
                x[4] = [f"buffer_load_dwordx4 {VW3[0]}, {SA}, {sWo} offen lds ;@wo"]
                x[8] = [f"buffer_load_dwordx4 {VW3[1]}, {SA}, {sWo} offen offset:1024 lds ;@wo"]
                x[12] = [f"s_add_u32 {sWo}, {sWo}, {64*2048}"] + ([f"s_cmp_ge_u32 {sWo}, {15*64*2048}\ns_cselect_b32 {sWo}, {OOB}, {sWo}\ns_cselect_b32 {sMo}, s48, {sMo}"] if k4 == 0 else [])
            else:
                c = cw[k4 // 2]
                x[0] = [mf32(cacc, c, ident)]
                x[8] = [f"buffer_load_dwordx4 {c}, {vcs}, {SB}, {sCS} offen ;@cw{k4//2}", f"s_add_u32 {sCS}, {sCS}, {8*7168}"]
        e = [[f"v_exp_f32 {Sb[i]}, {Sb[i]}"] + x.get(i, []) for i in range(16)]
        c = [[f"v_cvt_pk_bf16_f32 {P[i]}, {Sb[2*i]}, {Sb[2*i+1]}"] for i in range(8)]
        seq = []
        if sl == 3:
            seq.append([f"s_waitcnt vmcnt(@k{kn}&v{kn})"])
        seq += [[mf32(S[1 - b], Kf[kn % 4][0], Q[sn][0], 0)], e[0], e[1], e[2], e[3],
                [mf32(S[1 - b], Kf[kn % 4][1], Q[sn][1])], e[4], e[5], e[6], c[0], c[1],
                [mf32(O[sp], Vf[kp % 4][1], P[4:8])], e[7], e[8], e[9], c[2], c[3],
                [mf16(L[sp], As, P[4:8])], e[10], e[11],
                [mf32(O[sl], Vf[kt % 4][0], P[0:4])], e[12], e[13], e[14], c[4], c[5],
                [mf16(L[sl], As, P[0:4])], e[15], c[6], c[7]]
        return [y for z in seq for y in z]
    a("s_waitcnt vmcnt(@v0)")
    for it in range(8):
        a.it("p2")
        for u in range(16 * it, 16 * it + 16):
            a.ext(unit(u))
        a.endit()
    a("s_waitcnt vmcnt(0)")
    a(mf32(O[3], Vf[3][1], P[4:8]))
    a(mf16(L[3], As, P[4:8]))
    a(mf32(cacc, cw[0], ident))
    a(mf32(cacc, cw[1], ident))
    stamp(a, 5)
    a(f"s_lshl_b32 s28, {S_W}, 13\ns_add_u32 s28, s28, {EXO}\nv_add_u32 {t0}, s28, {vl}\ns_xor_b32 s46, s28, 0x4000\nv_add_u32 {t1}, s46, {vl}")
    a(f"s_lshl_b32 s28, {S_W}, 11\ns_add_u32 s28, s28, {EXL}\nv_lshlrev_b32 {t3}, 2, {lane}\nv_add_u32 {t3}, s28, {t3}\nv_xor_b32 {t2}, 0x1000, {t3}")
    for sl in range(2):
        for j in range(4):
            a(f"ds_write_b128 {t0}, {O[sl][4*j:4*j+4]} offset:{sl*4096 + j*1024}")
        a(f"ds_write_b32 {t2}, {L[sl][0]} offset:{sl*256}")
    for cb in range(4):
        a(f"v_add_f32 {cacc[cb]}, {cacc[cb]}, {cacc[4+cb]}\nv_add_f32 {cacc[8+cb]}, {cacc[8+cb]}, {cacc[12+cb]}")
    for cb in range(4):
        a(f"v_add_f32 {cacc[cb]}, {cacc[cb]}, {cacc[8+cb]}")
    for cb in range(4):
        a(f"v_mov_b32 {cacc[4+cb]}, {cacc[cb]}")
    a(f"s_lshl_b32 s28, {S_W}, 8\ns_add_u32 s28, s28, {EXL + 512}\nv_lshl_add_u32 {t0}, {t16}, 4, s28")
    for cb in range(4):
        a(f"v_permlane32_swap_b32 {cacc[cb]}, {cacc[4+cb]}")
    for cb in range(4):
        a(f"v_add_f32 {cacc[cb]}, {cacc[cb]}, {cacc[4+cb]}")
    a(f"s_mov_b64 exec, 0xffff\nds_write_b128 {t0}, {cacc[0:4]}\ns_mov_b64 exec, -1")
    a("s_waitcnt lgkmcnt(0)\ns_barrier")
    for sl in range(2):
        for j in range(4):
            a(f"ds_read_b128 {S[sl][4*j:4*j+4]}, {t1} offset:{sl*4096 + j*1024}")
        a(f"ds_read_b32 {L[sl][1]}, {t3} offset:{sl*256}")
    a(f"v_lshlrev_b32 {t0}, 4, {t16}\nv_lshl_add_u32 {t0}, {g4}, 2, {t0}\nv_add_u32 {t0}, {EXL + 512}, {t0}")
    a(f"s_cmp_lg_u32 {S_W}, 0\ns_cbranch_scc1 L_p2_nocs")
    for k in range(4):
        a(f"ds_read_b32 {cacc[k]}, {t0} offset:{256*k}")
    a(f"s_and_b32 s28, {S_WG}, 1\ns_mul_i32 s28, s28, {7168*4}\ns_lshr_b32 s29, {S_WG}, 1\ns_lshl_b32 s29, s29, 8\ns_add_u32 s28, s28, s29\ns_add_u32 s28, s28, {CS}")
    a(f"s_cmp_ge_u32 {S_WG}, 224\ns_cselect_b32 s28, {OOB}, s28\nv_lshlrev_b32 {t0}, 2, {lane}\ns_waitcnt lgkmcnt(0)")
    a(f"v_add_f32 {cacc[0]}, {cacc[0]}, {cacc[1]}\nv_add_f32 {cacc[2]}, {cacc[2]}, {cacc[3]}\nv_add_f32 {cacc[0]}, {cacc[0]}, {cacc[2]}")
    a(f"buffer_store_dword {cacc[0]}, {t0}, {WS}, s28 offen {SC}")
    a.label("L_p2_nocs")
    a("s_waitcnt lgkmcnt(0)")
    for sl in range(2):
        a(f"v_add_f32 {L[2+sl][0]}, {L[2+sl][0]}, {L[sl][1]}")
        for p in range(8):
            a(f"v_pk_add_f32 {O[2+sl][2*p:2*p+2]}, {O[2+sl][2*p:2*p+2]}, {S[sl][2*p:2*p+2]}")
    a(f"s_mov_b32 s28, {f32(2.0**-60)}\ns_mov_b32 s29, {f32(2.0**60)}")
    a(f"v_cmp_nge_f32 vcc, {L[2][0]}, s28\nv_cmp_nle_f32 s[52:53], {L[2][0]}, s29\nv_cmp_nge_f32 s[54:55], {L[3][0]}, s28\nv_cmp_nle_f32 s[56:57], {L[3][0]}, s29")
    a(f"v_lshrrev_b32 {t0}, 4, {r32}\nv_lshlrev_b32 {t0}, 15, {t0}\nv_lshl_add_u32 {t0}, {hh}, 8, {t0}\nv_lshl_add_u32 {vl2}, {t16}, 4, {t0}")
    a("s_or_b64 s[52:53], s[52:53], vcc\ns_or_b64 s[54:55], s[54:55], s[56:57]\ns_or_b64 s[52:53], s[52:53], s[54:55]")
    if FORCE_SLOW:
        a("s_cmp_eq_u32 s2, s2")
    a(f"s_cbranch_scc1 L_p2_slow")
    a.label("L_p2_fin")
    for sl in range(2, 4):
        a(f"v_rcp_f32 {L[sl][2]}, {L[sl][0]}")
        a(f"s_xor_b32 s28, {sSX}, {sl}\ns_add_u32 s28, s28, {sQT}\ns_lshl_b32 s28, s28, 16\ns_lshl_b32 s29, {HD}, 10\ns_add_u32 s28, s28, s29\ns_add_u32 s28, s28, {OF}")
        for p in range(8):
            a(f"v_pk_mul_f32 {O[sl][2*p:2*p+2]}, {O[sl][2*p:2*p+2]}, {L[sl][2:4]} op_sel_hi:[1,0]")
        for p in range(8):
            a(f"v_cvt_pk_bf16_f32 {O[sl][p]}, {O[sl][2*p]}, {O[sl][2*p+1]}")
        a(f"buffer_store_dwordx4 {O[sl][0:4]}, {vl2}, {WS}, s28 offen {SC}")
        a(f"buffer_store_dwordx4 {O[sl][4:8]}, {vl2}, {WS}, s28 offen offset:512 {SC} ;@p2st")
    s = Asm()
    s.label("L_p2_slow")
    mx, mn, al, tt = t0, t1, t2, t3
    for sl in range(2, 4):
        s(f"v_mov_b32 {mx}, 0xff800000\nv_mov_b32 {L[sl][0]}, 0")
        for r in range(16):
            s(f"v_mov_b32 {O[sl][r]}, 0")
        s(f"s_add_u32 {sK}, {sHB}, {KF}\ns_add_u32 {sV}, {sHB}, {VF}\ns_mov_b32 s24, 64")
        s.label(f"L_p2_slow{sl}")
        s.lines.append(";LOOP")
        for m in range(2):
            s(f"buffer_load_dwordx4 {Kf[0][m]}, {vl}, {WS}, {sK} offen offset:{1024*m} {SC}")
            s(f"buffer_load_dwordx4 {Vf[0][m]}, {vl}, {WS}, {sV} offen offset:{1024*m} {SC}")
        s(f"s_add_u32 {sK}, {sK}, 2048\ns_add_u32 {sV}, {sV}, 2048\ns_waitcnt vmcnt(0)")
        s(mf32(S[0], Kf[0][0], Q[sl][0], 0))
        s(mf32(S[0], Kf[0][1], Q[sl][1]))
        s("s_nop 7\ns_nop 7")
        s(f"v_max_f32 {mn}, {S[0][0]}, {S[0][1]}")
        for p in range(1, 8):
            s(f"v_max3_f32 {mn}, {mn}, {S[0][2*p]}, {S[0][2*p+1]}")
        s(f"v_mov_b32 {tt}, {mn}\ns_nop 1\nv_permlane32_swap_b32 {mn}, {tt}\nv_max3_f32 {mn}, {mn}, {tt}, {mx}")
        s(f"v_sub_f32 {al}, {mx}, {mn}\nv_exp_f32 {al}, {al}\nv_mov_b32 {mx}, {mn}")
        for i in range(16):
            s(f"v_sub_f32 {S[0][i]}, {S[0][i]}, {mn}")
        for i in range(16):
            s(f"v_exp_f32 {S[0][i]}, {S[0][i]}")
        s(f"v_mul_f32 {L[sl][0]}, {L[sl][0]}, {al}")
        for i in range(16):
            s(f"v_mul_f32 {O[sl][i]}, {O[sl][i]}, {al}")
        for i in range(8):
            s(f"v_cvt_pk_bf16_f32 {P[i]}, {S[0][2*i]}, {S[0][2*i+1]}")
        for i in range(8):
            s(f"v_lshlrev_b32 {tt}, 16, {P[i]}\nv_add_f32 {L[sl][0]}, {L[sl][0]}, {tt}\nv_and_b32 {tt}, 0xffff0000, {P[i]}\nv_add_f32 {L[sl][0]}, {L[sl][0]}, {tt}")
        s(mf32(O[sl], Vf[0][0], P[0:4]))
        s(mf32(O[sl], Vf[0][1], P[4:8]))
        s("s_nop 7\ns_nop 7")
        s(f"s_sub_u32 s24, s24, 1\ns_cmp_lg_u32 s24, 0\ns_cbranch_scc1 L_p2_slow{sl}")
        s.lines.append(";ENDLOOP")
        s(f"v_mov_b32 {tt}, {L[sl][0]}\ns_nop 1\nv_permlane32_swap_b32 {L[sl][0]}, {tt}\nv_add_f32 {L[sl][0]}, {L[sl][0]}, {tt}")
    s("s_branch L_p2_fin")
    tails.append(s)
    return "s46"

def wa35(a, wa, t0, t1, base):
    a(f"v_lshrrev_b32 {t0}, 2, {lane}\nv_and_b32 {t0}, 3, {t0}\nv_and_b32 {t1}, 1, {g4}\nv_lshl_add_u32 {wa[1]}, {t1}, 2, {t0}\nv_lshl_add_u32 {wa[1]}, {hh}, 4, {wa[1]}")
    a(f"v_lshlrev_b32 {wa[1]}, 7, {wa[1]}\nv_lshrrev_b32 {t0}, 1, {t0}\nv_lshl_add_u32 {t0}, {t1}, 1, {t0}\nv_lshl_add_u32 {wa[1]}, {t0}, 5, {wa[1]}")
    a(f"v_and_b32 {t0}, 3, {lane}\nv_lshl_add_u32 {wa[0]}, {t0}, 3, {wa[1]}")
    if base:
        a(f"v_add_u32 {wa[0]}, {base}, {wa[0]}")
    for t in range(1, 4):
        a(f"v_xor_b32 {wa[t]}, {32*t}, {wa[0]}")
def rowmajor_voff(a, ve, vo, t0, t1, row0, nj):
    a(f"v_lshrrev_b32 {t0}, 3, {lane}\nv_add_u32 {t1}, {row0}, {t0}\nv_lshlrev_b32 {t1}, 11, {t1}\ns_lshl_b32 s29, {nj}, 7\nv_add_u32 {t1}, s29, {t1}")
    a(f"v_and_b32 {ve}, 7, {lane}\nv_xor_b32 {ve}, {ve}, {g4}\nv_xor_b32 {vo}, 4, {ve}\nv_lshl_add_u32 {ve}, {ve}, 4, {t1}\nv_lshl_add_u32 {vo}, {vo}, 4, {t1}")
def dlayout_addr(a, ad, t0, base):
    a(f"v_lshrrev_b32 {t0}, 1, {t16}\nv_xor_b32 {t0}, {t0}, {hh}\nv_lshlrev_b32 {t0}, 4, {t0}")
    a(f"v_and_b32 {ad}, 1, {g4}\nv_lshlrev_b32 {ad}, 3, {ad}\nv_lshl_add_u32 {ad}, {t16}, 7, {ad}\nv_add_u32 {ad}, {base}, {ad}")

MI4, FJ4 = "s52", "s53"
def phase3(a, sXR):
    va = Alloc("v", V0, 250)
    vx = va(2); wa = va(4)
    t0, t1, t2, t3 = va(), va(), va(), va()
    acc = [[va(4, 4) for t in range(4)] for mt in range(2)]
    Wf = [[va(4, 4) for t in range(4)] for b in range(2)]
    NB = 8
    Xf = [[va(4, 4) for mt in range(2)] for b in range(NB)]
    res = va(16, 4); tmp = va(16, 4); pk = va(16, 4)
    TT, sX, sXe = "s32", "s33", "s34"
    a(f"s_lshl_b32 s28, {S_W}, 11\ns_add_u32 m0, s28, {EXL}\ns_mov_b32 s28, {15*64*2048}")
    a(f"buffer_load_dwordx4 {VW3[0]}, {SA}, s28 offen lds\nbuffer_load_dwordx4 {VW3[1]}, {SA}, s28 offen offset:1024 lds")
    a(f"s_lshl_b32 {TT}, {MI3}, 3\ns_lshl_b32 s28, {S_W}, 1\ns_add_u32 {TT}, {TT}, s28\ns_lshl_b32 s30, {TT}, 4")
    srd(a, 16, P_X, 2048 * 2048)
    rowmajor_voff(a, t2, t3, t0, t1, "s30", NJ3)
    a(f"s_mov_b32 m0, {sXR}")
    for i in range(4):
        a(f"s_mov_b32 s29, {i*15360}\nbuffer_load_dwordx4 {t2 if i%2==0 else t3}, {SB}, s29 offen offset:{i*1024} lds")
    a(f"s_and_b32 {MI4}, {S_IDX}, 7\ns_lshr_b32 s29, {S_IDX}, 3\ns_lshl_b32 {FJ4}, {S_XCD}, 2\ns_add_u32 {FJ4}, {FJ4}, s29")
    pa, pn = res[0], res[1]
    a(f"s_lshr_b32 s28, {MI3}, 1\ns_lshl_b32 s28, s28, 5\nv_and_b32 {t0}, 3, {lane}\nv_lshlrev_b32 {t0}, 3, {t0}\nv_lshrrev_b32 {t1}, 2, {r32}\nv_add3_u32 {pa}, {t0}, {t1}, s28")
    a(f"s_mul_i32 s28, {FJ4}, 7\ns_lshr_b32 s28, s28, 2\nv_min_u32 {t0}, 11, {r32}\nv_lshrrev_b32 {t1}, 2, {t0}\nv_add_u32 {t1}, s28, {t1}\nv_min_u32 {t1}, 55, {t1}")
    a(f"v_lshrrev_b32 {pn}, 1, {t0}\nv_and_b32 {pn}, 1, {pn}\nv_mul_u32_u24 {pn}, 56, {pn}\nv_add_u32 {t1}, {t1}, {pn}\nv_and_b32 {t0}, 1, {t0}\nv_lshl_add_u32 {t1}, {t1}, 1, {t0}")
    a(f"v_cmp_eq_u32 vcc, 0, {hh}\nv_mov_b32 {pn}, 3\ns_nop 0\nv_cndmask_b32 {pa}, {t1}, {pa}, vcc\nv_lshlrev_b32 {pa}, 7, {pa}")
    publish(a, 3, "p2st", tmp[0:2])
    stamp(a, 6)
    wa35(a, wa, t0, t1, 0)
    a(f"s_lshl_b32 {sX}, {TT}, 15\ns_add_u32 {sX}, {sX}, {OF}\ns_add_u32 {sXe}, {sX}, 32768\nv_mov_b32 {vx[0]}, {vl}\nv_add_u32 {vx[1]}, 32768, {vl}")
    poll(a, "p3", pa, pn, tmp[0:4])
    stamp(a, 7)
    def xload(sig):
        o = []
        if sig % 4 == 0 and sig > 0:
            o += [f"s_add_u32 {sX}, {sX}, 4096", f"s_cmp_ge_u32 {sX}, {sXe}\ns_cselect_b32 {sX}, {OOB}, {sX}"]
        o += [f"buffer_load_dwordx4 {Xf[sig%NB][mt]}, {vx[mt]}, {WS}, {sX} offen offset:{(sig%4)*1024} {SC} ;@p3x{sig}" for mt in range(2)]
        return o
    def wreads(sig):
        return [f"ds_read_b64_tr_b16 {Wf[sig%2][t][2*j:2*j+2]}, {wa[t]} offset:{(sig%8)*4096 + 1024*j}" for t in range(4) for j in range(2)]
    for sig in range(7):
        a.ext(xload(sig))
    a.ext(wreads(0))
    for mt in range(2):
        for t in range(4):
            for r in range(4):
                a(f"v_mov_b32 {acc[mt][t][r]}, 0")
    for sig in range(32):
        if sig % 8 == 0:
            a.it("p3")
        a(f"s_waitcnt vmcnt(@p3x{sig}) lgkmcnt(0)")
        if sig % 8 == 4:
            a("s_barrier")
        m = [mf16(acc[mt][t], Wf[sig % 2][t], Xf[sig % NB][mt]) for t in range(4) for mt in range(2)]
        pre = [f"v_add_u32 {wa[t]}, 0x8000, {wa[t]}" for t in range(4)] if sig % 8 == 7 else []
        rd = wreads(sig + 1); xl = xload(sig + 7)
        fl = pre + rd + xl
        cnt = [2 + len(pre), 2, 2, 2] + [0] * 4
        for k in range(len(xl)): cnt[4 + (k * 4) // len(xl)] += 1
        a.ext(interleave(m, fl, per_gap=cnt))
        if sig % 8 == 7:
            a.endit()
    stamp(a, 8)
    a("s_waitcnt vmcnt(0) lgkmcnt(0)\ns_barrier")
    dlayout_addr(a, t1, t0, sXR)
    for t in range(4):
        a(f"v_xor_b32 {t2}, {32*t}, {t0}\nv_add_u32 {t2}, {t2}, {t1}")
        for mt in range(2):
            a(f"ds_read_b64 {res[8*mt+2*t:8*mt+2*t+2]}, {t2} offset:{2048*mt}")
    a(f"s_lshl_b32 s28, {TT}, 15\ns_lshl_b32 s29, {NJ3}, 11\ns_add_u32 s28, s28, s29\ns_add_u32 s28, s28, {HF}\ns_waitcnt lgkmcnt(0)")
    for mt in range(2):
        for k in range(8):
            a(f"v_lshlrev_b32 {tmp[2*k]}, 16, {res[8*mt+k]}\nv_and_b32 {tmp[2*k+1]}, 0xffff0000, {res[8*mt+k]}")
        for k in range(8):
            a(f"v_pk_add_f32 {tmp[2*k:2*k+2]}, {tmp[2*k:2*k+2]}, {acc[mt][k//2][2*(k%2):2*(k%2)+2]}")
        for k in range(8):
            a(f"v_cvt_pk_bf16_f32 {pk[8*mt+k]}, {tmp[2*k]}, {tmp[2*k+1]}")
        for p in range(2):
            a(f"buffer_store_dwordx4 {pk[8*mt+4*p:8*mt+4*p+4]}, {vx[mt]}, {WS}, s28 offen offset:{1024*p} {SC}")
    a(f"v_mov_b32 {t1}, 0x3f803f80")
    for k in range(4):
        a(f"v_mov_b32 {tmp[k]}, 0")
    for k in range(8):
        for mt in range(2):
            a(f"v_dot2c_f32_bf16 {tmp[2*mt]}, {pk[8*mt+k]}, {t1}\nv_dot2c_f32_bf16 {tmp[2*mt+1]}, {pk[8*mt+k]}, {pk[8*mt+k]}")
    a("s_nop 2")
    for sw_ in ("16", "32"):
        for k in range(4):
            a(f"v_mov_b32 {tmp[4+k]}, {tmp[k]}")
        a("s_nop 0")
        for k in range(4):
            a(f"v_permlane{sw_}_swap_b32 {tmp[k]}, {tmp[4+k]}")
        for k in range(4):
            a(f"v_add_f32 {tmp[k]}, {tmp[k]}, {tmp[4+k]}")
    a(f"v_and_b32 {t0}, 1, {g4}\nv_cmp_eq_u32 vcc, 1, {t0}\nv_lshlrev_b32 {t0}, 3, {r32}")
    a(f"s_lshl_b32 s28, {NJ3}, 14\ns_lshl_b32 s29, {TT}, 7\ns_add_u32 s28, s28, s29\ns_add_u32 s28, s28, {ST}")
    a(f"v_cndmask_b32 {tmp[0]}, {tmp[0]}, {tmp[2]}, vcc\nv_cndmask_b32 {tmp[1]}, {tmp[1]}, {tmp[3]}, vcc")
    a(f"buffer_store_dwordx2 {tmp[0:2]}, {t0}, {WS}, s28 offen {SC} ;@p3st")

R5 = 98304
def phase4(a):
    SLAB, GU, RING = 28672, 14336, 4
    va = Alloc("v", V0, 256); aa = Alloc("a", 0, 256)
    vx = va(4); wa = va()
    t0, t1, t2, t3 = va(), va(), va(), va()
    acc = [[va(4, 4) for n in range(14)] for mt in range(4)]
    assert va.cur <= 250, va.cur
    vw = [R("v", 244 + i) for i in range(6)] + [R("v", 252)]
    assert va.cur <= 244
    mean = R("v", 253, 3)
    Wf = [[aa(4, 4) for n in range(14)] for b in range(2)]
    NB = 4
    Xf = [[aa(4, 4) for mt in range(4)] for b in range(NB)]
    stt = aa(32, 4)
    TT, sX, sXe, sW, sD, sWP, sM2, sR = "s32", "s33", "s34", "s35", "s36", "s37", "s38", "s39"
    s5W, s5M = "s40", "s41"
    a(f"s_and_b32 s29, {S_W}, 1\ns_mul_i32 s29, s29, 448\nv_add_u32 {t0}, s29, {lane}")
    a(f"s_mov_b32 s28, {(1<<32)//14 + 1}\ns_mul_i32 s30, {FJ4}, 224\ns_movk_i32 s31, {7168 - 14*16}")
    for i in range(7):
        a(f"v_add_u32 {t1}, {64*i}, {t0}\nv_mul_hi_u32 {t2}, {t1}, s28\nv_mul_lo_u32 {t2}, {t2}, s31\nv_lshl_add_u32 {t2}, {t1}, 4, {t2}")
        a(f"s_sub_u32 s29, s30, {1024*(i%4)}\nv_add_u32 {vw[i]}, s29, {t2}")
    a(f"s_cmp_lt_u32 {S_W}, 2\ns_cselect_b32 s12, s{P_WG}, s{P_WU}\ns_cselect_b32 s13, s{P_WG+1}, s{P_WU+1}\ns_mov_b32 s14, {1024*7168}\ns_mov_b32 s15, 0x20000")
    a(f"s_mul_i32 {sWP}, {S_W}, 7168\ns_mov_b32 {sW}, 0\ns_mov_b32 {sD}, 0\ns_mov_b32 {sR}, 0")
    def wdma(slab, part):
        if part == 0:
            o = [f"s_add_u32 m0, {sD}, {sWP}", f"s_add_u32 {sM2}, {sD}, {sWP}"]
            rng = range(0, 4)
        else:
            o = [f"s_add_u32 m0, {sM2}, 4096", f"s_add_u32 {sD}, {sD}, {SLAB}"]
            rng = range(4, 7)
        o += [f"buffer_load_dwordx4 {vw[i]}, {SA}, {sW} offen offset:{(i%4)*1024} lds ;@p4w{slab}" for i in rng]
        if part == 1:
            o += [f"s_cmp_ge_u32 {sD}, {RING*SLAB}\ns_cselect_b32 {sD}, 0, {sD}", f"s_add_u32 {sW}, {sW}, {64*7168}"]
        return o
    def dmas(sig):
        i, s = divmod(sig, 2)
        slab = i + 4 if s == 1 else i + 3
        return wdma(slab, 0 if s == 1 else 1) if 0 <= slab < 16 else []
    for sig in range(-7, 0):
        a.ext(dmas(sig))
    a(f"v_lshlrev_b32 {t0}, 4, {g4}\ns_mul_i32 s28, {FJ4}, 448\ns_add_u32 s28, s28, {CS}")
    for part in range(2):
        for gu in range(2):
            a(f"s_add_u32 s29, s28, {part*7168*4 + gu*3584*4}")
            for t in range(7):
                a(f"buffer_load_dwordx4 {acc[part][7*gu+t]}, {t0}, {WS}, s29 offen offset:{64*t} {SC}")
    pa, pn = acc[2][0][0], acc[2][0][1]
    a(f"v_and_b32 {t0}, 1, {g4}\ns_lshl_b32 s28, {MI4}, 1\nv_add_u32 {t0}, s28, {t0}")
    a(f"v_and_b32 {t1}, 7, {t16}\nv_lshlrev_b32 {t1}, 2, {t1}\nv_and_b32 {t2}, 3, {t0}\nv_add_u32 {t1}, {t1}, {t2}\nv_lshlrev_b32 {t1}, 3, {t1}")
    a(f"v_lshrrev_b32 {t2}, 3, {t16}\nv_lshl_add_u32 {t1}, {t2}, 2, {t1}\nv_lshrrev_b32 {t0}, 2, {t0}\nv_add_u32 {pa}, {t0}, {t1}\nv_lshlrev_b32 {pa}, 7, {pa}\nv_mov_b32 {pn}, 4")
    publish(a, 4, "p3st", acc[2][1][0:2])
    stamp(a, 9)
    a(f"s_lshl_b32 {TT}, {MI4}, 4\ns_lshl_b32 s28, {S_W}, 2\ns_add_u32 {TT}, {TT}, s28")
    a(f"s_lshl_b32 {sX}, {TT}, 15\ns_add_u32 {sX}, {sX}, {HF}\ns_add_u32 {sXe}, {sX}, 32768\nv_mov_b32 {vx[0]}, {vl}")
    for mt in range(1, 4):
        a(f"v_add_u32 {vx[mt]}, {32768*mt}, {vl}")
    a(f"v_lshrrev_b32 {t0}, 2, {lane}\nv_and_b32 {t0}, 3, {t0}\nv_lshl_add_u32 {t0}, {g4}, 2, {t0}\nv_mul_u32_u24 {t0}, 224, {t0}\nv_and_b32 {t1}, 3, {lane}\nv_lshl_add_u32 {wa}, {t1}, 3, {t0}")
    srd(a, 16, P_WD, 3584 * 2048)
    a(f"s_mov_b32 {s5W}, 0\ns_lshl_b32 {s5M}, {S_W}, 11\ns_add_u32 {s5M}, {s5M}, {R5 + 4*8192}")
    a(f"v_lshlrev_b32 {t1}, 3, {t16}\nv_lshl_add_u32 {t1}, {g4}, 16, {t1}\ns_lshl_b32 s30, {TT}, 7\ns_add_u32 s30, s30, {ST}")
    poll(a, "p4", pa, pn, acc[2][1])
    stamp(a, 10)
    def xload(sig):
        o = []
        if sig % 4 == 0 and sig > 0:
            o += [f"s_add_u32 {sX}, {sX}, 4096"]
        o += [f"buffer_load_dwordx4 {Xf[sig%NB][mt]}, {vx[mt]}, {WS}, {sX} offen offset:{(sig%4)*1024} {SC} ;@p4x{sig}" for mt in range(4)]
        return o
    for k in range(4):
        for mt in range(4):
            a(f"buffer_load_dword {acc[3][mt][k]}, {t1}, {WS}, s30 offen offset:{128*mt} {SC} ;@p4st")
        a(f"s_add_u32 s30, s30, 16384")
    for sig in range(3):
        a.ext(xload(sig))
    def wreads(sig):
        s = sig % 2
        return [f"ds_read_b64_tr_b16 {Wf[sig%2][n][2*j:2*j+2]}, {wa} offset:{(32*s + 16*j)*224 + (n//7)*GU + 32*(n%7)}" for n in range(14) for j in range(2)]
    def wbump():
        return [f"s_add_u32 s44, {sR}, {SLAB}", f"s_cmp_ge_u32 s44, {RING*SLAB}\ns_cselect_b32 s44, 0, s44", f"s_sub_u32 s45, s44, {sR}",
                f"s_mov_b32 {sR}, s44", f"v_add_u32 {wa}, s45, {wa}"]
    a("s_barrier")
    a.ext(wreads(0))
    for n in range(14):
        for p in range(2):
            a(f"v_pk_add_f32 {acc[0][n][2*p:2*p+2]}, {acc[0][n][2*p:2*p+2]}, {acc[1][n][2*p:2*p+2]}")
    a("s_waitcnt vmcnt(@p4st)")
    mq = [t0, t1, t2, t3]; my = [acc[2][0][k] for k in range(4)]
    for mt in range(4):
        A = acc[3][mt]
        a(f"v_add_f32 {A[0]}, {A[0]}, {A[1]}\nv_add_f32 {A[2]}, {A[2]}, {A[3]}")
    for mt in range(4):
        a(f"v_add_f32 {mq[mt]}, {acc[3][mt][0]}, {acc[3][mt][2]}")
    for sw_ in ("16", "32"):
        for k in range(4):
            a(f"v_mov_b32 {my[k]}, {mq[k]}")
        a("s_nop 0")
        for k in range(4):
            a(f"v_permlane{sw_}_swap_b32 {mq[k]}, {my[k]}")
        for k in range(4):
            a(f"v_add_f32 {mq[k]}, {mq[k]}, {my[k]}")
    for k in range(4):
        a(f"v_mul_f32 {mq[k]}, {f32(-1/1024)}, {mq[k]}")
    assert t0.b % 2 == 0 or True
    for n in range(14):
        for mt in (3, 2, 1, 0):
            base = mq[mt].b & ~1; o = mq[mt].b & 1
            for p in range(2):
                a(f"v_pk_mul_f32 {acc[mt][n][2*p:2*p+2]}, {acc[0][n][2*p:2*p+2]}, v[{base}:{base+1}] op_sel:[0,{o}] op_sel_hi:[1,{o}]")
    def w5(j):
        return [f"s_mov_b32 m0, {s5M}", f"s_add_u32 {s5M}, {s5M}, 8192", f"buffer_load_dwordx4 {VW3[0]}, {SB}, {s5W} offen lds ;@p5w{j}",
                f"buffer_load_dwordx4 {VW3[1]}, {SB}, {s5W} offen offset:1024 lds ;@p5w{j}", f"s_add_u32 {s5W}, {s5W}, {64*2048}"]
    for sig in range(32):
        i, s = divmod(sig, 2)
        if sig % 4 == 0:
            a.it("p4")
        a(f"s_waitcnt vmcnt(@p4x{sig}" + (f"&p4w{i+1}" if s == 1 and i < 15 else "") + ") lgkmcnt(0)")
        if s == 1 and i < 15:
            a("s_barrier")
        m = [mf16(acc[mt][n], Wf[sig % 2][n], Xf[sig % NB][mt]) for n in range(14) for mt in range(4)]
        rd = wreads(sig + 1) if sig < 31 else []
        ex = (xload(sig + 3) if sig + 3 < 32 else []) + dmas(sig)
        if sig >= 28:
            ex += w5(sig - 28)
        bump = wbump() if s == 0 else []
        seq = []; cnt = []
        ne = len(ex); k = 0
        for gi in range(56):
            c = 0
            if gi < 48:
                if gi % 12 in (0, 2, 4, 5, 7, 9, 11) and rd:
                    seq.append(rd.pop(0)); c += 1
                elif gi % 12 in (1, 3, 6, 8, 10) and k < ne:
                    seq.append(ex[k]); k += 1; c += 1
            elif bump:
                seq.append(bump.pop(0)); c += 1
            cnt.append(c)
        assert not rd and k == ne and not bump, (len(rd), k, ne)
        a.ext(interleave(m, seq, per_gap=cnt))
        if sig % 4 == 3:
            a.endit()
    stamp(a, 11)
    a("s_barrier")
    a(f"s_sub_u32 {s5M}, {s5M}, 65536")
    a.ext(w5(4))
    a(f"v_mul_u32_u24 {t0}, {224*512}, {hh}\nv_lshl_add_u32 {t0}, {r32}, 4, {t0}")
    a(f"s_mul_i32 s28, {TT}, {224*512}\ns_mul_i32 s29, {FJ4}, {7*512}\ns_add_u32 s28, s28, s29\ns_add_u32 s28, s28, {AF}")
    for mp in range(2):
        for t in range(7):
            G = [acc[2*mp][t], acc[2*mp+1][t]]; U = [acc[2*mp][7+t], acc[2*mp+1][7+t]]
            for k in range(2):
                for e in range(4):
                    a(f"v_max_f32 {G[k][e]}, 0, {G[k][e]}")
            for k in range(2):
                for p in range(2):
                    a(f"v_pk_mul_f32 {G[k][2*p:2*p+2]}, {G[k][2*p:2*p+2]}, {U[k][2*p:2*p+2]}")
            D = U[0]
            a(f"v_cvt_pk_bf16_f32 {D[0]}, {G[0][0]}, {G[0][1]}\nv_cvt_pk_bf16_f32 {D[1]}, {G[0][2]}, {G[0][3]}")
            a(f"v_cvt_pk_bf16_f32 {D[2]}, {G[1][0]}, {G[1][1]}\nv_cvt_pk_bf16_f32 {D[3]}, {G[1][2]}, {G[1][3]}\ns_nop 1")
            a(f"v_permlane32_swap_b32 {D[0]}, {D[2]}\nv_permlane32_swap_b32 {D[1]}, {D[3]}")
            a(f"buffer_store_dwordx4 {D}, {t0}, {WS}, s28 offen offset:{512*t} {SC} ;@p4out")
        a(f"s_add_u32 s28, s28, {2*224*512}")

def phase5(a):
    va = Alloc("v", V0, 250)
    vx = va(2); wa = va(4)
    t0, t1, t2, t3 = va(), va(), va(), va()
    acc = [[va(4, 4) for t in range(4)] for mt in range(2)]
    Wf = [[va(4, 4) for t in range(4)] for b in range(2)]
    NB = 8
    Xf = [[va(4, 4) for mt in range(2)] for b in range(NB)]
    res = va(16, 4); tmp = va(16, 4); pk = va(16, 4); stt = va(16, 4)
    TT, sX = "s32", "s33"
    s5W, s5M = "s40", "s41"
    pa, pn = res[0], res[1]
    a(f"s_lshr_b32 s28, {MI3}, 1\ns_lshl_b32 s28, s28, 3\nv_and_b32 {t0}, 3, {lane}\nv_lshlrev_b32 {t0}, 6, {t0}\nv_lshrrev_b32 {t1}, 2, {r32}")
    a(f"v_add3_u32 {pa}, {t0}, {t1}, s28\nv_lshlrev_b32 {pa}, 7, {pa}\nv_mov_b32 {pn}, 5")
    publish(a, 5, "p4out", tmp[0:2])
    stamp(a, 12)
    a(f"s_lshl_b32 {TT}, {MI3}, 3\ns_lshl_b32 s28, {S_W}, 1\ns_add_u32 {TT}, {TT}, s28")
    wa35(a, wa, t0, t1, R5 + 4 * 8192)
    a(f"s_mul_i32 {sX}, {TT}, {224*512}\ns_add_u32 {sX}, {sX}, {AF}\nv_mov_b32 {vx[0]}, {vl}\nv_add_u32 {vx[1]}, {224*512}, {vl}")
    for mt in range(2):
        for t in range(4):
            for r in range(4):
                a(f"v_mov_b32 {acc[mt][t][r]}, 0")
    srd(a, 12, P_OUT, 2048 * 2048)
    poll(a, "p5", pa, pn, tmp[0:4])
    stamp(a, 13)
    NS = 112
    def xload(sig):
        o = []
        if sig % 4 == 0 and sig > 0:
            o += [f"s_add_u32 {sX}, {sX}, 4096"]
        o += [f"buffer_load_dwordx4 {Xf[sig%NB][mt]}, {vx[mt]}, {WS}, {sX} offen offset:{(sig%4)*1024} {SC} ;@p5x{sig}" for mt in range(2)]
        return o
    def wdma(j):
        return [f"s_mov_b32 m0, {s5M}", f"s_add_u32 {s5M}, {s5M}, 8192", f"buffer_load_dwordx4 {VW3[0]}, {SB}, {s5W} offen lds ;@p5w{j}",
                f"buffer_load_dwordx4 {VW3[1]}, {SB}, {s5W} offen offset:1024 lds ;@p5w{j}", f"s_add_u32 {s5W}, {s5W}, {64*2048}",
                f"s_cmp_ge_u32 {s5M}, {R5+65536}\ns_cselect_b32 s44, 65536, 0\ns_sub_u32 {s5M}, {s5M}, s44"]
    def wreads(sig):
        return [f"ds_read_b64_tr_b16 {Wf[sig%2][t][2*j:2*j+2]}, {wa[t]} offset:{(sig%8)*4096 + 1024*j}" for t in range(4) for j in range(2)]
    for sig in range(7):
        a.ext(xload(sig))
    a("s_barrier")
    a.ext(wreads(0))
    for sig in range(NS):
        i, s = divmod(sig, 2)
        if sig % 8 == 0:
            a.it("p5")
        a(f"s_waitcnt vmcnt(@p5x{sig}" + (f"&p5w{i+1}" if s == 1 and i < 55 else "") + ") lgkmcnt(0)")
        if s == 1 and i < 55:
            a("s_barrier")
        m = [mf16(acc[mt][t], Wf[sig % 2][t], Xf[sig % NB][mt]) for t in range(4) for mt in range(2)]
        pre = [f"v_xor_b32 {wa[t]}, 0x38000, {wa[t]}" for t in range(4)] if sig % 8 == 7 else []
        rd = wreads(sig + 1) if sig < NS - 1 else []
        xl = xload(sig + 7) if sig + 7 < NS else []
        if s == 0 and i + 5 < 56:
            xl += wdma(i + 5)
        if sig == NS - 6:
            xl += [f"s_lshl_b32 s28, {TT}, 15", f"s_lshl_b32 s29, {NJ3}, 11", "s_add_u32 s28, s28, s29", f"s_add_u32 s28, s28, {HF}", f"v_add_u32 {t0}, 32768, {vl}"]
            xl += [f"buffer_load_dwordx4 {res[8*mt+4*p:8*mt+4*p+4]}, {vl if mt == 0 else t0}, {WS}, s28 offen offset:{1024*p} {SC}" for mt in range(2) for p in range(2)]
        if sig == NS - 5:
            xl += [f"v_lshlrev_b32 {t1}, 3, {t16}", f"v_lshl_add_u32 {t1}, {g4}, 16, {t1}", f"s_lshl_b32 s28, {TT}, 7", f"s_add_u32 s28, s28, {ST}"]
            for k in range(4):
                xl += [f"buffer_load_dwordx2 {stt[8*mt+2*k:8*mt+2*k+2]}, {t1}, {WS}, s28 offen offset:{128*mt} {SC}" for mt in range(2)] + ["s_add_u32 s28, s28, 16384"]
        fl = pre + rd + xl
        cnt = [len(pre) + (2 if rd else 0)] + [2 if rd else 0] * 3 + [0] * 4
        for k in range(len(xl)): cnt[4 + (k * 4) // len(xl)] += 1
        a.ext(interleave(m, fl, per_gap=cnt))
        if sig % 8 == 7:
            a.endit()
    stamp(a, 14)
    a("s_waitcnt vmcnt(0)")
    for mt in range(2):
        T = stt[8 * mt:8 * mt + 8]
        a(f"v_pk_add_f32 {T[0:2]}, {T[0:2]}, {T[2:4]}\nv_pk_add_f32 {T[4:6]}, {T[4:6]}, {T[6:8]}")
    for mt in range(2):
        T = stt[8 * mt:8 * mt + 8]
        a(f"v_pk_add_f32 {tmp[2*mt:2*mt+2]}, {T[0:2]}, {T[4:6]}")
    for sw_ in ("16", "32"):
        for k in range(4):
            a(f"v_mov_b32 {tmp[4+k]}, {tmp[k]}")
        a("s_nop 0")
        for k in range(4):
            a(f"v_permlane{sw_}_swap_b32 {tmp[k]}, {tmp[4+k]}")
        for k in range(4):
            a(f"v_add_f32 {tmp[k]}, {tmp[k]}, {tmp[4+k]}")
    for mt in range(2):
        m_, q_ = tmp[2 * mt], tmp[2 * mt + 1]
        a(f"v_mul_f32 {m_}, {f32(1/1024)}, {m_}\nv_mul_f32 {q_}, {f32(1/1024)}, {q_}\nv_fma_f32 {q_}, -{m_}, {m_}, {q_}\nv_max_f32 {q_}, 0, {q_}\nv_add_f32 {q_}, {f32(EPS)}, {q_}")
        a(f"v_rcp_f32 {stt[mt]}, {q_}")
    a(f"s_lshl_b32 s30, {S_W}, 12")
    dlayout_addr(a, t1, t0, "s30")
    for mt in range(2):
        for k in range(8):
            a(f"v_lshlrev_b32 {tmp[2*k]}, 16, {res[8*mt+k]}\nv_and_b32 {tmp[2*k+1]}, 0xffff0000, {res[8*mt+k]}")
        for k in range(8):
            a(f"v_pk_fma_f32 {tmp[2*k:2*k+2]}, {acc[mt][k//2][2*(k%2):2*(k%2)+2]}, {stt[0:2]}, {tmp[2*k:2*k+2]} op_sel:[0,{mt},0] op_sel_hi:[1,{mt},1]")
        for k in range(8):
            a(f"v_cvt_pk_bf16_f32 {pk[8*mt+k]}, {tmp[2*k]}, {tmp[2*k+1]}")
    for t in range(4):
        a(f"v_xor_b32 {t2}, {32*t}, {t0}\nv_add_u32 {t2}, {t2}, {t1}")
        for mt in range(2):
            a(f"ds_write_b64 {t2}, {pk[8*mt+2*t:8*mt+2*t+2]} offset:{2048*mt}")
    a(f"v_add_u32 {t2}, s30, {vl}\ns_waitcnt lgkmcnt(0)")
    for i in range(4):
        a(f"ds_read_b128 {tmp[4*i:4*i+4]}, {t2} offset:{i*1024}")
    a(f"s_lshl_b32 s30, {TT}, 4")
    rowmajor_voff(a, t2, t3, t0, t1, "s30", NJ3)
    for i in range(4):
        a(f"s_mov_b32 s29, {i*8*2048}\ns_waitcnt lgkmcnt({3-i})")
        a(f"buffer_store_dwordx4 {tmp[4*i:4*i+4]}, {t2 if i%2==0 else t3}, {SA}, s29 offen")
    if STAMPS:
        a("s_waitcnt vmcnt(0)")
        stamp(a, 15)
        a(f"s_add_u32 s88, s{P_WS}, {STAMP}\ns_addc_u32 s89, s{P_WS+1}, 0\ns_lshl_b32 s87, {S_WG}, 10\ns_lshl_b32 s86, {S_W}, 8\ns_add_u32 s87, s87, s86")
        a(f"v_lshlrev_b32 {t0}, 2, {lane}\nv_add_u32 {t0}, s87, {t0}\nglobal_store_dword {t0}, {vst}, s[88:89]")

KN = "sequential_preLN__mha_block__glu_gated_reglu__prompt_kernel"
def build(path):
    hdr = open("sequential_preLN__mha_block__glu_gated_reglu__prompt.s.ref").read().split("\n")
    hdr = [l for l in hdr if l.startswith(";") and "@launch" not in l]
    a = Prog()
    a(f"s_cmp_ge_u32 s2, 256\ns_cbranch_scc1 L_end")
    entry(a)
    phase1(a)
    sxr = phase2(a)
    phase3(a, sxr)
    phase4(a)
    phase5(a)
    a.resolve()
    a.fold()
    errs = check(a.lines, "main")
    a.label("L_end")
    a("s_endpgm")
    for t in tails:
        errs += check(t.lines, "tail")
        a.lines += t.lines
    for e in errs:
        print(e)
    out = list(hdr)
    out.append("; @launch grid=(256,1,1) block=(256,1,1) lds=163840")
    out.append('.amdgcn_target "amdgcn-amd-amdhsa--gfx950"\n.text')
    out.append(f".globl {KN}\n.p2align 8\n.type {KN},@function\n{KN}:")
    out.append(a.text())
    out.append(f""".section .rodata,"a"
.p2align 6
.amdhsa_kernel {KN}
  .amdhsa_next_free_vgpr 512
  .amdhsa_next_free_sgpr 102
  .amdhsa_accum_offset 256
  .amdhsa_group_segment_fixed_size 0
  .amdhsa_kernarg_size 80
  .amdhsa_user_sgpr_count 2
  .amdhsa_user_sgpr_kernarg_segment_ptr 1
  .amdhsa_system_sgpr_workgroup_id_x 1
.end_amdhsa_kernel""")
    open(path, "w").write("\n".join(out) + "\n")
    print(f"wrote {path}: {len(errs)} checker errors")

if __name__ == "__main__":
    import argparse
    ap = argparse.ArgumentParser()
    ap.add_argument("-o", default="v2.s")
    ap.add_argument("--stamps", action="store_true")
    ap.add_argument("--slow", action="store_true")
    ap.add_argument("--spin", type=int, default=None)
    args = ap.parse_args()
    STAMPS = args.stamps; FORCE_SLOW = args.slow
    if args.spin: SPIN_MAX = args.spin
    build(args.o)
```

```python
import re

class Asm:
    def __init__(self):
        self.lines = []
    def __call__(self, s):
        for ln in s.split("\n"):
            ln = ln.strip()
            if ln:
                self.lines.append(ln)
    def ext(self, lst):
        for s in lst:
            self(s)
    def label(self, n):
        self.lines.append(n + ":")
    def text(self):
        out = []
        for l in self.lines:
            if l.endswith(":") or l.startswith("."):
                out.append(l)
            else:
                out.append("  " + l)
        return "\n".join(out) + "\n"

def vr(b, n=1, p="v"):
    return f"{p}{b}" if n == 1 else f"{p}[{b}:{b+n-1}]"
class R:
    def __init__(self, p, b, n=1):
        self.p, self.b, self.n = p, b, n
    def __str__(self):
        return vr(self.b, self.n, self.p)
    def __getitem__(self, i):
        if isinstance(i, slice):
            st = i.start or 0
            en = i.stop if i.stop is not None else self.n
            assert 0 <= st < en <= self.n, (st, en, self.n)
            return R(self.p, self.b + st, en - st)
        assert 0 <= i < self.n, (i, self.n)
        return R(self.p, self.b + i, 1)
    def __format__(self, spec):
        return str(self)

class Alloc:
    def __init__(self, p, start, limit):
        self.p, self.cur, self.limit = p, start, limit
    def __call__(self, n=1, align=1):
        if n >= 2 and align == 1:
            align = 2
        self.cur = (self.cur + align - 1) // align * align
        r = R(self.p, self.cur, n)
        self.cur += n
        assert self.cur <= self.limit, f"out of {self.p} regs"
        return r

def interleave(spine, fillers, per_gap=None, start_gap=0):
    n = len(spine)
    out = []
    if per_gap is None:
        g = n - start_gap
        cnt = [0] * n
        for i in range(len(fillers)):
            cnt[start_gap + (i * g) // max(len(fillers), 1)] += 1
    else:
        cnt = list(per_gap) + [0] * (n - len(per_gap))
        assert sum(cnt) >= len(fillers), (sum(cnt), len(fillers))
    k = 0
    for i, m in enumerate(spine):
        out.append(m)
        for _ in range(cnt[i]):
            if k < len(fillers):
                out.append(fillers[k]); k += 1
    assert k == len(fillers)
    return out

_reg_re = re.compile(r"\b([vas])(\d+)\b|\b([vas])\[(\d+):(\d+)\]|\b(vcc|exec|m0|scc)\b")
def regs_of(op):
    s = set()
    for m in _reg_re.finditer(op):
        if m.group(1):
            s.add((m.group(1), int(m.group(2))))
        elif m.group(3):
            for i in range(int(m.group(4)), int(m.group(5)) + 1):
                s.add((m.group(3), i))
        else:
            s.add((m.group(6), 0))
    return s

TRANS = ("v_exp_f32", "v_log_f32", "v_rcp_f32", "v_rsq_f32", "v_sqrt_f32", "v_exp_f16")
def parse(line):
    w0 = int((line.split(";wave0")[1].strip() or "1")) if ";wave0" in line else 0
    line = line.split(";")[0].strip()
    parts = line.split(None, 1)
    op = parts[0]
    rest = parts[1] if len(parts) > 1 else ""
    ops = [x.strip() for x in re.split(r",\s*(?![^\[]*\])", rest)] if rest else []
    d = dict(op=op, text=line, W=set(), Rd=set(), kind="other", srcC=set(), AB=set())
    def rs(xs):
        s = set()
        for x in xs:
            s |= regs_of(x)
        return s
    if op.startswith("v_mfma"):
        d["kind"] = "mfma"
        d["W"] = regs_of(ops[0]); d["AB"] = rs(ops[1:3]); d["srcC"] = regs_of(ops[3].split()[0])
        d["Rd"] = d["AB"] | d["srcC"]
        d["passes"] = 8 if "32x32x16" in op else (4 if "16x16x32" in op else 2)
    elif op.startswith("buffer_load") or op.startswith("global_load"):
        lds = " lds" in (" " + line + " ").replace(",", " ") and re.search(r"\blds\b", line)
        d["kind"] = "vmem"
        if op.startswith("buffer_load") and lds:
            d["Rd"] = rs(ops) | {("m0", 0)}; d["dma"] = True
        else:
            d["W"] = regs_of(ops[0]); d["Rd"] = rs(ops[1:]); d["load"] = True
    elif op.startswith("buffer_store") or op.startswith("global_store") or op.startswith("buffer_atomic") or op.startswith("global_atomic"):
        d["kind"] = "vmem"; d["Rd"] = rs(ops); d["store"] = True
        if op.startswith("buffer"):
            d["data"] = regs_of(ops[0])
        else:
            d["data"] = regs_of(ops[1])
        d["wide"] = op.endswith("x4") or op.endswith("x3")
    elif op.startswith("ds_read") or op.startswith("ds_bpermute") or op.startswith("ds_swizzle"):
        d["kind"] = "ds"; d["W"] = regs_of(ops[0]); d["Rd"] = rs(ops[1:]); d["load"] = True
    elif op.startswith("ds_write"):
        d["kind"] = "ds"; d["Rd"] = rs(ops)
    elif op.startswith("s_load") or op.startswith("s_memtime") or op.startswith("s_memrealtime"):
        d["kind"] = "smem"; d["W"] = regs_of(ops[0]); d["Rd"] = rs(ops[1:]); d["load"] = True
    elif op == "s_waitcnt":
        d["kind"] = "wait"; d["w0"] = w0
        m = re.search(r"vmcnt\((\d+)\)", line); d["vm"] = int(m.group(1)) if m else None
        m = re.search(r"lgkmcnt\((\d+)\)", line); d["lgkm"] = int(m.group(1)) if m else None
    elif op == "s_nop":
        d["kind"] = "nop"; d["n"] = int(ops[0], 0) + 1
    elif op.startswith("s_cmp") or op.startswith("s_cbranch") or op in ("s_branch", "s_barrier", "s_endpgm", "s_setprio", "s_sleep"):
        d["kind"] = "salu"; d["Rd"] = rs(ops)
    elif op.startswith("s_"):
        d["kind"] = "salu"; d["W"] = regs_of(ops[0]); d["Rd"] = rs(ops[1:])
        if "saveexec" in op:
            d["W"] |= {("exec", 0)}
    elif op.startswith("v_"):
        d["kind"] = "valu"
        if op.startswith("v_cmp"):
            d["W"] = regs_of(ops[0]); d["Rd"] = rs(ops[1:])
        elif op.startswith("v_permlane32_swap") or op.startswith("v_permlane16_swap"):
            d["W"] = rs(ops[:2]); d["Rd"] = rs(ops[:2]); d["perml"] = True
        elif op.startswith("v_readfirstlane") or op.startswith("v_readlane"):
            d["W"] = regs_of(ops[0]); d["Rd"] = rs(ops[1:]); d["rdlane"] = True
        elif op.startswith("v_add_co") or op.startswith("v_sub_co") or op.startswith("v_addc_co"):
            d["W"] = rs(ops[:2]); d["Rd"] = rs(ops[2:])
        else:
            d["W"] = regs_of(ops[0]); d["Rd"] = rs(ops[1:])
            if op.startswith("v_fmac") or op.startswith("v_dot2c") or op.startswith("v_pk_fmac") or "UNUSED_PRESERVE" in line:
                d["Rd"] |= d["W"]
            if op.startswith("v_cndmask") and len(ops) == 3:
                d["Rd"] |= {("vcc", 0)}
        d["trans"] = op.replace("_e32", "").replace("_e64", "") in TRANS
        d["dot"] = op.startswith("v_dot")
        d["dpp"] = ("row_" in line or "quad_perm" in line or "wave_" in line)
    else:
        raise ValueError("unknown instr: " + line)
    return d

def expand(lines, reps=2):
    out = []
    stack = []
    cur = out
    for l in lines:
        if l.startswith(";LOOP"):
            stack.append(cur); cur = []
        elif l.startswith(";ENDLOOP"):
            body = cur; cur = stack.pop()
            for _ in range(reps):
                cur.extend(body)
        elif l.startswith(";") or l.endswith(":") or l.startswith("."):
            continue
        else:
            cur.append(l)
    return out

def check(lines, name="", reps=3):
    ins = [parse(l) for l in expand(lines, reps)]
    errs = []
    pos = []
    p = 0
    for d in ins:
        pos.append(p)
        p += d["n"] if d["kind"] == "nop" else 1
    N = len(ins)
    def dist(i, j):
        return pos[j] - pos[i] - (ins[i]["n"] if ins[i]["kind"] == "nop" else 1)
    isv = lambda s: {r for r in s if r[0] in "va"}
    iss = lambda s: {r for r in s if r[0] == "s" or r[0] == "vcc"}
    for j, c in enumerate(ins):
        for i in range(j - 1, max(-1, j - 24), -1):
            a = ins[i]
            dd = dist(i, j)
            if dd >= 20:
                break
            need = 0; why = ""
            if a["kind"] == "valu":
                wv = isv(a["W"])
                if c["kind"] == "mfma" and a["op"].startswith("v_pk_") and dd == 0:
                    errs.append(f"[{name}] pk op directly before mfma (measured lost write)\n    {a['text']}\n    {c['text']}")
                if c["kind"] == "mfma" and wv & c["Rd"]:
                    need, why = (3 if a.get("dot") else 2), "valu->mfma"
                if c["kind"] == "valu":
                    if a.get("trans") and not c.get("trans") and wv & c["Rd"]:
                        need, why = max(need, 1), "trans->valu"
                    if a.get("dot") and (wv & (c["Rd"] | c["W"])) and a["op"] != c["op"]:
                        need, why = max(need, 3), "dot->other"
                    if c.get("perml") and wv & c["Rd"]:
                        need, why = max(need, 2), "valu->permlane"
                    if c.get("dpp") and wv & c["Rd"]:
                        need, why = max(need, 2), "valu->dpp"
                    if c.get("rdlane") and wv & c["Rd"]:
                        need, why = max(need, 1), "valu->readlane"
                    if iss(a["W"]) & c["Rd"]:
                        need, why = max(need, 2), "valu sgpr->valu"
                if a.get("dot") and c["kind"] in ("vmem", "ds") and wv & c["Rd"]:
                    need, why = max(need, 3), "dot->mem"
                if a.get("trans") and c["kind"] in ("vmem","ds") and wv & c["Rd"]:
                    need, why = max(need, 1), "trans->mem"
                if c["kind"] == "vmem" and iss(a["W"]) & c["Rd"]:
                    need, why = max(need, 5), "valu sgpr->vmem"
                if c["kind"] in ("salu",) and iss(a["W"]) & c["Rd"]:
                    need, why = max(need, 1), "valu sgpr->salu(pad)"
            if a["kind"] == "mfma":
                ps = a["passes"]
                big = {2: 5, 4: 8, 8: 12}[ps]
                if c["kind"] == "mfma":
                    if a["W"] & c["AB"]:
                        need, why = big, "mfma D->AB"
                    elif a["W"] & c["srcC"]:
                        if a["W"] == c["srcC"] and c["passes"] == ps:
                            need = 2 if ps == 2 else 0; why = "chain"
                        else:
                            need, why = {2: 4, 4: 6, 8: 10}[ps], "mfma D->C overlap"
                    elif a["W"] & c["W"]:
                        need, why = {2: 4, 4: 6, 8: 10}[ps], "mfma WAW(guess)"
                elif c["kind"] in ("valu", "vmem", "ds"):
                    if a["W"] & (c["Rd"] | c["W"]):
                        need, why = big, "mfma D->valu/mem"
                    if c["kind"] == "valu" and a["srcC"] & c["W"]:
                        need, why = max(need, {2: 1, 4: 3, 8: 7}[ps]), "mfma C WAR"
            if a["kind"] == "salu" and ("m0", 0) in a["W"] and c.get("dma"):
                need, why = 1, "m0->dma"
            if a["kind"] == "vmem" and a.get("store") and a.get("wide") and c["kind"] in ("valu",) and a["data"] & c["W"]:
                need, why = 2, "store data WAR"
            if a["kind"] == "vmem" and a.get("store") and a.get("wide") and c["kind"] in ("ds", "vmem", "mfma") and a["data"] & c["W"]:
                need, why = 1, "store data WAR"
            if a["kind"] in ("valu", "salu") and ("exec", 0) in a["W"] and a["kind"] == "valu" and c["kind"] == "mfma":
                need, why = 4, "exec->mfma"
            if need > dd:
                errs.append(f"[{name}] hazard {why}: need {need} have {dd}\n    {a['text']}\n    {c['text']}")
    vm = []
    lg = []
    for j, c in enumerate(ins):
        if c["kind"] == "wait":
            if c.get("w0"):
                vm = vm[:-c['w0']]
                continue
            if c["vm"] is not None:
                vm = vm[len(vm) - c["vm"]:] if c["vm"] > 0 and len(vm) > c["vm"] else (vm if c["vm"] > 0 else [])
            if c["lgkm"] is not None:
                if c["lgkm"] == 0:
                    lg = []
                else:
                    if any(x[2] for x in lg):
                        errs.append(f"[{name}] counted lgkmcnt with smem outstanding: {c['text']}")
                    lg = lg[len(lg) - c["lgkm"]:] if len(lg) > c["lgkm"] else lg
            continue
        touched = c["Rd"] | c["W"]
        for (W, t) in vm:
            if W & touched:
                errs.append(f"[{name}] vm RAW/WAW unwaited:\n    {t}\n    {c['text']}")
        for (W, t, _) in lg:
            if W & touched:
                errs.append(f"[{name}] lgkm RAW/WAW unwaited:\n    {t}\n    {c['text']}")
        if c["kind"] == "vmem":
            vm.append((c["W"], c["text"]))
            if len(vm) > 63:
                errs.append(f"[{name}] >63 vm outstanding at {c['text']}")
        elif c["kind"] == "ds":
            lg.append((c["W"], c["text"], False))
        elif c["kind"] == "smem":
            lg.append((c["W"], c["text"], True))
    seen = set(); u = []
    for e in errs:
        if e not in seen:
            seen.add(e); u.append(e)
    return u
```

```python
import sys, math, re, struct
from asmlib import *

MB = 1 << 20
QF = 0 * MB; KF = 4 * MB; VF = 8 * MB
OF = 12 * MB
AF = 16 * MB
HF = 32 * MB
ST = 36 * MB
CS = 37 * MB
RA = 37 * MB + 65536
CQ = RA + 16384
FLG = 38 * MB
FSM, FSN, F1, F2, FC, F3, F4, F5 = [FLG + 128 * k for k in (0, 16, 32, 48, 56, 64, 72, 80)]
FLG_BYTES = 128 * 128
XP = 40 * MB
WSZ = 48 * MB
STAMP = 200 * MB
OOB = 0x7ff00000
EPS = 1e-5
SC = "sc1"
STAMPS = False
FORCE_SLOW = False
DBG = None
SPIN_MAX = 1 << 22
def f32(x):
    return "0x%08x" % struct.unpack("<I", struct.pack("<f", x))[0]
def mf32(d, a, b, c=None):
    return f"v_mfma_f32_32x32x16_bf16 {d}, {a}, {b}, {c if c is not None else d}"
def mf16(d, a, b, c=None):
    return f"v_mfma_f32_16x16x32_bf16 {d}, {a}, {b}, {c if c is not None else d}"

S_WG, S_XCD, S_IDX, S_W = "s2", "s3", "s4", "s5"
WS = "s[8:11]"; SA = "s[12:15]"; SB = "s[16:19]"; SCc = "s[20:23]"
P_X, P_WQKV, P_WO, P_BX, P_WG, P_WU, P_WD, P_OUT, P_DBG, P_WS = 64, 66, 68, 70, 72, 74, 76, 78, 80, 82
lane, vl, t16, g4, r32, hh, vst = (R("v", i) for i in range(1, 8))
V0 = 8

class Prog(Asm):
    def it(self, name):
        self.lines.append(f";ITER {name}")
    def endit(self):
        self.lines.append(";ENDITER")
    def resolve(self):
        ops = []
        dso = []
        out = []
        for l in self.lines:
            m = re.search(r"lgkmcnt\(@([^)]*)\)", l)
            if m:
                idx = [i for i, t in enumerate(dso) if t == m.group(1)]
                assert idx, f"ds tag {m.group(1)} not issued"
                l = l.replace(m.group(0), f"lgkmcnt({min(len(dso) - 1 - idx[-1], 15)})")
            if l.startswith("ds_"):
                m = re.search(r";@(\S+)", l)
                dso.append(m.group(1) if m else None)
                l = l.split(";@")[0].strip()
            m = re.search(r"vmcnt\(@([^)]*)\)", l)
            if m:
                tags = m.group(1).split("&")
                n = 10 ** 9
                for tg in tags:
                    idx = [i for i, t in enumerate(ops) if t == tg]
                    assert idx, f"tag {tg} not issued before wait"
                    n = min(n, len(ops) - 1 - idx[-1])
                l = l.replace(m.group(0), f"vmcnt({min(n, 63)})")
            if re.match(r"(buffer_|global_)", l):
                m = re.search(r";@(\S+)", l)
                if not (m and m.group(1) == "skip"):
                    ops.append(m.group(1) if m else None)
                l = l.split(";@")[0].strip()
            out.append(l)
        self.lines = out
    def fold(self, counter="s24"):
        blocks = []
        cur = None
        for l in self.lines:
            if l.startswith(";ITER"):
                cur = (l.split()[1], [])
            elif l.startswith(";ENDITER"):
                blocks.append(("it", cur[0], cur[1])); cur = None
            elif cur is not None:
                cur[1].append(l)
            else:
                blocks.append(("line", l))
        strip = lambda L: [re.sub(r"vmcnt\(\d+\)", "vmcnt()", x) for x in L]
        nums = lambda L: [int(m) for x in L for m in re.findall(r"vmcnt\((\d+)\)", x)]
        for i in range(len(blocks) - 2, -1, -1):
            b, c = blocks[i], blocks[i + 1]
            if b[0] == "it" and c[0] == "it" and b[1] == c[1] and b[2] != c[2] and strip(b[2]) == strip(c[2]):
                if all(y <= x for x, y in zip(nums(b[2]), nums(c[2]))):
                    blocks[i] = ("it", b[1], list(c[2]))
                else:
                    print("   cannot unify", b[1], nums(b[2]), nums(c[2]))
        out = []
        i = 0; k = 0
        while i < len(blocks):
            b = blocks[i]
            if b[0] == "line":
                out.append(b[1]); i += 1; continue
            j = i
            while j + 1 < len(blocks) and blocks[j + 1][0] == "it" and blocks[j + 1][1] == b[1] and blocks[j + 1][2] == b[2]:
                j += 1
            n = j - i + 1
            if n == 1:
                out += b[2]
                print(f"  iter {b[1]}: single ({len(b[2])} instrs)")
            else:
                k += 1
                print(f"  iter {b[1]}: loop x{n} ({len(b[2])} instrs)")
                out += [f"s_mov_b32 {counter}, {n}", ".p2align 4", f"L_{b[1]}_{k}:", ";LOOP"] + b[2] + \
                       [f"s_sub_u32 {counter}, {counter}, 1", f"s_cmp_lg_u32 {counter}, 0", f"s_cbranch_scc1 L_{b[1]}_{k}", ";ENDLOOP"]
            i = j + 1
        self.lines = out

def srd(a, s, ptr, nbytes):
    a(f"s_mov_b32 s{s}, s{ptr}\ns_mov_b32 s{s+1}, s{ptr+1}\ns_mov_b32 s{s+2}, {nbytes}\ns_mov_b32 s{s+3}, 0x20000")

def stamp(a, k):
    if not STAMPS:
        return
    a(f"s_memrealtime s[90:91]\ns_memtime s[88:89]\ns_waitcnt lgkmcnt(0)")
    a(f"v_writelane_b32 {vst}, s90, {k}\nv_writelane_b32 {vst}, s88, {32+k}")

def spread(spine, fillers, maxper=None, start=0, end=None):
    n = len(spine); end = n if end is None else end
    g = end - start
    cnt = [0] * n
    for i in range(len(fillers)):
        cnt[start + (i * g) // len(fillers)] += 1
    return interleave(spine, fillers, per_gap=cnt)

tails = []
def is_mem(x):
    return any(l.startswith(("buffer_", "global_", "ds_")) for l in x.split("\n"))
def sched(spine, lds, other, lds_end=None, first=0):
    n = len(spine)
    lds_end = n - 4 if lds_end is None else lds_end
    nm = sum(is_mem(x) for x in other)
    for lcap in range(1, 40):
        for mcap in (1, 2, 3):
            L = list(lds); O = list(other)
            seq = []; cnt = []; done_m = 0
            for g in range(n):
                c = 0; light = 0; mem = 0
                if g >= first:
                    while True:
                        must_l = L and (len(L) > (lds_end - g - 1) * mcap + (mcap - mem - 1))
                        if O and not is_mem(O[0]) and light < lcap:
                            x = O.pop(0); seq.append(x); c += 1; light += x.count("\n") + 1
                        elif mem < mcap and O and is_mem(O[0]) and not must_l and (done_m * (n - first) <= (g - first) * nm or not L):
                            seq.append(O.pop(0)); c += 1; mem += 1; done_m += 1
                        elif mem < mcap and L:
                            seq.append(L.pop(0)); c += 1; mem += 1
                        else:
                            break
                cnt.append(c)
            if not L and not O:
                return interleave(spine, seq, per_gap=cnt)
    raise RuntimeError("sched failed")

pfn = [0]
def codepf(a, l0, l1, vt, dist=True):
    if not CODEPF:
        return
    a(f"s_add_u32 s56, s58, {l0}-L_base\ns_addc_u32 s57, s59, 0")
    a(f"v_and_b32 {vt}, 7, v0\nv_lshl_add_u32 {vt}, {vt}, 5, {S_IDX}\nv_lshlrev_b32 {vt}, 7, {vt}\nv_min_u32 {vt}, {l1}-{l0}-4, {vt}\nglobal_load_dword {vt}, {vt}, s[56:57]")
CODEPF = True
P1MODE = 2
NTS = 10
def w0sel(a, dst, val):
    a(f"s_cmp_eq_u32 {S_W}, 0\ns_cselect_b32 {dst}, {val}, {OOB}")
def publish(a, offs, tag, tmp):
    a(f"v_mov_b32 {tmp[0]}, 1\nv_mov_b32 {tmp[1]}, 0")
    for o in offs:
        w0sel(a, o, o)
    a(f"s_waitcnt vmcnt(@{tag})\ns_barrier")
    for o in offs:
        a(f"buffer_store_dword {tmp[0]}, {tmp[1]}, {WS}, {o} offen {SC}")
def poll(a, name, vaddr, t):
    a(f"s_cmp_lg_u32 {S_W}, 0\ns_cbranch_scc1 L_{name}_ok\ns_mov_b32 s26, {SPIN_MAX}")
    a.label(f"L_{name}_poll")
    a(f"buffer_load_dword {t}, {vaddr}, {WS}, 0 offen {SC} ;@skip\ns_waitcnt vmcnt(0) ;wave0")
    a(f"v_cmp_eq_u32 vcc, 0, {t}\ns_sub_u32 s26, s26, 1\ns_cselect_b32 s27, 0, vcc_lo\ns_cselect_b32 s28, 0, vcc_hi")
    a(f"s_or_b32 s27, s27, s28\ns_cbranch_scc0 L_{name}_ok\ns_sleep 1\ns_branch L_{name}_poll")
    a.label(f"L_{name}_ok")
    a("s_barrier")
def lazy_check(name, reg, vaddr, srdn, restore):
    t = Asm()
    t.label(f"L_{name}_spin")
    t(f"s_mov_b32 s26, {SPIN_MAX}")
    t.ext(restore)
    t.label(f"L_{name}_spin2")
    t(f"s_sleep 2\nbuffer_load_dword {reg}, {vaddr}, {srdn}, 0 offen {SC}\ns_waitcnt vmcnt(0)\nv_cmp_eq_u32 vcc, 0, {reg}")
    t(f"s_sub_u32 s26, s26, 1\ns_cbranch_scc1 L_{name}_back\ns_cmp_lg_u64 vcc, 0\ns_cbranch_scc1 L_{name}_spin2\ns_branch L_{name}_back")
    tails.append(t)
    return f"v_cmp_eq_u32 vcc, 0, {reg}\ns_nop 1\ns_cmp_lg_u64 vcc, 0\ns_cbranch_scc1 L_{name}_spin\nL_{name}_back:"

def xsum16_32(a, x, y):
    a(f"v_mov_b32 {y}, {x}\ns_nop 1\nv_permlane16_swap_b32 {x}, {y}\nv_add_f32 {x}, {x}, {y}")
    a(f"v_mov_b32 {y}, {x}\ns_nop 1\nv_permlane32_swap_b32 {x}, {y}\nv_add_f32 {x}, {x}, {y}")

def entry(a):
    a("s_getpc_b64 s[58:59]\nL_base:")
    a(f"s_load_dwordx16 s[64:79], s[0:1], 0\ns_load_dwordx4 s[80:83], s[0:1], 64")
    a(f"v_lshrrev_b32 {lane}, 6, v0\nv_and_b32 {r32}, 31, v0\nv_readfirstlane_b32 {S_W}, {lane}\nv_and_b32 {lane}, 63, v0")
    a(f"v_lshlrev_b32 {vl}, 4, {lane}\nv_and_b32 {t16}, 15, {lane}\nv_lshrrev_b32 {g4}, 4, {lane}\nv_lshrrev_b32 {hh}, 5, {lane}")
    a(f"s_and_b32 {S_XCD}, {S_WG}, 7\ns_lshr_b32 {S_IDX}, {S_WG}, 3")
    if STAMPS:
        a(f"v_mov_b32 {vst}, 0")

def phase1(a):
    XS, HS, WB, NW = 16384, 12288, 65536, 7
    TAB = WB + NW * HS
    va = Alloc("v", V0, 256); aa = Alloc("a", 0, 256)
    vxd = va(4); vwd = va(3); xa = va(2); wa = [va(2), va(2)]
    t0, t1, t2, t3 = va(), va(), va(), va()
    acc = [[[va(4, 4) for dt in range(2)] for sg in range(3)] for mt in range(4)]
    Xf = [[aa(4, 4) for mt in range(4)] for b in range(2)]
    Wf = [[[aa(4, 4) for dt in range(2)] for sg in range(3)] for b in range(2)]
    sx = va(16, 4)
    sacc = va(16, 4)
    sw = aa(32, 4); ident = aa(4, 4)
    u = va(8, 4)
    cq = va(16, 4); cv = va(2); dbg = va()
    MI, NJ, WM, WN = "s32", "s33", "s34", "s35"
    sX, sW, sDW, sRW, mX, mW = "s36", "s37", "s38", "s39", "s40", "s41"
    stamp(a, 0)
    a(f"s_and_b32 {MI}, {S_XCD}, 1\ns_lshl_b32 {MI}, {MI}, 3\ns_and_b32 s29, {S_IDX}, 7\ns_add_u32 {MI}, {MI}, s29")
    a(f"s_lshr_b32 {NJ}, {S_XCD}, 1\ns_lshl_b32 {NJ}, {NJ}, 2\ns_lshr_b32 s29, {S_IDX}, 3\ns_add_u32 {NJ}, {NJ}, s29")
    a(f"s_and_b32 {WM}, {S_W}, 1\ns_lshr_b32 {WN}, {S_W}, 1")
    a(f"v_lshrrev_b32 {t0}, 3, {lane}\ns_lshl_b32 s29, {MI}, 7\ns_lshl_b32 s28, {S_W}, 5\ns_add_u32 s29, s29, s28")
    a(f"v_add_u32 {t1}, s29, {t0}\nv_lshlrev_b32 {t1}, 11, {t1}")
    a(f"v_and_b32 {t2}, 7, {lane}\nv_xor_b32 {t2}, {t2}, {g4}\nv_xor_b32 {t3}, 4, {t2}")
    a(f"v_lshl_add_u32 {vxd[0]}, {t2}, 4, {t1}\nv_lshl_add_u32 {t3}, {t3}, 4, {t1}")
    a(f"v_add_u32 {vxd[1]}, {15360}, {t3}\nv_add_u32 {vxd[2]}, {2*15360}, {vxd[0]}\nv_add_u32 {vxd[3]}, {3*15360}, {t3}")
    a(f"v_mul_u32_u24 {t0}, 6144, {t0}\nv_and_b32 {t1}, 1, {g4}\nv_lshlrev_b32 {t1}, 1, {t1}\nv_and_b32 {t2}, 7, {lane}\nv_xor_b32 {t1}, {t1}, {t2}")
    a(f"s_lshl_b32 s30, {NJ}, 7\ns_mul_i32 s31, {S_W}, 3")
    for i in range(3):
        a(f"s_add_u32 s28, s31, {i}\ns_lshr_b32 s29, s28, 2\ns_lshl_b32 s29, s29, 11\ns_add_u32 s29, s29, s30\ns_and_b32 s28, s28, 3")
        a(f"s_and_b32 s27, s28, 1\ns_lshl_b32 s27, s27, 2\ns_mul_i32 s28, s28, {8*6144}\ns_add_u32 s28, s28, s29\ns_sub_u32 s28, s28, {1024*i}")
        a(f"v_xor_b32 {t2}, s27, {t1}\nv_lshl_add_u32 {t2}, {t2}, 4, {t0}\nv_add_u32 {vwd[i]}, s28, {t2}")
    a("s_waitcnt lgkmcnt(0)")
    srd(a, 12, P_X, 2048 * 2048)
    srd(a, 16, P_WQKV, 1024 * 6144)
    a(f"s_mov_b32 {sX}, 0\ns_mov_b32 {sW}, 0")
    a(f"s_lshl_b32 {mX}, {S_W}, 12\ns_mul_i32 {mW}, {S_W}, 3072\ns_add_u32 {mW}, {mW}, {WB}")
    def xdma(slab, rng=range(4)):
        o = [f"s_add_u32 m0, {mX}, {(slab%4)*XS}", f"s_mov_b32 {sX}, {128*slab}"]
        o += [f"buffer_load_dwordx4 {vxd[i]}, {SA}, {sX} offen offset:{i*1024} lds ;@x{slab}" for i in rng]
        return o
    def wdma(hs):
        o = [f"s_add_u32 m0, {mW}, {(hs%NW)*HS}", f"s_mov_b32 {sW}, {32*6144*hs}"]
        o += [f"buffer_load_dwordx4 {vwd[i]}, {SB}, {sW} offen offset:{i*1024} lds ;@w{hs}" for i in range(3)]
        return o
    def dmas(sig):
        i, s = divmod(sig, 2)
        o = []
        if P1MODE == 0:
            if sig == 0:
                return xdma(2) + wdma(4) + wdma(5)
            if sig == 1:
                return wdma(6) + wdma(7) + xdma(3)
            if sig == 2:
                return wdma(8) + xdma(4)
        elif P1MODE == 1:
            if sig == 0:
                return wdma(6) + xdma(3)
        else:
            if sig == 0:
                return xdma(2) + wdma(4) + wdma(5)
            if sig == 1:
                return wdma(6) + wdma(7) + xdma(3)
            if sig == 2:
                return wdma(8) + xdma(4)
        if s == 1:
            if 2 * i + 7 < 32: o += wdma(2 * i + 7)
            if i + 4 < 16: o += xdma(i + 4, range(2))
        else:
            if 2 * i + 6 < 32: o += wdma(2 * i + 6)
            if i + 3 < 16: o += xdma(i + 3, range(2, 4))
        return o
    def side_loads():
        a(f"s_lshl_b32 s42, {MI}, 7\ns_lshl_b32 s28, {NJ}, 3\ns_add_u32 s42, s42, s28\ns_lshl_b32 s28, {S_W}, 1\ns_add_u32 s42, s42, s28")
        a(f"v_lshlrev_b32 {t0}, 11, {hh}\nv_lshl_add_u32 {t0}, {r32}, 4, {t0}\ns_lshl_b32 s28, s42, 11")
        for i in range(4):
            a(f"buffer_load_dwordx4 {sx[4*i:4*i+4]}, {t0}, {SA}, s28 offen offset:{512*i} ;@sx")
        a(f"v_lshrrev_b32 {t0}, 2, {r32}\nv_mul_u32_u24 {t0}, 6144, {t0}\nv_and_b32 {t1}, 3, {lane}\nv_lshl_add_u32 {t0}, {t1}, 5, {t0}\nv_lshl_add_u32 {t0}, {hh}, 4, {t0}")
        a(f"s_and_b32 s28, {MI}, 3\ns_lshl_b32 s28, s28, 2\ns_add_u32 s28, s28, {S_W}\ns_mul_i32 s28, s28, {64*6144}")
        a(f"s_lshr_b32 s43, {MI}, 2\ns_lshl_b32 s29, s43, 11\ns_add_u32 s28, s28, s29\ns_add_u32 s28, s28, s30\ns_cmp_eq_u32 s43, 3\ns_cselect_b32 s28, {OOB}, s28")
        for i in range(8):
            a(f"buffer_load_dwordx4 {sw[4*i:4*i+4]}, {t0}, {SB}, s28 offen ;@sw\ns_add_u32 s28, s28, {8*6144}")
    def resets():
        srd(a, 8, P_WS, WSZ)
        srd(a, 20, P_DBG, 256)
        a(f"s_lshl_b32 s28, {S_W}, 12\ns_add_u32 s28, s28, {FLG}\ns_cmp_eq_u32 {S_WG}, 0\ns_cselect_b32 s28, s28, {OOB}")
        for r in range(4):
            a(f"v_mov_b32 {cq[r]}, 0\nv_mov_b32 {cq[4+r]}, -1")
        for i in range(4):
            a(f"buffer_store_dwordx4 {cq[0:4]}, {vl}, {WS}, s28 offen offset:{1024*i} {SC} ;@rst")
    if P1MODE == 0:
        if DBG == "p0": stamp(a, 16)
        a.ext(xdma(0) + wdma(0) + wdma(1))
        if DBG == "p0": stamp(a, 17)
        codepf(a, "L_P1", "L_P2", dbg)
        resets()
        if DBG == "p0": stamp(a, 18)
        a.ext(xdma(1) + wdma(2) + wdma(3))
        if DBG == "p0": stamp(a, 19)
        side_loads()
        if DBG == "p0": stamp(a, 20)
    elif P1MODE == 2:
        if DBG == "p0": stamp(a, 16)
        a.ext(xdma(0) + wdma(0) + wdma(1))
        if DBG == "p0": stamp(a, 17)
        a(f"v_min_u32 {t0}, {2*NTS-1}, {lane}\nv_lshrrev_b32 {t1}, 1, {t0}\nv_and_b32 {t0}, 1, {t0}\ns_lshl_b32 s28, {S_WG}, 3\ns_lshl_b32 s29, {S_W}, 1\ns_add_u32 s28, s28, s29")
        a(f"v_add_u32 {t0}, s28, {t0}\nv_lshlrev_b32 {t0}, 11, {t0}\nv_lshl_add_u32 {t0}, {t1}, 7, {t0}")
        a(f"buffer_load_dword {cv[0]}, {t0}, {SA}, 0 offen offset:128")
        a(f"v_min_u32 {t0}, {3*NTS-1}, {lane}\nv_mul_u32_u24 {t1}, 43, {t0}\nv_lshrrev_b32 {t1}, 7, {t1}\nv_mul_u32_u24 {t2}, 3, {t1}\nv_sub_u32 {t0}, {t0}, {t2}")
        a(f"s_mul_i32 s28, {S_WG}, 12\ns_mul_i32 s29, {S_W}, 3\ns_add_u32 s28, s28, s29\nv_add_u32 {t0}, s28, {t0}")
        a(f"s_mov_b32 s28, {(1<<32)//48 + 1}\nv_mul_hi_u32 {t2}, {t0}, s28\nv_lshl_add_u32 {t1}, {t1}, 6, {t2}\nv_mul_u32_u24 {t2}, 48, {t2}\nv_sub_u32 {t0}, {t0}, {t2}")
        a(f"v_mul_u32_u24 {t1}, 6144, {t1}\nv_lshl_add_u32 {t0}, {t0}, 7, {t1}\ns_mov_b32 s28, {64*6144}")
        a(f"buffer_load_dword {cv[1]}, {t0}, {SB}, s28 offen")
        codepf(a, "L_P1", "L_P2", dbg)
        if DBG == "p0": stamp(a, 18)
        a.ext(xdma(1) + wdma(2) + wdma(3))
        if DBG == "p0": stamp(a, 19); stamp(a, 20)
        srd(a, 8, P_WS, WSZ)
        srd(a, 20, P_DBG, 256)
    else:
        side_loads()
        codepf(a, "L_P1", "L_P2", dbg)
        a.ext(xdma(0) + wdma(0) + wdma(1))
        resets()
        a.ext(xdma(1) + wdma(2) + wdma(3) + xdma(2) + wdma(4) + wdma(5))
    a(f"v_lshrrev_b32 {t0}, 1, {t16}\nv_xor_b32 {t0}, {t0}, {g4}\ns_lshl_b32 s28, {WM}, 13\nv_lshlrev_b32 {t1}, 7, {t16}\nv_add_u32 {t1}, s28, {t1}")
    a(f"v_lshl_add_u32 {xa[0]}, {t0}, 4, {t1}\nv_xor_b32 {xa[1]}, 64, {xa[0]}")
    a(f"v_lshrrev_b32 {t0}, 2, {lane}\nv_and_b32 {t0}, 3, {t0}\nv_lshl_add_u32 {t1}, {g4}, 3, {t0}\nv_lshlrev_b32 {t1}, 7, {t1}")
    a(f"v_lshrrev_b32 {t0}, 1, {t0}\nv_and_b32 {t2}, 1, {g4}\nv_lshl_add_u32 {t0}, {t2}, 1, {t0}\ns_lshl_b32 s28, {WN}, 1\nv_xor_b32 {t0}, s28, {t0}")
    a(f"v_lshl_add_u32 {t1}, {t0}, 5, {t1}\nv_and_b32 {t0}, 3, {lane}\nv_lshl_add_u32 {t1}, {t0}, 3, {t1}\nv_add_u32 {wa[0][0]}, {WB}, {t1}\nv_xor_b32 {wa[0][1]}, 32, {wa[0][0]}")
    a(f"v_add_u32 {wa[1][0]}, {4*HS}, {wa[0][0]}\nv_add_u32 {wa[1][1]}, {4*HS}, {wa[0][1]}")
    a(f"v_lshrrev_b32 {t0}, 3, {r32}\nv_and_b32 {t1}, 7, {r32}\nv_and_b32 {t2}, 1, {t1}\nv_lshlrev_b32 {t2}, 4, {t2}\nv_mov_b32 {t3}, 0x3f80\nv_lshlrev_b32 {t3}, {t2}, {t3}")
    a(f"v_cmp_eq_u32 vcc, {t0}, {hh}\nv_lshrrev_b32 {t1}, 1, {t1}\ns_nop 0\nv_cndmask_b32 {t3}, 0, {t3}, vcc")
    for r in range(4):
        a(f"v_cmp_eq_u32 vcc, {r}, {t1}\ns_nop 1\nv_cndmask_b32 {t2}, 0, {t3}, vcc\nv_accvgpr_write_b32 {ident[r]}, {t2}")
    def xreads(sig):
        i, s = divmod(sig, 2)
        return [f"ds_read_b128 {Xf[sig%2][mt]}, {xa[s]} offset:{(i%4)*XS + mt*2048}" for mt in range(4)]
    def wreads(sig):
        sl = sig % NW
        return [f"ds_read_b64_tr_b16 {Wf[sig%2][sg][dt][2*j:2*j+2]}, {wa[sl//4][dt]} offset:{(sl%4)*HS + sg*4096 + 512*j}" for sg in range(3) for dt in range(2) for j in range(2)]
    stamp(a, 1)
    a("s_waitcnt vmcnt(@w1&x0)")
    if DBG == "p0": stamp(a, 21)
    a("s_barrier")
    a.ext(xreads(0) + wreads(0))
    side = {k: [] for k in range(32)}
    SH = 4 if P1MODE == 2 else 0
    if P1MODE == 2:
        real = a
        a = Asm(); side_loads(); L_ = a.lines
        grp = []
        for l in L_:
            if l.startswith("s_cselect"): grp[-1] += "\n" + l
            else: grp.append(l)
        h_ = (len(grp) + 2) // 3
        for k in range(3): side[3 + k] += grp[k * h_:(k + 1) * h_]
        a = Asm(); resets(); L_ = a.lines[8:]
        grp = []
        for l in L_:
            if l.startswith("s_cselect"): grp[-1] += "\n" + l
            else: grp.append(l)
        side[6] += grp
        a = real
    ss, sq, lo, hi = u[0], u[1], u[2], u[3]
    q = ["s_waitcnt vmcnt(@sw)", f"v_mov_b32 {ss}, 0", f"v_mov_b32 {sq}, 0"]
    q += [mf32(sacc, sw[0:4], ident, 0)] + [mf32(sacc, sw[4*i:4*i+4], ident) for i in range(1, 8)]
    for r in range(16):
        q += [f"v_lshlrev_b32 {lo}, 16, {sx[r]}", f"v_and_b32 {hi}, 0xffff0000, {sx[r]}", f"v_add_f32 {ss}, {ss}, {lo}", f"v_fmac_f32 {sq}, {lo}, {lo}",
              f"v_add_f32 {ss}, {ss}, {hi}", f"v_fmac_f32 {sq}, {hi}, {hi}"]
    for cb in range(4):
        q += [f"v_add_f32 {sacc[cb]}, {sacc[cb]}, {sacc[4+cb]}", f"v_add_f32 {sacc[8+cb]}, {sacc[8+cb]}, {sacc[12+cb]}"]
    for cb in range(4):
        q += [f"v_add_f32 {sacc[cb]}, {sacc[cb]}, {sacc[8+cb]}"]
    for cb in range(4):
        q += [f"v_mov_b32 {sacc[4+cb]}, {sacc[cb]}"]
    dpp = lambda x, m: f"v_add_f32_dpp {x}, {x}, {x} {m} row_mask:0xf bank_mask:0xf"
    q += [dpp(ss, "quad_perm:[1,0,3,2]"), dpp(sq, "quad_perm:[1,0,3,2]")]
    q += [f"v_permlane32_swap_b32 {sacc[cb]}, {sacc[4+cb]}" for cb in range(2)]
    q += [dpp(ss, "quad_perm:[2,3,0,1]"), dpp(sq, "quad_perm:[2,3,0,1]")]
    q += [f"v_permlane32_swap_b32 {sacc[cb]}, {sacc[4+cb]}" for cb in range(2, 4)]
    q += [dpp(ss, "row_half_mirror"), dpp(sq, "row_half_mirror")]
    q += [f"v_add_f32 {sacc[cb]}, {sacc[cb]}, {sacc[4+cb]}" for cb in range(2)]
    q += [dpp(ss, "row_mirror"), dpp(sq, "row_mirror")]
    q += [f"v_add_f32 {sacc[cb]}, {sacc[cb]}, {sacc[4+cb]}" for cb in range(2, 4)]
    q += [f"v_mov_b32 {lo}, {ss}", f"v_mov_b32 {hi}, {sq}", f"s_lshl_b32 s28, {S_W}, 8", f"s_add_u32 s28, s28, {TAB}", f"v_lshl_add_u32 {t0}, {t16}, 4, s28", f"v_and_b32 {t1}, 16, {lane}", f"v_lshl_add_u32 {t0}, {t1}, 6, {t0}"]
    q += [f"v_permlane16_swap_b32 {ss}, {lo}", f"v_permlane16_swap_b32 {sq}, {hi}",
          f"ds_write_b128 {t0}, {sacc[0:4]}"]
    q += [f"v_add_f32 {ss}, {ss}, {lo}", f"v_add_f32 {sq}, {sq}, {hi}", f"v_mul_f32 {ss}, {f32(-1/1024)}, {ss}", f"v_mul_f32 {sq}, {f32(1/1024)}, {sq}",
          f"v_fma_f32 {sq}, -{ss}, {ss}, {sq}", f"v_max_f32 {sq}, 0, {sq}", f"v_add_f32 {sq}, {f32(EPS)}, {sq}", f"v_rsq_f32 {sq}, {sq}",
          f"v_lshlrev_b32 {t0}, 2, {hh}", f"s_lshl_b32 s28, s42, 2", f"s_add_u32 s28, s28, {RA}",
          f"buffer_store_dword {sq}, {t0}, {WS}, s28 offen {SC}", f"s_add_u32 s28, s28, 8192", f"buffer_store_dword {ss}, {t0}, {WS}, s28 offen {SC}"]
    s0 = {0: 3, 1: 0, 2: 7}[P1MODE]; s1 = 9 + SH
    per = -(-len(q) // (s1 - s0))
    for k in range(s1 - s0):
        side[s0 + k] += q[k * per:(k + 1) * per]
    q = [f"v_lshlrev_b32 {t0}, 4, {t16}", f"v_lshl_add_u32 {t0}, {g4}, 2, {t0}", f"v_add_u32 {t0}, {TAB}, {t0}"]
    q += [f"ds_read_b32 {u[4+k]}, {t0} offset:{256*k}" for k in range(4)]
    q += [f"s_and_b32 s28, {MI}, 3", f"s_mul_i32 s28, s28, {3072*4}", "s_lshl_b32 s29, s43, 12", "s_add_u32 s28, s28, s29", f"s_lshl_b32 s29, {NJ}, 8",
          "s_add_u32 s28, s28, s29", f"s_add_u32 s28, s28, {CQ}", f"s_lshl_b32 s29, {S_W}, 2", "s_or_b32 s29, s29, s43", f"s_cmp_lt_u32 s29, 3\ns_cselect_b32 s28, s28, {OOB}",
          f"v_lshlrev_b32 {t0}, 2, {lane}", "s_waitcnt lgkmcnt(0)",
          f"v_add_f32 {u[4]}, {u[4]}, {u[5]}", f"v_add_f32 {u[6]}, {u[6]}, {u[7]}", f"v_add_f32 {u[4]}, {u[4]}, {u[6]}",
          f"buffer_store_dword {u[4]}, {t0}, {WS}, s28 offen {SC} ;@sdone"]
    side[9 + SH] += q
    RS = 1 if P1MODE != 2 else 9
    side[RS] = [f"v_mov_b32 {t2}, 1", f"v_mov_b32 {t3}, 0", f"s_or_b32 s28, {S_WG}, {S_W}", f"s_cmp_eq_u32 s28, 0\ns_cselect_b32 s28, 0, {OOB}",
                f"buffer_store_dword {t2}, {t3}, {SCc}, s28 offen {SC}"] + side[RS]
    side[8 + SH] = [f"v_mov_b32 {t3}, 0", f"v_mov_b32 {dbg}, 1", f"s_cmp_lg_u32 {S_W}, 0\ns_cbranch_scc1 L_p1_nd\nbuffer_load_dword {dbg}, {t3}, {SCc}, 0 offen {SC} ;@skip\nL_p1_nd:"] + side[8 + SH]
    side[10 + SH] += ["s_waitcnt vmcnt(@sdone)", lazy_check("p1d", dbg, t3, SCc, [])]
    side[11 + SH] += [f"v_mov_b32 {t0}, 1", f"v_mov_b32 {t1}, 0", f"s_lshl_b32 s28, {MI}, 7", f"s_lshl_b32 s29, {NJ}, 2", "s_add_u32 s28, s28, s29", f"s_add_u32 s28, s28, {FSM}",
                 f"s_cmp_eq_u32 {S_W}, 0\ns_cselect_b32 s28, s28, {OOB}", f"buffer_store_dword {t0}, {t1}, {WS}, s28 offen {SC}",
                 f"s_lshl_b32 s28, {NJ}, 7", f"s_lshl_b32 s29, {MI}, 2", "s_add_u32 s28, s28, s29", f"s_add_u32 s28, s28, {FSN}",
                 f"s_cmp_eq_u32 {S_W}, 0\ns_cselect_b32 s28, s28, {OOB}", f"buffer_store_dword {t0}, {t1}, {WS}, s28 offen {SC}"]
    if CODEPF:
        t = Asm(); codepf(t, "L_P2", "L_P4", cv[0])
        side[20] += ["\n".join(t.lines[:2])] + t.lines[2:]
    side[16] += [f"s_lshl_b32 s28, {S_WG}, 14", f"s_lshl_b32 s29, {S_W}, 12", "s_add_u32 s28, s28, s29", f"s_add_u32 s28, s28, {XP}"]
    for i in range(4):
        side[16 + i] += [f"buffer_store_dwordx4 {cq[4:8]}, {vl}, {WS}, s28 offen offset:{1024*i} {SC}"]
    side[22] += [f"s_lshl_b32 s28, {MI}, 7", f"s_add_u32 s28, s28, {FSM}", f"s_lshl_b32 s29, {NJ}, 7", f"s_add_u32 s29, s29, {FSN}", f"v_and_b32 {t2}, 1, {g4}",
                 f"v_mov_b32 {t3}, s28", f"v_mov_b32 {dbg}, s29", f"v_cmp_eq_u32 vcc, 0, {t2}\ns_nop 1\nv_cndmask_b32 {t3}, {dbg}, {t3}, vcc", f"v_lshl_add_u32 {t3}, {t16}, 2, {t3}",
                 f"v_mov_b32 {dbg}, 1", f"s_cmp_lg_u32 {S_W}, 0\ns_cbranch_scc1 L_p1_nf\nbuffer_load_dword {dbg}, {t3}, {WS}, 0 offen {SC} ;@skip\nL_p1_nf:"]
    side[24] += ["s_waitcnt vmcnt(@w29)", lazy_check("p1f", dbg, t3, WS, [])]
    la, lb = u[0:4], u[4:8]
    q = [f"v_and_b32 {t0}, 127, v0", f"v_lshlrev_b32 {t0}, 2, {t0}", f"v_lshrrev_b32 {t1}, 7, v0", f"v_lshl_add_u32 {t0}, {t1}, 13, {t0}", f"s_lshl_b32 s28, {MI}, 9", f"s_add_u32 s28, s28, {RA}",
         f"buffer_load_dword {cq[0]}, {t0}, {WS}, s28 offen {SC}",
         f"v_lshlrev_b32 {t0}, 2, {lane}", f"s_min_u32 s29, {S_W}, 2", "s_lshl_b32 s29, s29, 12", f"s_lshl_b32 s28, {NJ}, 8", "s_add_u32 s28, s28, s29", f"s_add_u32 s28, s28, {CQ}"]
    for k in range(4):
        q += [f"buffer_load_dword {cq[1+k]}, {t0}, {WS}, s28 offen {SC} ;@cons", f"s_add_u32 s28, s28, {3072*4}"]
    side[25] += q
    side[28] += ["s_waitcnt vmcnt(@cons)", f"v_add_f32 {cq[1]}, {cq[1]}, {cq[2]}", f"v_add_f32 {cq[3]}, {cq[3]}, {cq[4]}", f"v_lshlrev_b32 {t0}, 2, v0", f"v_add_u32 {t0}, {TAB}, {t0}",
                 f"v_add_f32 {cq[1]}, {cq[1]}, {cq[3]}", f"ds_write_b32 {t0}, {cq[0]}", f"ds_write_b32 {t0}, {cq[1]} offset:1024"]
    q = [f"s_lshl_b32 s28, {WM}, 8", f"s_add_u32 s28, s28, {TAB}", f"v_lshl_add_u32 {t0}, {t16}, 2, s28", f"v_lshl_add_u32 {t1}, {g4}, 4, s28",
         f"s_lshl_b32 s28, {WN}, 7", f"s_add_u32 s28, s28, {TAB + 1024}", f"v_lshl_add_u32 {t2}, {t16}, 2, s28", f"v_lshl_add_u32 {t3}, {g4}, 4, s28"]
    side[30] += q
    q = []
    for k in range(4):
        q += [f"ds_read_b128 {cq[4*k:4*k+4]}, {t3} offset:{(k//2)*256 + (k%2)*64}"]
    for mt in range(4):
        q += [f"ds_read_b32 {la[mt]}, {t0} offset:{64*mt}", f"ds_read_b32 {lb[mt]}, {t0} offset:{512 + 64*mt}"]
    for mt in range(4):
        q += [f"ds_read_b128 {sx[4*mt:4*mt+4]}, {t1} offset:{64*mt}", f"ds_read_b128 {sacc[4*mt:4*mt+4]}, {t1} offset:{512 + 64*mt}"]
    q += [f"ds_read_b32 {cv[0]}, {t2} offset:512", f"ds_read_b32 {cv[1]}, {t2} offset:576"]
    side[31] += q
    for sig in range(32):
        i, s = divmod(sig, 2)
        if sig % 8 == 0:
            a.it("p1")
        if DBG == "p0" and sig < 8:
            stamp(a, 22 + sig)
        if sig % 2 == 0 and DBG == "p1":
            stamp(a, 16 + sig // 2)
        cur = sig % 2
        if s == 1 and i < 15:
            extra = "&rst" if sig == RS else ""
            a(f"s_waitcnt vmcnt(@w{2*i+3}&x{i+1}{extra}) lgkmcnt(0)\ns_barrier")
        else:
            a("s_waitcnt lgkmcnt(0)")
        m = []
        for sg in range(3):
            for dt in range(2):
                for mt in range(4):
                    c = 0 if sig == 0 else None
                    if sg < 2:
                        m.append(mf16(acc[mt][sg][dt], Wf[cur][sg][dt], Xf[cur][mt], c))
                    else:
                        m.append(mf16(acc[mt][sg][dt], Xf[cur][mt], Wf[cur][sg][dt], c))
        fl = xreads(sig + 1) + wreads(sig + 1) if sig < 31 else []
        a.ext(sched(m, fl, dmas(sig) + side[sig]))
        if sig % 8 == 7:
            a.endit()
    stamp(a, 2)
    a("s_waitcnt lgkmcnt(0)")
    CQS = (32 ** -0.5) * math.log2(math.e)
    a(f"s_lshl_b32 s28, {NJ}, 1\ns_add_u32 s28, s28, {WN}\ns_lshl_b32 s28, s28, 17\ns_lshl_b32 s29, {MI}, 13\ns_add_u32 s28, s28, s29\ns_lshl_b32 s29, {WM}, 12\ns_add_u32 s46, s28, s29")
    a(f"v_lshlrev_b32 {t0}, 9, {g4}\nv_lshl_add_u32 {t0}, {t16}, 4, {t0}")
    a(f"v_and_b32 {t1}, 1, {g4}\nv_lshlrev_b32 {t1}, 9, {t1}\nv_lshl_add_u32 {t1}, {hh}, 8, {t1}\nv_lshl_add_u32 {t1}, {t16}, 4, {t1}")
    laq = R("v", vxd.b, 4)
    for mt in range(4):
        a(f"v_mul_f32 {laq[mt]}, {f32(CQS)}, {la[mt]}")
    def sel(r):
        base = r.b & ~1
        return R("v", base, 2), r.b & 1
    for sg in range(2):
        a(f"s_add_u32 s28, s46, {sg*4*MB}")
        for mt in range(4):
            bp, bo = sel(lb[mt]); ap, ao = sel(laq[mt] if sg == 0 else la[mt])
            A = [acc[mt][sg][0], acc[mt][sg][1]]
            for dt in range(2):
                for p in range(2):
                    a(f"v_pk_fma_f32 {A[dt][2*p:2*p+2]}, {cq[8*sg+4*dt+2*p:8*sg+4*dt+2*p+2]}, {bp}, {A[dt][2*p:2*p+2]} op_sel:[0,{bo},0] op_sel_hi:[1,{bo},1]")
            for dt in range(2):
                for p in range(2):
                    a(f"v_pk_mul_f32 {A[dt][2*p:2*p+2]}, {A[dt][2*p:2*p+2]}, {ap} op_sel:[0,{ao}] op_sel_hi:[1,{ao}]")
            a(f"v_cvt_pk_bf16_f32 {A[0][0]}, {A[0][0]}, {A[0][1]}\nv_cvt_pk_bf16_f32 {A[0][1]}, {A[0][2]}, {A[0][3]}")
            a(f"v_cvt_pk_bf16_f32 {A[0][2]}, {A[1][0]}, {A[1][1]}\nv_cvt_pk_bf16_f32 {A[0][3]}, {A[1][2]}, {A[1][3]}")
            a(f"buffer_store_dwordx4 {A[0]}, {t0}, {WS}, s28 offen offset:{(mt>>1)*2048 + (mt&1)*256} {SC}")
    a(f"s_add_u32 s28, s46, {8*MB}")
    a(f"s_lshl_b32 s47, {NJ}, 7\ns_lshl_b32 s29, {MI}, 2\ns_add_u32 s47, s47, s29\ns_add_u32 s47, s47, {F1}")
    for mt in range(4):
        A = [acc[mt][2][0], acc[mt][2][1]]
        for dt in range(2):
            for p in range(2):
                a(f"v_pk_fma_f32 {A[dt][2*p:2*p+2]}, {sacc[4*mt+2*p:4*mt+2*p+2]}, {cv}, {A[dt][2*p:2*p+2]} op_sel:[0,{dt},0] op_sel_hi:[1,{dt},1]")
        for dt in range(2):
            for p in range(2):
                a(f"v_pk_mul_f32 {A[dt][2*p:2*p+2]}, {A[dt][2*p:2*p+2]}, {sx[4*mt+2*p:4*mt+2*p+2]}")
        a(f"v_cvt_pk_bf16_f32 {A[0][0]}, {A[0][0]}, {A[0][1]}\nv_cvt_pk_bf16_f32 {A[0][1]}, {A[0][2]}, {A[0][3]}")
        a(f"v_cvt_pk_bf16_f32 {A[0][2]}, {A[1][0]}, {A[1][1]}\nv_cvt_pk_bf16_f32 {A[0][3]}, {A[1][2]}, {A[1][3]}\ns_nop 1")
        a(f"v_permlane32_swap_b32 {A[0][0]}, {A[0][2]}\nv_permlane32_swap_b32 {A[0][1]}, {A[0][3]}")
        a(f"buffer_store_dwordx4 {A[0]}, {t1}, {WS}, s28 offen offset:{mt*1024} {SC} ;@p1st")

EXO = 131072
EXL = 122880
def w64_dma_voff(a, vw, t0, t1, nj):
    a(f"v_lshrrev_b32 {t0}, 3, {lane}\nv_and_b32 {t1}, 6, {t0}\ns_lshl_b32 s29, {S_W}, 4\nv_add_u32 {t0}, s29, {t0}\nv_lshlrev_b32 {t0}, 11, {t0}")
    a(f"v_and_b32 {vw[0]}, 7, {lane}\nv_xor_b32 {t1}, {t1}, {vw[0]}\nv_lshl_add_u32 {t0}, {t1}, 4, {t0}")
    a(f"s_lshl_b32 s29, {nj}, 7\nv_add_u32 {vw[0]}, s29, {t0}\nv_add_u32 {vw[1]}, {8*2048-1024}, {vw[0]}")
def mn35(a, MI, NJ):
    a(f"s_and_b32 {MI}, {S_XCD}, 3\ns_lshl_b32 {MI}, {MI}, 2\ns_and_b32 s29, {S_IDX}, 3\ns_add_u32 {MI}, {MI}, s29")
    a(f"s_lshr_b32 {NJ}, {S_XCD}, 2\ns_lshl_b32 {NJ}, {NJ}, 3\ns_lshr_b32 s29, {S_IDX}, 2\ns_add_u32 {NJ}, {NJ}, s29")
MI3, NJ3 = "s50", "s51"
VW3 = R("v", 250, 2)

def phase2(a):
    va = Alloc("v", V0, 250); aa = Alloc("a", 0, 256)
    vl2 = va(); vcs = va()
    t0, t1, t2, t3 = va(), va(), va(), va()
    As = va(4, 4)
    O = [va(16, 4) for sl in range(4)]
    L = [va(4, 4) for sl in range(4)]
    S = [va(16, 4) for b in range(2)]
    P = va(8, 4)
    cacc = va(16, 4)
    Q = [[aa(4, 4) for m in range(2)] for sl in range(4)]
    NB = 8
    cw = [aa(4, 4) for k in range(4)]
    Kf = [[aa(4, 4) for m in range(2)] for b in range(NB)]
    ident = aa(4, 4); assert ident.b == 112
    Vf = [[aa(4, 4) for m in range(2)] for b in range(NB)]
    vk = [vl, va(), va(), va()]
    HD, QB, QG, KH = "s32", "s33", "s34", "s35"
    sK, sV, sKe, sVe, sHB, sQT, sSX, sWo, sMo, sCS = "s36", "s37", "s38", "s39", "s40", "s41", "s42", "s43", "s44", "s45"
    a(f"s_and_b32 {HD}, {S_IDX}, 3\ns_lshl_b32 s28, {S_XCD}, 2\ns_add_u32 {HD}, {HD}, s28\ns_lshr_b32 {QB}, {S_IDX}, 2")
    a(f"s_and_b32 {QG}, {S_W}, 1\ns_lshr_b32 {KH}, {S_W}, 1")
    a(f"s_lshl_b32 {sHB}, {HD}, 17\ns_lshl_b32 {sQT}, {QB}, 3\ns_lshl_b32 s28, {QG}, 2\ns_add_u32 {sQT}, {sQT}, s28")
    a(f"s_lshl_b32 s28, {KH}, 16\ns_add_u32 s28, s28, {sHB}\ns_add_u32 {sK}, s28, {KF}\ns_add_u32 {sV}, s28, {VF}")
    a(f"s_add_u32 {sKe}, {sK}, 65536\ns_add_u32 {sVe}, {sV}, 65536\ns_xor_b32 {sSX}, {KH}, 1\ns_lshl_b32 {sSX}, {sSX}, 1")
    pa = S[0][0]
    a(f"s_lshr_b32 s28, {HD}, 1\ns_lshl_b32 s28, s28, 7\ns_add_u32 s28, s28, {F1}\nv_lshlrev_b32 {pa}, 2, {t16}\nv_add_u32 {pa}, s28, {pa}")
    publish(a, ["s47"], "p1st", S[1][0:2])
    stamp(a, 3)
    for k in range(1, 4):
        a(f"v_add_u32 {vk[k]}, {4096*k}, {vl}")
    a(f"v_lshrrev_b32 {t1}, 2, {lane}\nv_xor_b32 {t0}, {g4}, {t1}\nv_and_b32 {t0}, 1, {t0}")
    a(f"v_cmp_eq_u32 vcc, 0, {t0}\nv_mov_b32 {t1}, 0x3f803f80\ns_nop 0\nv_cndmask_b32 {As[0]}, 0, {t1}, vcc")
    a(f"v_mov_b32 {As[1]}, {As[0]}\nv_mov_b32 {As[2]}, {As[0]}\nv_mov_b32 {As[3]}, {As[0]}")
    for sl in range(4):
        for r in range(16):
            a(f"v_mov_b32 {O[sl][r]}, 0")
        for r in range(4):
            a(f"v_mov_b32 {L[sl][r]}, 0")
    for r in range(8):
        a(f"v_mov_b32 {P[r]}, 0")
    for r in range(4):
        a(f"v_accvgpr_write_b32 {Vf[NB-1][1][r]}, 0")
        for k in range(4):
            a(f"v_accvgpr_write_b32 {cw[k][r]}, 0")
    for r in range(16):
        a(f"v_mov_b32 {cacc[r]}, 0")
    mn35(a, MI3, NJ3)
    w64_dma_voff(a, VW3, t0, t1, NJ3)
    srd(a, 12, P_WO, 1024 * 2048)
    a(f"s_lshr_b32 s28, {S_WG}, 1\ns_cmp_ge_u32 s28, 56\ns_cselect_b32 s16, s{P_WU}, s{P_WG}\ns_cselect_b32 s17, s{P_WU+1}, s{P_WG+1}\ns_cselect_b32 s29, 56, 0")
    a(f"s_mov_b32 s18, {1024*7168}\ns_mov_b32 s19, 0x20000\ns_sub_u32 s28, s28, s29\ns_lshl_b32 s28, s28, 7")
    a(f"s_and_b32 s29, {S_WG}, 1\ns_lshl_b32 s29, s29, 2\ns_add_u32 s29, s29, {S_W}\ns_mul_i32 s29, s29, {128*7168}\ns_add_u32 {sCS}, s28, s29")
    a(f"s_cmp_ge_u32 {S_WG}, 224\ns_cselect_b32 {sCS}, {OOB}, {sCS}")
    a(f"v_lshrrev_b32 {t0}, 2, {r32}\nv_mul_u32_u24 {t0}, 7168, {t0}\nv_and_b32 {t1}, 3, {lane}\nv_lshl_add_u32 {t0}, {t1}, 5, {t0}\nv_lshl_add_u32 {vcs}, {hh}, 4, {t0}")
    a(f"s_mov_b32 {sWo}, 0\ns_lshl_b32 {sMo}, {S_W}, 11\ns_lshl_b32 s48, {S_W}, 13\ns_add_u32 s48, s48, {EXO}")
    srd(a, 20, P_WD, 3584 * 2048)
    a(f"s_lshl_b32 s28, {S_WG}, 2\ns_add_u32 s28, s28, {S_W}\ns_mul_i32 s47, s28, {56*128}\nv_min_u32 {t2}, 13, {lane}\nv_lshlrev_b32 {t2}, 7, {t2}")
    poll(a, "p2", pa, S[1][0])
    stamp(a, 4)
    def kload(kt):
        k = kt % NB
        return [f"buffer_load_dwordx4 {Kf[k][m]}, {vk[k//2]}, {WS}, {sK} offen offset:{(k%2)*2048 + 1024*m} {SC} ;@k{kt}" for m in range(2)]
    def vload(kt):
        k = kt % NB
        return [f"buffer_load_dwordx4 {Vf[k][m]}, {vk[k//2]}, {WS}, {sV} offen offset:{(k%2)*2048 + 1024*m} {SC} ;@v{kt}" for m in range(2)]
    kbump = [f"s_add_u32 {sK}, {sK}, 16384", f"s_cmp_ge_u32 {sK}, {sKe}\ns_cselect_b32 {sK}, {OOB}, {sK}"]
    vbump = [f"s_add_u32 {sV}, {sV}, 16384", f"s_cmp_ge_u32 {sV}, {sVe}\ns_cselect_b32 {sV}, {OOB}, {sV}"]
    a.ext(kload(0))
    for sl in range(4):
        a(f"s_xor_b32 s29, {sSX}, {sl}\ns_add_u32 s29, s29, {sQT}\ns_lshl_b32 s29, s29, 11\ns_add_u32 s29, s29, {sHB}")
        for m in range(2):
            a(f"buffer_load_dwordx4 {Q[sl][m]}, {vl}, {WS}, s29 offen offset:{1024*m} {SC} ;@q{sl}")
    for kt in range(2):
        a.ext(vload(kt) + kload(kt + 1))
    catch = []
    for kt in range(2, NB - 1):
        catch += vload(kt) + kload(kt + 1)
    catch += vload(NB - 1)
    a("s_waitcnt vmcnt(@q0)")
    a(mf32(S[0], Kf[0][0], Q[0][0], 0))
    a(mf32(S[0], Kf[0][1], Q[0][1]))
    a("s_waitcnt vmcnt(@v0)\ns_nop 7\ns_nop 3")
    def unit(u):
        kt, sl = divmod(u, 4)
        b = u % 2
        kn, sn = divmod(u + 1, 4)
        kp, sp = divmod(u - 1, 4)
        Sb = S[b]
        x = {}
        k8 = kt % NB
        if sl == 3:
            ld = kload(kt + NB); x[0] = [ld[0]]; x[8] = [ld[1]]
            if k8 == NB - 1: x[12] = kbump
        if sl == 1 and u != 1:
            ld = vload(kt + NB - 1); x[0] = [ld[0]]; x[8] = [ld[1]]
            if k8 == 0: x[12] = vbump
        if sl == 2:
            if k8 % 2 == 0:
                x[0] = [f"s_mov_b32 m0, {sMo}", f"s_add_u32 {sMo}, {sMo}, 8192"]
                x[4] = [f"buffer_load_dwordx4 {VW3[0]}, {SA}, {sWo} offen lds ;@wo"]
                x[8] = [f"buffer_load_dwordx4 {VW3[1]}, {SA}, {sWo} offen offset:1024 lds ;@wo"]
                x[12] = [f"s_add_u32 {sWo}, {sWo}, {64*2048}"] + ([f"s_cmp_ge_u32 {sWo}, {15*64*2048}\ns_cselect_b32 {sWo}, {OOB}, {sWo}\ns_cselect_b32 {sMo}, s48, {sMo}"] if k8 == 4 else [])
            else:
                c = cw[k8 // 2]
                x[0] = [mf32(cacc, c, ident)]
                x[8] = [f"buffer_load_dwordx4 {c}, {vcs}, {SB}, {sCS} offen", f"s_add_u32 {sCS}, {sCS}, {8*7168}"]
        if u < 3:
            for p in (1, 3, 5, 7, 9, 11, 13, 14):
                if catch:
                    x.setdefault(p, []).append(catch.pop(0))
            if u == 2:
                assert not catch
                x.setdefault(15, []).extend(kbump + vbump)
        if sl == 0 and k8 == 1:
            x[0] = [f"buffer_load_dword {t3}, {t2}, {SCc}, s47 offen", f"s_add_u32 s47, s47, {14*128}"]
        e = [[f"v_exp_f32 {Sb[i]}, {Sb[i]}"] + x.get(i, []) for i in range(16)]
        c = [[f"v_cvt_pk_bf16_f32 {P[i]}, {Sb[2*i]}, {Sb[2*i+1]}"] for i in range(8)]
        seq = []
        if sl == 3:
            seq.append([f"s_waitcnt vmcnt(@k{kn}&v{kn})"])
        seq += [[mf32(S[1 - b], Kf[kn % NB][0], Q[sn][0], 0)], e[0], e[1], e[2], e[3],
                [mf32(S[1 - b], Kf[kn % NB][1], Q[sn][1])], e[4], e[5], e[6], c[0], c[1],
                [mf32(O[sp], Vf[kp % NB][1], P[4:8])], e[7], e[8], e[9], c[2], c[3],
                [mf16(L[sp], As, P[4:8])], e[10], e[11],
                [mf32(O[sl], Vf[kt % NB][0], P[0:4])], e[12], e[13], e[14], c[4], c[5],
                [mf16(L[sl], As, P[0:4])], e[15], c[6], c[7]]
        return [y for z in seq for y in z]
    for it in range(4):
        a.it("p2")
        for u in range(32 * it, 32 * it + 32):
            if DBG == "p2" and it == 0 and u % 2 == 0:
                stamp(a, 16 + u // 2)
            a.ext(unit(u))
        a.endit()
    a("s_waitcnt vmcnt(0)")
    a(mf32(O[3], Vf[NB-1][1], P[4:8]))
    a(mf16(L[3], As, P[4:8]))
    for k in range(4):
        a(mf32(cacc, cw[k], ident))
    stamp(a, 5)
    a(f"s_lshl_b32 s28, {S_W}, 13\ns_add_u32 s28, s28, {EXO}\nv_add_u32 {t0}, s28, {vl}\ns_xor_b32 s46, s28, 0x4000\nv_add_u32 {t1}, s46, {vl}")
    a(f"s_lshl_b32 s28, {S_W}, 11\ns_add_u32 s28, s28, {EXL}\nv_lshlrev_b32 {t3}, 2, {lane}\nv_add_u32 {t3}, s28, {t3}\nv_xor_b32 {t2}, 0x1000, {t3}")
    for sl in range(2):
        for j in range(4):
            a(f"ds_write_b128 {t0}, {O[sl][4*j:4*j+4]} offset:{sl*4096 + j*1024}")
        a(f"ds_write_b32 {t2}, {L[sl][0]} offset:{sl*256}")
    for cb in range(4):
        a(f"v_add_f32 {cacc[cb]}, {cacc[cb]}, {cacc[4+cb]}\nv_add_f32 {cacc[8+cb]}, {cacc[8+cb]}, {cacc[12+cb]}")
    for cb in range(4):
        a(f"v_add_f32 {cacc[cb]}, {cacc[cb]}, {cacc[8+cb]}")
    for cb in range(4):
        a(f"v_mov_b32 {cacc[4+cb]}, {cacc[cb]}")
    a(f"s_lshl_b32 s28, {S_W}, 8\ns_add_u32 s28, s28, {EXL + 512}\nv_lshl_add_u32 {t0}, {t16}, 4, s28")
    for cb in range(4):
        a(f"v_permlane32_swap_b32 {cacc[cb]}, {cacc[4+cb]}")
    for cb in range(4):
        a(f"v_add_f32 {cacc[cb]}, {cacc[cb]}, {cacc[4+cb]}")
    a(f"s_mov_b64 exec, 0xffff\nds_write_b128 {t0}, {cacc[0:4]}\ns_mov_b64 exec, -1")
    a("s_waitcnt lgkmcnt(0)\ns_barrier")
    for sl in range(2):
        for j in range(4):
            a(f"ds_read_b128 {S[sl][4*j:4*j+4]}, {t1} offset:{sl*4096 + j*1024}")
        a(f"ds_read_b32 {L[sl][1]}, {t3} offset:{sl*256}")
    a(f"v_lshlrev_b32 {t0}, 4, {t16}\nv_lshl_add_u32 {t0}, {g4}, 2, {t0}\nv_add_u32 {t0}, {EXL + 512}, {t0}")
    a(f"s_cmp_lg_u32 {S_W}, 0\ns_cbranch_scc1 L_p2_nocs")
    for k in range(4):
        a(f"ds_read_b32 {cacc[k]}, {t0} offset:{256*k}")
    a(f"s_and_b32 s28, {S_WG}, 1\ns_mul_i32 s28, s28, {7168*4}\ns_lshr_b32 s29, {S_WG}, 1\ns_lshl_b32 s29, s29, 8\ns_add_u32 s28, s28, s29\ns_add_u32 s28, s28, {CS}")
    a(f"s_cmp_ge_u32 {S_WG}, 224\ns_cselect_b32 s28, {OOB}, s28\nv_lshlrev_b32 {t0}, 2, {lane}\ns_waitcnt lgkmcnt(0)")
    a(f"v_add_f32 {cacc[0]}, {cacc[0]}, {cacc[1]}\nv_add_f32 {cacc[2]}, {cacc[2]}, {cacc[3]}\nv_add_f32 {cacc[0]}, {cacc[0]}, {cacc[2]}")
    a(f"buffer_store_dword {cacc[0]}, {t0}, {WS}, s28 offen {SC} ;@skip")
    a.label("L_p2_nocs")
    a("s_waitcnt lgkmcnt(0)")
    for sl in range(2):
        a(f"v_add_f32 {L[2+sl][0]}, {L[2+sl][0]}, {L[sl][1]}")
        for p in range(8):
            a(f"v_pk_add_f32 {O[2+sl][2*p:2*p+2]}, {O[2+sl][2*p:2*p+2]}, {S[sl][2*p:2*p+2]}")
    a(f"s_mov_b32 s28, {f32(2.0**-60)}\ns_mov_b32 s29, {f32(2.0**60)}")
    a(f"v_cmp_nge_f32 vcc, {L[2][0]}, s28\nv_cmp_nle_f32 s[52:53], {L[2][0]}, s29\nv_cmp_nge_f32 s[54:55], {L[3][0]}, s28\nv_cmp_nle_f32 s[56:57], {L[3][0]}, s29")
    a(f"v_lshrrev_b32 {t0}, 4, {r32}\nv_lshlrev_b32 {t0}, 15, {t0}\nv_lshl_add_u32 {t0}, {hh}, 8, {t0}\nv_lshl_add_u32 {vl2}, {t16}, 4, {t0}")
    a("s_or_b64 s[52:53], s[52:53], vcc\ns_or_b64 s[54:55], s[54:55], s[56:57]\ns_or_b64 s[52:53], s[52:53], s[54:55]")
    if FORCE_SLOW:
        a("s_cmp_eq_u32 s2, s2")
    a(f"s_cbranch_scc1 L_p2_slow")
    a.label("L_p2_fin")
    a(f"s_lshl_b32 s47, {QB}, 7\ns_lshl_b32 s29, {HD}, 2\ns_add_u32 s47, s47, s29\ns_add_u32 s47, s47, {F2}\ns_lshl_b32 s48, {S_WG}, 2\ns_add_u32 s48, s48, {FC}")
    for sl in range(2, 4):
        a(f"v_rcp_f32 {L[sl][2]}, {L[sl][0]}")
        a(f"s_xor_b32 s28, {sSX}, {sl}\ns_add_u32 s28, s28, {sQT}\ns_lshl_b32 s28, s28, 16\ns_lshl_b32 s29, {HD}, 10\ns_add_u32 s28, s28, s29\ns_add_u32 s28, s28, {OF}")
        for p in range(8):
            a(f"v_pk_mul_f32 {O[sl][2*p:2*p+2]}, {O[sl][2*p:2*p+2]}, {L[sl][2:4]} op_sel_hi:[1,0]")
        for p in range(8):
            a(f"v_cvt_pk_bf16_f32 {O[sl][p]}, {O[sl][2*p]}, {O[sl][2*p+1]}")
        a(f"buffer_store_dwordx4 {O[sl][0:4]}, {vl2}, {WS}, s28 offen {SC}")
        a(f"buffer_store_dwordx4 {O[sl][4:8]}, {vl2}, {WS}, s28 offen offset:512 {SC} ;@p2st")
    s = Asm()
    s.label("L_p2_slow")
    mx, mn, al, tt = t0, t1, t2, t3
    for sl in range(2, 4):
        s(f"v_mov_b32 {mx}, 0xff800000\nv_mov_b32 {L[sl][0]}, 0")
        for r in range(16):
            s(f"v_mov_b32 {O[sl][r]}, 0")
        s(f"s_add_u32 {sK}, {sHB}, {KF}\ns_add_u32 {sV}, {sHB}, {VF}\ns_mov_b32 s24, 64")
        s.label(f"L_p2_slow{sl}")
        s.lines.append(";LOOP")
        for m in range(2):
            s(f"buffer_load_dwordx4 {Kf[0][m]}, {vl}, {WS}, {sK} offen offset:{1024*m} {SC}")
            s(f"buffer_load_dwordx4 {Vf[0][m]}, {vl}, {WS}, {sV} offen offset:{1024*m} {SC}")
        s(f"s_add_u32 {sK}, {sK}, 2048\ns_add_u32 {sV}, {sV}, 2048\ns_waitcnt vmcnt(0)")
        s(mf32(S[0], Kf[0][0], Q[sl][0], 0))
        s(mf32(S[0], Kf[0][1], Q[sl][1]))
        s("s_nop 7\ns_nop 7")
        s(f"v_max_f32 {mn}, {S[0][0]}, {S[0][1]}")
        for p in range(1, 8):
            s(f"v_max3_f32 {mn}, {mn}, {S[0][2*p]}, {S[0][2*p+1]}")
        s(f"v_mov_b32 {tt}, {mn}\ns_nop 1\nv_permlane32_swap_b32 {mn}, {tt}\nv_max3_f32 {mn}, {mn}, {tt}, {mx}")
        s(f"v_sub_f32 {al}, {mx}, {mn}\nv_exp_f32 {al}, {al}\nv_mov_b32 {mx}, {mn}")
        for i in range(16):
            s(f"v_sub_f32 {S[0][i]}, {S[0][i]}, {mn}")
        for i in range(16):
            s(f"v_exp_f32 {S[0][i]}, {S[0][i]}")
        s(f"v_mul_f32 {L[sl][0]}, {L[sl][0]}, {al}")
        for i in range(16):
            s(f"v_mul_f32 {O[sl][i]}, {O[sl][i]}, {al}")
        for i in range(8):
            s(f"v_cvt_pk_bf16_f32 {P[i]}, {S[0][2*i]}, {S[0][2*i+1]}")
        for i in range(8):
            s(f"v_lshlrev_b32 {tt}, 16, {P[i]}\nv_add_f32 {L[sl][0]}, {L[sl][0]}, {tt}\nv_and_b32 {tt}, 0xffff0000, {P[i]}\nv_add_f32 {L[sl][0]}, {L[sl][0]}, {tt}")
        s(mf32(O[sl], Vf[0][0], P[0:4]))
        s(mf32(O[sl], Vf[0][1], P[4:8]))
        s("s_nop 7\ns_nop 7")
        s(f"s_sub_u32 s24, s24, 1\ns_cmp_lg_u32 s24, 0\ns_cbranch_scc1 L_p2_slow{sl}")
        s.lines.append(";ENDLOOP")
        s(f"v_mov_b32 {tt}, {L[sl][0]}\ns_nop 1\nv_permlane32_swap_b32 {L[sl][0]}, {tt}\nv_add_f32 {L[sl][0]}, {L[sl][0]}, {tt}")
    s("s_branch L_p2_fin")
    tails.append(s)
    return "s46"

def wa35(a, wa, t0, t1, base):
    a(f"v_lshrrev_b32 {t0}, 2, {lane}\nv_and_b32 {t0}, 3, {t0}\nv_and_b32 {t1}, 1, {g4}\nv_lshl_add_u32 {wa[1]}, {t1}, 2, {t0}\nv_lshl_add_u32 {wa[1]}, {hh}, 4, {wa[1]}")
    a(f"v_lshlrev_b32 {wa[1]}, 7, {wa[1]}\nv_lshrrev_b32 {t0}, 1, {t0}\nv_lshl_add_u32 {t0}, {t1}, 1, {t0}\nv_lshl_add_u32 {wa[1]}, {t0}, 5, {wa[1]}")
    a(f"v_and_b32 {t0}, 3, {lane}\nv_lshl_add_u32 {wa[0]}, {t0}, 3, {wa[1]}")
    if base:
        a(f"v_add_u32 {wa[0]}, {base}, {wa[0]}")
    for t in range(1, 4):
        a(f"v_xor_b32 {wa[t]}, {32*t}, {wa[0]}")
def rowmajor_voff(a, ve, vo, t0, t1, row0, nj):
    a(f"v_lshrrev_b32 {t0}, 3, {lane}\nv_add_u32 {t1}, {row0}, {t0}\nv_lshlrev_b32 {t1}, 11, {t1}\ns_lshl_b32 s29, {nj}, 7\nv_add_u32 {t1}, s29, {t1}")
    a(f"v_and_b32 {ve}, 7, {lane}\nv_xor_b32 {ve}, {ve}, {g4}\nv_xor_b32 {vo}, 4, {ve}\nv_lshl_add_u32 {ve}, {ve}, 4, {t1}\nv_lshl_add_u32 {vo}, {vo}, 4, {t1}")
def dlayout_addr(a, ad, t0, base):
    a(f"v_lshrrev_b32 {t0}, 1, {t16}\nv_xor_b32 {t0}, {t0}, {hh}\nv_lshlrev_b32 {t0}, 4, {t0}")
    a(f"v_and_b32 {ad}, 1, {g4}\nv_lshlrev_b32 {ad}, 3, {ad}\nv_lshl_add_u32 {ad}, {t16}, 7, {ad}\nv_add_u32 {ad}, {base}, {ad}")

MI4, FJ4 = "s52", "s53"
def phase3(a, sXR):
    va = Alloc("v", V0, 250)
    vx = va(2); wa = va(4)
    t0, t1, t2, t3 = va(), va(), va(), va()
    acc = [[va(4, 4) for t in range(4)] for mt in range(2)]
    Wf = [[va(4, 4) for t in range(4)] for b in range(2)]
    NB = 8
    Xf = [[va(4, 4) for mt in range(2)] for b in range(NB)]
    res = va(16, 4); tmp = va(16, 4); pk = va(16, 4)
    TT, sX, sXe = "s32", "s33", "s34"
    a(f"s_lshl_b32 {TT}, {MI3}, 3\ns_lshl_b32 s28, {S_W}, 1\ns_add_u32 {TT}, {TT}, s28\ns_lshl_b32 s30, {TT}, 4")
    srd(a, 16, P_X, 2048 * 2048)
    rowmajor_voff(a, t2, t3, t0, t1, "s30", NJ3)
    pa = res[0]
    a(f"s_and_b32 {MI4}, {S_IDX}, 7\ns_lshr_b32 s29, {S_IDX}, 3\ns_lshl_b32 {FJ4}, {S_XCD}, 2\ns_add_u32 {FJ4}, {FJ4}, s29")
    a(f"s_mul_i32 s28, {FJ4}, 7\ns_lshr_b32 s28, s28, 2\nv_min_u32 {t0}, 11, {r32}\nv_lshrrev_b32 {t1}, 2, {t0}\nv_add_u32 {t1}, s28, {t1}\nv_min_u32 {t1}, 55, {t1}")
    a(f"v_lshrrev_b32 {pa}, 1, {t0}\nv_and_b32 {pa}, 1, {pa}\nv_mul_u32_u24 {pa}, 56, {pa}\nv_add_u32 {t1}, {t1}, {pa}\nv_and_b32 {t0}, 1, {t0}\nv_lshl_add_u32 {t1}, {t1}, 1, {t0}")
    a(f"v_lshlrev_b32 {t1}, 2, {t1}\nv_add_u32 {t1}, {FC}, {t1}")
    a(f"s_lshr_b32 s28, {MI3}, 1\ns_lshl_b32 s28, s28, 7\ns_add_u32 s28, s28, {F2}\nv_lshlrev_b32 {pa}, 2, {r32}\nv_add_u32 {pa}, s28, {pa}")
    a(f"v_cmp_eq_u32 vcc, 0, {hh}\ns_nop 1\nv_cndmask_b32 {pa}, {t1}, {pa}, vcc")
    publish(a, ["s47", "s48"], "p2st", tmp[0:2])
    stamp(a, 6)
    codepf(a, "L_P3", "L_P5", tmp[2])
    a(f"s_lshl_b32 s28, {S_W}, 11\ns_add_u32 m0, s28, {EXL}\ns_mov_b32 s28, {15*64*2048}")
    a(f"buffer_load_dwordx4 {VW3[0]}, {SA}, s28 offen lds\nbuffer_load_dwordx4 {VW3[1]}, {SA}, s28 offen offset:1024 lds")
    a(f"s_mov_b32 m0, {sXR}")
    for i in range(4):
        a(f"s_mov_b32 s29, {i*15360}\nbuffer_load_dwordx4 {t2 if i%2==0 else t3}, {SB}, s29 offen offset:{i*1024} lds")
    wa35(a, wa, t0, t1, 0)
    a(f"s_lshl_b32 {sX}, {TT}, 15\ns_add_u32 {sX}, {sX}, {OF}\ns_add_u32 {sXe}, {sX}, 32768\nv_mov_b32 {vx[0]}, {vl}\nv_add_u32 {vx[1]}, 32768, {vl}")
    for mt in range(2):
        for t in range(4):
            for r in range(4):
                a(f"v_mov_b32 {acc[mt][t][r]}, 0")
    a.ext([f"ds_read_b64_tr_b16 {Wf[0][t][2*j:2*j+2]}, {wa[t]} offset:{1024*j} ;@r3_0_{t}" for t in range(4) for j in range(2)])
    poll(a, "p3", pa, tmp[0])
    stamp(a, 7)
    def xload(sig):
        o = []
        if sig % 4 == 0 and sig > 0:
            o += [f"s_add_u32 {sX}, {sX}, 4096", f"s_cmp_ge_u32 {sX}, {sXe}\ns_cselect_b32 {sX}, {OOB}, {sX}"]
        o += [f"buffer_load_dwordx4 {Xf[sig%NB][mt]}, {vx[mt]}, {WS}, {sX} offen offset:{(sig%4)*1024} {SC} ;@p3x{sig}" for mt in range(2)]
        return o
    def wreads(sig):
        return [f"ds_read_b64_tr_b16 {Wf[sig%2][t][2*j:2*j+2]}, {wa[t]} offset:{(sig%8)*4096 + 1024*j} ;@r3_{sig}_{t}" for t in range(4) for j in range(2)]
    for sig in range(7):
        a.ext(xload(sig))
    for sig in range(32):
        if sig % 8 == 0:
            a.it("p3")
        a(f"s_waitcnt vmcnt(@p3x{sig}) lgkmcnt(@r3_{sig}_1)")
        if sig % 8 == 4:
            a("s_barrier")
        m = [mf16(acc[mt][t], Wf[sig % 2][t], Xf[sig % NB][mt]) for t in range(4) for mt in range(2)]
        rd = wreads(sig + 1); xl = xload(sig + 7)
        light = [x for x in xl if not is_mem(x)]; mem = [x for x in xl if is_mem(x)]
        for g in range(8):
            if g == 4:
                a(f"s_waitcnt lgkmcnt(@r3_{sig}_3)")
            a(m[g])
            if sig % 8 == 7 and g % 2 == 0:
                a(f"v_add_u32 {wa[g//2]}, 0x8000, {wa[g//2]}")
            a(rd[g])
            if g == 1: a.ext(light)
            if g in (2, 6): a(mem.pop(0))
        if sig % 8 == 7:
            a.endit()
    stamp(a, 8)
    a("s_waitcnt vmcnt(0) lgkmcnt(0)")
    dlayout_addr(a, t1, t0, sXR)
    for t in range(4):
        a(f"v_xor_b32 {t2}, {32*t}, {t0}\nv_add_u32 {t2}, {t2}, {t1}")
        for mt in range(2):
            a(f"ds_read_b64 {res[8*mt+2*t:8*mt+2*t+2]}, {t2} offset:{2048*mt}")
    a(f"s_lshl_b32 s28, {TT}, 15\ns_lshl_b32 s29, {NJ3}, 11\ns_add_u32 s28, s28, s29\ns_add_u32 s28, s28, {HF}\ns_waitcnt lgkmcnt(0)")
    for mt in range(2):
        for k in range(8):
            a(f"v_lshlrev_b32 {tmp[2*k]}, 16, {res[8*mt+k]}\nv_and_b32 {tmp[2*k+1]}, 0xffff0000, {res[8*mt+k]}")
        for k in range(8):
            a(f"v_pk_add_f32 {tmp[2*k:2*k+2]}, {tmp[2*k:2*k+2]}, {acc[mt][k//2][2*(k%2):2*(k%2)+2]}")
        for k in range(8):
            a(f"v_cvt_pk_bf16_f32 {pk[8*mt+k]}, {tmp[2*k]}, {tmp[2*k+1]}")
        for p in range(2):
            a(f"buffer_store_dwordx4 {pk[8*mt+4*p:8*mt+4*p+4]}, {vx[mt]}, {WS}, s28 offen offset:{1024*p} {SC}")
    a(f"v_mov_b32 {t1}, 0x3f803f80")
    for k in range(4):
        a(f"v_mov_b32 {tmp[k]}, 0")
    for k in range(8):
        for mt in range(2):
            a(f"v_dot2c_f32_bf16 {tmp[2*mt]}, {pk[8*mt+k]}, {t1}\nv_dot2c_f32_bf16 {tmp[2*mt+1]}, {pk[8*mt+k]}, {pk[8*mt+k]}")
    a("s_nop 2")
    for sw_ in ("16", "32"):
        for k in range(4):
            a(f"v_mov_b32 {tmp[4+k]}, {tmp[k]}")
        a("s_nop 0")
        for k in range(4):
            a(f"v_permlane{sw_}_swap_b32 {tmp[k]}, {tmp[4+k]}")
        for k in range(4):
            a(f"v_add_f32 {tmp[k]}, {tmp[k]}, {tmp[4+k]}")
    a(f"v_and_b32 {t0}, 1, {g4}\nv_cmp_eq_u32 vcc, 1, {t0}\nv_lshlrev_b32 {t0}, 3, {r32}")
    a(f"s_lshl_b32 s28, {NJ3}, 14\ns_lshl_b32 s29, {TT}, 7\ns_add_u32 s28, s28, s29\ns_add_u32 s28, s28, {ST}")
    a(f"v_cndmask_b32 {tmp[0]}, {tmp[0]}, {tmp[2]}, vcc\nv_cndmask_b32 {tmp[1]}, {tmp[1]}, {tmp[3]}, vcc")
    a(f"buffer_store_dwordx2 {tmp[0:2]}, {t0}, {WS}, s28 offen {SC} ;@p3st")
    a(f"s_lshr_b32 s47, {MI3}, 1\ns_lshl_b32 s47, s47, 7\ns_and_b32 s29, {MI3}, 1\ns_lshl_b32 s29, s29, 6\ns_add_u32 s47, s47, s29\ns_lshl_b32 s29, {NJ3}, 2\ns_add_u32 s47, s47, s29\ns_add_u32 s47, s47, {F3}")

R5 = 32768
KA, KB = 24, 8
MI5, NB5 = "s54", "s55"
def lane_consts(a):
    a(f"v_and_b32 {lane}, 63, v0\nv_and_b32 {r32}, 31, v0\nv_lshlrev_b32 {vl}, 4, {lane}\nv_and_b32 {t16}, 15, {lane}\nv_lshrrev_b32 {g4}, 4, {lane}\nv_lshrrev_b32 {hh}, 5, {lane}")
VW5 = R("v", 1, 4)
s5W, s5M = "s40", "s41"
def w5a(j, rel=None):
    base, c = (s5M, ((j + 5) % 8) * 16384) if rel is None else rel
    o = [f"s_add_u32 m0, {base}, {c}", "s_nop 0" if False else f"s_add_u32 {s5W}, {s5W}, {64*2048}"]
    o += [f"buffer_load_dwordx4 {VW5x[i]}, {SB}, {s5W} offen offset:{1024*i} lds ;@p5w{j}" for i in range(4)]
    return o
VW5x = None
def phase4(a):
    global VW5x
    SLAB, GU, RING = 28672, 14336, 4
    CST = SLAB
    va = Alloc("v", V0, 256); aa = Alloc("a", 0, 256)
    vx = va(4); wa = va(); ca = va()
    mq = va(4, 2)
    acc = [[va(4, 4) for n in range(14)] for mt in range(4)]
    vw = [va() for i in range(7)]
    ct = R("v", 252, 4)
    assert va.cur <= 252, va.cur
    t0, t1, t2, t3 = ct[0], ct[1], ct[2], ct[3]
    VW5x = [mq[0], mq[1], mq[2], mq[3]]
    Wf = [[aa(4, 4) for n in range(14)] for b in range(2)]
    NB = 4
    Xf = [[aa(4, 4) for mt in range(4)] for b in range(NB)]
    stt = aa(16, 4)
    TT, sX, sW, sD, sWP, sM2, sR = "s32", "s33", "s35", "s36", "s37", "s38", "s39"
    a(f"s_and_b32 s29, {S_W}, 1\ns_mul_i32 s29, s29, 448\nv_add_u32 {t0}, s29, {lane}")
    a(f"s_mov_b32 s28, {(1<<32)//14 + 1}\ns_mul_i32 s30, {FJ4}, 224\ns_movk_i32 s31, {7168 - 14*16}")
    for i in range(7):
        a(f"v_add_u32 {t1}, {64*i}, {t0}\nv_mul_hi_u32 {t2}, {t1}, s28\nv_mul_lo_u32 {t2}, {t2}, s31\nv_lshl_add_u32 {t2}, {t1}, 4, {t2}")
        a(f"s_sub_u32 s29, s30, {1024*(i%4)}\nv_add_u32 {vw[i]}, s29, {t2}")
    a(f"s_cmp_lt_u32 {S_W}, 2\ns_cselect_b32 s12, s{P_WG}, s{P_WU}\ns_cselect_b32 s13, s{P_WG+1}, s{P_WU+1}\ns_mov_b32 s14, {1024*7168}\ns_mov_b32 s15, 0x20000")
    a(f"s_mul_i32 {sWP}, {S_W}, 7168\ns_mov_b32 {sW}, 0\ns_mov_b32 {sD}, 0\ns_mov_b32 {sR}, 0")
    def wdma(slab, part):
        if part == 0:
            o = [f"s_add_u32 m0, {sD}, {sWP}", f"s_add_u32 {sM2}, {sD}, {sWP}"]
            rng = range(0, 4)
        else:
            o = [f"s_add_u32 m0, {sM2}, 4096", f"s_add_u32 {sD}, {sD}, {SLAB}"]
            rng = range(4, 7)
        o += [f"buffer_load_dwordx4 {vw[i]}, {SA}, {sW} offen offset:{(i%4)*1024} lds ;@p4w{slab}" for i in rng]
        if part == 1:
            o += [f"s_cmp_ge_u32 {sD}, {RING*SLAB}\ns_cselect_b32 {sD}, 0, {sD}", f"s_add_u32 {sW}, {sW}, {64*7168}"]
        return o
    def dmas(sig):
        i, s = divmod(sig, 2)
        slab = i + 4 if s == 1 else i + 3
        return wdma(slab, 0 if s == 1 else 1) if 0 <= slab < 16 else []
    pa = acc[2][0][0]
    a(f"s_lshl_b32 s28, {MI4}, 7\ns_add_u32 s28, s28, {F3}\nv_lshlrev_b32 {pa}, 2, {r32}\nv_add_u32 {pa}, s28, {pa}")
    publish(a, ["s47"], "p3st", acc[2][1][0:2])
    stamp(a, 9)
    a.ext(wdma(0, 0) + wdma(0, 1) + wdma(1, 0) + wdma(1, 1) + wdma(2, 0) + wdma(2, 1))
    a(f"s_lshl_b32 {TT}, {MI4}, 4\ns_lshl_b32 s28, {S_W}, 2\ns_add_u32 {TT}, {TT}, s28")
    a(f"s_lshl_b32 {sX}, {TT}, 15\ns_add_u32 {sX}, {sX}, {HF}\nv_mov_b32 {vx[0]}, {vl}")
    for mt in range(1, 4):
        a(f"v_add_u32 {vx[mt]}, {32768*mt}, {vl}")
    a(f"v_lshrrev_b32 {t0}, 2, {lane}\nv_and_b32 {t0}, 3, {t0}\nv_lshl_add_u32 {t0}, {g4}, 2, {t0}\nv_mul_u32_u24 {t0}, 224, {t0}\nv_and_b32 {t1}, 3, {lane}\nv_lshl_add_u32 {wa}, {t1}, 3, {t0}")
    for mt in range(4):
        for n in range(14):
            if (mt, n) not in ((2, 0), (2, 1)):
                for e in range(4):
                    a(f"v_mov_b32 {acc[mt][n][e]}, 0")
    a("s_waitcnt vmcnt(@p4w0)")
    poll(a, "p4", pa, acc[2][1][0])
    stamp(a, 10)
    def xload(sig):
        o = []
        if sig % 4 == 0 and sig > 0:
            o += [f"s_add_u32 {sX}, {sX}, 4096"]
        o += [f"buffer_load_dwordx4 {Xf[sig%NB][mt]}, {vx[mt]}, {WS}, {sX} offen offset:{(sig%4)*1024} {SC} ;@p4x{sig}" for mt in range(4)]
        return o
    def wreads(sig):
        s = sig % 2
        return [f"ds_read_b64_tr_b16 {Wf[sig%2][n][2*j:2*j+2]}, {wa} offset:{(32*s + 16*j)*224 + (n//7)*GU + 32*(n%7)}" for n in range(14) for j in range(2)]
    def wbump():
        return [f"s_add_u32 s44, {sR}, {SLAB}", f"s_cmp_ge_u32 s44, {RING*SLAB}\ns_cselect_b32 s44, 0, s44", f"s_sub_u32 s45, s44, {sR}",
                f"s_mov_b32 {sR}, s44", f"v_add_u32 {wa}, s45, {wa}"]
    a.ext(xload(0) + wdma(3, 0) + xload(1) + wdma(3, 1)[:0])
    a.ext(wreads(0))
    a.ext(xload(2))
    for n in range(2):
        for e in range(4):
            a(f"v_mov_b32 {acc[2][n][e]}, 0")
    side = {k: [] for k in range(32)}
    cs0, cs1 = mq[0], mq[1]
    side[24] = [f"v_min_u32 {t0}, 223, v0", f"v_mov_b32 {t1}, {3584-112}", f"v_cmp_lt_u32 vcc, 111, {t0}\nv_lshlrev_b32 {t3}, 2, {t0}\ns_nop 0\nv_cndmask_b32 {t1}, 0, {t1}, vcc",
                f"v_add_lshl_u32 {t1}, {t0}, {t1}, 2", f"s_mul_i32 s31, {FJ4}, 448", f"s_add_u32 s31, s31, {CS}", f"s_add_u32 s30, s31, {7168*4}",
                f"buffer_load_dword {cs0}, {t1}, {WS}, s31 offen {SC}", f"buffer_load_dword {cs1}, {t1}, {WS}, s30 offen {SC} ;@p4cs", f"v_add_u32 {t3}, {CST}, {t3}"]
    side[27] = ["s_waitcnt vmcnt(@p4cs)", f"v_add_f32 {cs0}, {cs0}, {cs1}", f"ds_write_b32 {t3}, {cs0}"]
    q = [f"v_lshlrev_b32 {t1}, 3, {t16}", f"v_lshl_add_u32 {t1}, {g4}, 16, {t1}", f"s_lshl_b32 s30, {TT}, 7", f"s_add_u32 s30, s30, {ST}"]
    for k in range(4):
        q += [f"buffer_load_dword {stt[4*mt+k]}, {t1}, {WS}, s30 offen offset:{128*mt} {SC} ;@p4st" for mt in range(4)] + ["s_add_u32 s30, s30, 16384"]
    side[25] = q[:14]; side[26] = q[14:]
    q = ["s_waitcnt vmcnt(@p4st)"]
    mq5 = mq; mq = vx
    for mt in range(4):
        q += [f"v_accvgpr_read_b32 {mq[mt]}, {stt[4*mt]}", f"v_accvgpr_read_b32 {t0}, {stt[4*mt+1]}", f"v_accvgpr_read_b32 {t1}, {stt[4*mt+2]}", f"v_accvgpr_read_b32 {t2}, {stt[4*mt+3]}",
              f"v_add_f32 {mq[mt]}, {mq[mt]}, {t0}", f"v_add_f32 {t1}, {t1}, {t2}", f"v_add_f32 {mq[mt]}, {mq[mt]}, {t1}"]
    for sw_ in ("16", "32"):
        q += [f"v_mov_b32 {ct[k]}, {mq[k]}" for k in range(4)] + ["s_nop 0"]
        q += [f"v_permlane{sw_}_swap_b32 {mq[k]}, {ct[k]}" for k in range(4)]
        q += [f"v_add_f32 {mq[k]}, {mq[k]}, {ct[k]}" for k in range(4)]
    q += [f"v_mul_f32 {mq[k]}, {f32(-1/1024)}, {mq[k]}" for k in range(4)]
    side[30] = q; mean = mq; mq = mq5
    q = [f"s_and_b32 s28, {S_XCD}, 2", "s_lshl_b32 s28, s28, 2", f"s_and_b32 s29, {S_IDX}, 7", f"s_add_u32 {MI5}, s28, s29",
         f"s_lshr_b32 s28, {S_XCD}, 2", "s_lshl_b32 s28, s28, 2", f"s_lshr_b32 s29, {S_IDX}, 3", f"s_add_u32 {NB5}, s28, s29",
         f"s_lshl_b32 s28, {S_W}, 4", f"v_add_u32 {t0}, s28, {g4}", f"v_lshlrev_b32 {t0}, 11, {t0}", f"s_lshl_b32 s28, {NB5}, 8", f"v_add_u32 {t0}, s28, {t0}",
         f"v_lshlrev_b32 {t1}, 1, {g4}", f"v_xor_b32 {t1}, {t1}, {t16}", f"v_xor_b32 {t2}, 8, {t1}",
         f"v_lshl_add_u32 {VW5x[0]}, {t1}, 4, {t0}", f"v_lshl_add_u32 {t2}, {t2}, 4, {t0}",
         f"v_add_u32 {VW5x[1]}, {4*2048-1024}, {t2}", f"v_add_u32 {VW5x[2]}, {2*(4*2048-1024)}, {VW5x[0]}", f"v_add_u32 {VW5x[3]}, {3*(4*2048-1024)}, {t2}",
         f"s_mov_b32 s16, s{P_WD}", f"s_mov_b32 s17, s{P_WD+1}", f"s_mov_b32 s18, {3584*2048}", "s_mov_b32 s19, 0x20000",
         f"s_and_b32 s28, {S_XCD}, 1", f"s_mul_i32 {s5W}, s28, {KA*64*2048}", f"s_sub_u32 {s5W}, {s5W}, {64*2048}", f"s_lshl_b32 {s5M}, {S_W}, 12", f"s_add_u32 {s5M}, {s5M}, {R5}"]
    side[28] = q
    if CODEPF:
        t = Asm(); codepf(t, "L_P5", "L_end", ca)
        side[26] += ["\n".join(t.lines[:2])] + t.lines[2:]
    for k in range(3):
        side[29 + k] = w5a(k) + side[29 + k]
    for sig in range(32):
        i, s = divmod(sig, 2)
        if sig % 4 == 0:
            a.it("p4")
        if DBG == "p4" and (sig < 8 or sig >= 24):
            stamp(a, 16 + (sig if sig < 8 else sig - 16))
        a(f"s_waitcnt vmcnt(@p4x{sig}" + (f"&p4w{i+1}" if s == 1 and i < 15 else "") + ") lgkmcnt(0)")
        if s == 1 and i < 15:
            a("s_barrier")
        m = [mf16(acc[mt][n], Wf[sig % 2][n], Xf[sig % NB][mt]) for n in range(14) for mt in range(4)]
        rd = wreads(sig + 1) if sig < 31 else []
        ex = (xload(sig + 3) if sig + 3 < 32 else []) + dmas(sig) + side[sig]
        if False:
            pass
        elif s == 0:
            body = sched(m[:50], rd, ex, lds_end=48) + spread(m[50:], wbump())
        else:
            body = sched(m, rd, ex, lds_end=48)
        a.ext(body)
        if sig % 4 == 3:
            a.endit()
    stamp(a, 11)
    cbuf = [ct, R("v", vw[0].b, 4)]
    assert vw[0].b % 2 == 0
    so = wa
    a(f"v_lshlrev_b32 {ca}, 4, {g4}\nv_add_u32 {ca}, {CST}, {ca}")
    a(f"ds_read_b128 {cbuf[0]}, {ca}\nds_read_b128 {cbuf[1]}, {ca} offset:448")
    a(f"v_mul_u32_u24 {so}, {224*512}, {hh}\nv_lshl_add_u32 {so}, {r32}, 4, {so}")
    a(f"s_mul_i32 s28, {TT}, {224*512}\ns_mul_i32 s29, {FJ4}, {7*512}\ns_add_u32 s28, s28, s29\ns_add_u32 s28, s28, {AF}\ns_add_u32 s29, s28, {2*224*512}")
    for t in range(7):
        for gu in range(2):
            a(f"s_waitcnt lgkmcnt({1 if (gu == 0 or t < 6) else 0})")
            for mt in range(4):
                A = acc[mt][7 * gu + t]
                for p in range(2):
                    a(f"v_pk_fma_f32 {A[2*p:2*p+2]}, {cbuf[gu][2*p:2*p+2]}, {mean[(mt//2)*2:(mt//2)*2+2]}, {A[2*p:2*p+2]} op_sel:[0,{mt%2},0] op_sel_hi:[1,{mt%2},1]")
            if t < 6:
                a(f"ds_read_b128 {cbuf[gu]}, {ca} offset:{gu*448 + 64*(t+1)}")
        for mp in range(2):
            G = [acc[2*mp][t], acc[2*mp+1][t]]; U = [acc[2*mp][7+t], acc[2*mp+1][7+t]]
            for k in range(2):
                for e in range(4):
                    a(f"v_max_f32 {G[k][e]}, 0, {G[k][e]}")
            for k in range(2):
                for p in range(2):
                    a(f"v_pk_mul_f32 {G[k][2*p:2*p+2]}, {G[k][2*p:2*p+2]}, {U[k][2*p:2*p+2]}")
            D = U[0]
            a(f"v_cvt_pk_bf16_f32 {D[0]}, {G[0][0]}, {G[0][1]}\nv_cvt_pk_bf16_f32 {D[1]}, {G[0][2]}, {G[0][3]}")
            a(f"v_cvt_pk_bf16_f32 {D[2]}, {G[1][0]}, {G[1][1]}\nv_cvt_pk_bf16_f32 {D[3]}, {G[1][2]}, {G[1][3]}\ns_nop 1")
            a(f"v_permlane32_swap_b32 {D[0]}, {D[2]}\nv_permlane32_swap_b32 {D[1]}, {D[3]}")
            a(f"buffer_store_dwordx4 {D}, {so}, {WS}, s{28+mp} offen offset:{512*t} {SC} ;@p4out")
    a(f"s_lshl_b32 s47, {MI4}, 7\ns_lshl_b32 s29, {FJ4}, 2\ns_add_u32 s47, s47, s29\ns_add_u32 s47, s47, {F4}")

def phase5(a):
    va = Alloc("v", VW5x[3].b + 1, 256)
    vx = va(2); wa = va(8); wb = va(4); vwb = va(2); vpf = va(); fl = va(); fa = va()
    t0, t1, t2, t3 = va(), va(), va(), va()
    acc = [[va(4, 4) for t in range(8)] for mt in range(2)]
    Wf = [[va(4, 4) for t in range(8)] for b in range(2)]
    NB = 8
    Xf = [[va(4, 4) for mt in range(2)] for b in range(NB)]
    part = [[acc[mt][4 + t] for t in range(4)] for mt in range(2)]
    res = R("v", Wf[0][4].b, 16); stt = R("v", Wf[1][4].b, 16); r2 = wa[0:2]; u = wa[2:8]
    TT, sX, KH5, NJ5, sR, sPF = "s32", "s33", "s34", "s35", "s36", "s37"
    NA, NT = 2 * KA, 2 * (KA + KB)
    pa = Xf[7][1][0]
    a(f"s_lshr_b32 s28, {MI5}, 1\ns_lshl_b32 s28, s28, 7\ns_add_u32 s28, s28, {F4}\nv_lshlrev_b32 {pa}, 2, {r32}\nv_add_u32 {pa}, s28, {pa}")
    publish(a, ["s47"], "p4out", Xf[7][0][0:2])
    stamp(a, 12)
    for j in range(3, WLA):
        a.ext(w5a(j))
    a(f"s_and_b32 {KH5}, {S_XCD}, 1\ns_lshl_b32 {NJ5}, {NB5}, 1\ns_add_u32 {NJ5}, {NJ5}, {KH5}")
    a(f"s_lshl_b32 {TT}, {MI5}, 3\ns_lshl_b32 s28, {S_W}, 1\ns_add_u32 {TT}, {TT}, s28")
    a(f"v_lshrrev_b32 {t0}, 2, {lane}\nv_and_b32 {t0}, 3, {t0}\nv_and_b32 {t1}, 1, {g4}\nv_lshl_add_u32 {t0}, {t1}, 2, {t0}\nv_lshl_add_u32 {t1}, {hh}, 4, {t0}\nv_lshlrev_b32 {t1}, 8, {t1}")
    a(f"s_lshl_b32 s28, {KH5}, 2\nv_xor_b32 {t0}, s28, {t0}\nv_lshl_add_u32 {t1}, {t0}, 5, {t1}\nv_and_b32 {t0}, 3, {lane}\nv_lshl_add_u32 {t1}, {t0}, 3, {t1}\nv_add_u32 {wa[0]}, {R5 + 4*16384}, {t1}")
    for t in range(1, 8):
        a(f"v_xor_b32 {wa[t]}, {32*t}, {wa[0]}")
    wa35(a, wb, t0, t1, R5 + ((KA + 5) % 8) * 16384)
    w64_dma_voff(a, vwb, t0, t1, NJ5)
    a(f"s_add_u32 {sR}, {s5M}, 65536")
    a(f"s_mul_i32 {sX}, {TT}, {224*512}\ns_mul_i32 s28, {KH5}, {NA*1024}\ns_add_u32 {sX}, {sX}, s28\ns_add_u32 {sX}, {sX}, {AF}\nv_mov_b32 {vx[0]}, {vl}\nv_add_u32 {vx[1]}, {224*512}, {vl}")
    a(f"s_lshl_b32 s28, {S_IDX}, 3\ns_lshl_b32 s29, {S_W}, 1\ns_add_u32 s28, s28, s29\nv_and_b32 {vpf}, 1, {lane}\nv_add_u32 {vpf}, s28, {vpf}\nv_lshlrev_b32 {vpf}, 11, {vpf}")
    a(f"s_lshr_b32 s28, {S_XCD}, 2\ns_lshl_b32 s28, s28, 10\ns_add_u32 s28, s28, 384\ns_mul_i32 {sPF}, {KH5}, {KA*64*2048}\ns_add_u32 {sPF}, {sPF}, s28\ns_add_u32 {sPF}, {sPF}, {4*64*2048}")
    a(f"buffer_load_dword {fl}, {vpf}, {SB}, {sPF} offen\ns_add_u32 {sPF}, {sPF}, {4*64*2048}")
    srd(a, 12, P_OUT, 2048 * 2048)
    def wreads(sig):
        s = sig % 2
        if sig < NA:
            return [f"ds_read_b64_tr_b16 {Wf[sig%2][t][2*j:2*j+2]}, {wa[t]} offset:{(((sig//2)+5)%4)*16384 + s*8192 + 2048*j} ;@r5_{sig}_{t}" for t in range(8) for j in range(2)]
        i = sig // 2 - KA
        sl = (KA + i + 5) % 8; b0 = (KA + 5) % 8
        grp = 0 if sl >= b0 and i < 8 - b0 else None
        return [f"ds_read_b64_tr_b16 {Wf[sig%2][t][2*j:2*j+2]}, {wb[t]} offset:{boff(i)*16384 + s*4096 + 1024*j} ;@r5_{sig}_{t}" for t in range(4) for j in range(2)]
    bbase = {}
    cur = (KA + 5) % 8
    for i in range(KB):
        sl = (KA + i + 5) % 8
        if not (0 <= sl - cur < 4):
            cur = sl
        bbase[i] = cur
    boff = lambda i: (KA + i + 5) % 8 - bbase[i]
    a.ext(wreads(0))
    poll(a, "p5", pa, Xf[7][0][0])
    stamp(a, 13)
    def xload(sig):
        o = []
        if sig == NA:
            o += [f"s_mul_i32 {sX}, {TT}, {224*512}", f"s_add_u32 {sX}, {sX}, {AF + 2*NA*1024}"]
        elif sig % 4 == 0 and sig > 0:
            o += [f"s_add_u32 {sX}, {sX}, 4096"]
        o += [f"buffer_load_dwordx4 {Xf[sig%NB][mt]}, {vx[mt]}, {WS}, {sX} offen offset:{(sig%4)*1024} {SC} ;@p5x{sig}" for mt in range(2)]
        return o
    def w5b(j):
        o = []
        if j == KA:
            o += [f"s_mov_b32 {s5W}, {(2*KA-1)*64*2048}", f"s_lshl_b32 s28, {S_W}, 11", f"s_sub_u32 {s5M}, {s5M}, s28"]
        o += [f"s_add_u32 m0, {s5M}, {((j+5)%8)*16384}", f"s_add_u32 {s5W}, {s5W}, {64*2048}"]
        o += [f"buffer_load_dwordx4 {vwb[i]}, {SB}, {s5W} offen offset:{1024*i} lds ;@p5w{j}" for i in range(2)]
        return o
    for sig in range(XLA):
        a.ext(xload(sig))
    side = {k: [] for k in range(NT)}
    side[NA - 1] += [f"s_xor_b32 s28, {S_WG}, 1", "s_lshl_b32 s28, s28, 14", f"s_lshl_b32 s29, {S_W}, 12", "s_add_u32 s28, s28, s29", f"s_add_u32 s30, s28, {XP}"]
    for mt in range(2):
        for p in range(2):
            A, B = acc[mt][4 + 2 * p], acc[mt][5 + 2 * p]
            side[NA + mt] += [f"v_cvt_pk_bf16_f32 {A[0]}, {A[0]}, {A[1]}", f"v_cvt_pk_bf16_f32 {A[1]}, {A[2]}, {A[3]}", f"v_cvt_pk_bf16_f32 {A[2]}, {B[0]}, {B[1]}", f"v_cvt_pk_bf16_f32 {A[3]}, {B[2]}, {B[3]}",
                              f"buffer_store_dwordx4 {A}, {vl}, {WS}, s30 offen offset:{1024*(2*mt+p)} {SC}"]
    pl = [f"buffer_load_dwordx4 {part[k//2][2*(k%2)]}, {vl}, {WS}, s30 offen offset:{1024*k} {SC}" for k in range(4)]
    side[NT - CHK5] += ["s_xor_b32 s30, s30, 16384"] + pl
    side[NA + 4] += [f"s_lshl_b32 s28, {TT}, 15", f"s_lshl_b32 s29, {NJ5}, 11", "s_add_u32 s28, s28, s29", f"s_add_u32 s28, s28, {HF}", f"v_add_u32 {t0}, 32768, {vl}"]
    side[NA + 4] += [f"buffer_load_dwordx4 {res[8*mt+4*p:8*mt+4*p+4]}, {vl if mt == 0 else t0}, {WS}, s28 offen offset:{1024*p} {SC}" for mt in range(2) for p in range(2)]
    q = [f"v_lshlrev_b32 {t1}, 3, {t16}", f"v_lshl_add_u32 {t1}, {g4}, 16, {t1}", f"s_lshl_b32 s28, {TT}, 7", f"s_add_u32 s28, s28, {ST}"]
    for k in range(4):
        q += [f"buffer_load_dwordx2 {stt[8*mt+2*k:8*mt+2*k+2]}, {t1}, {WS}, s28 offen offset:{128*mt} {SC} ;@p5st" for mt in range(2)] + ["s_add_u32 s28, s28, 16384"]
    side[NA + 5] += q[:10]; side[NA + 6] += q[10:]
    q = ["s_waitcnt vmcnt(@p5st)"]
    for mt in range(2):
        T = stt[8 * mt:8 * mt + 8]
        q += [f"v_add_f32 {T[e]}, {T[e]}, {T[2+e]}" for e in range(2)] + [f"v_add_f32 {T[4+e]}, {T[4+e]}, {T[6+e]}" for e in range(2)]
    for mt in range(2):
        q += [f"v_add_f32 {stt[8*mt+e]}, {stt[8*mt+e]}, {stt[8*mt+4+e]}" for e in range(2)]
    vals = [stt[0], stt[1], stt[8], stt[9]]; tm = [stt[2], stt[3], stt[10], stt[11]]
    for sw_ in ("16", "32"):
        q += [f"v_mov_b32 {tm[k]}, {vals[k]}" for k in range(4)] + ["s_nop 0"]
        q += [f"v_permlane{sw_}_swap_b32 {vals[k]}, {tm[k]}" for k in range(4)]
        q += [f"v_add_f32 {vals[k]}, {vals[k]}, {tm[k]}" for k in range(4)]
    for mt in range(2):
        m_, q_ = stt[8 * mt], stt[8 * mt + 1]
        q += [f"v_mul_f32 {m_}, {f32(1/1024)}, {m_}", f"v_mul_f32 {q_}, {f32(1/1024)}, {q_}", f"v_fma_f32 {q_}, -{m_}, {m_}, {q_}", f"v_max_f32 {q_}, 0, {q_}",
              f"v_add_f32 {q_}, {f32(EPS)}, {q_}", f"v_rcp_f32 {r2[mt]}, {q_}"]
    h_ = (len(q) + 2) // 3
    for k in range(3):
        side[NT - 4 + k] += q[k * h_:(k + 1) * h_]
    assert WLA == 4
    for sig in range(NT):
        i, s = divmod(sig, 2)
        inloop = 6 <= sig < 6 + 8 * ((NA - 6) // 8)
        if inloop and sig % 8 == 6:
            a.it("p5")
        if DBG == "p5" and (sig < 6 and sig % 2 == 0 or sig == 6 + 8 * ((NA - 6) // 8) or sig >= NA and sig % 2 == 0):
            stamp(a, 16 + (sig // 2 if sig < 6 else 3 if sig < NA else 4 + (sig - NA) // 2))
        last = i == KA + KB - 1
        nt = 8 if sig < NA else 4
        a(f"s_waitcnt vmcnt(@p5x{sig}" + (f"&p5w{i+1}" if s == 1 and not last else "") + f") lgkmcnt(@r5_{sig}_{nt//2-1})")
        if s == 1 and not last:
            a("s_barrier")
        m = [mf16(acc[mt][t], Wf[sig % 2][t], Xf[sig % NB][mt], 0 if sig == 0 else None) for t in range(nt) for mt in range(2)]
        rd = wreads(sig + 1) if sig < NT - 1 else []
        ex = xload(sig + XLA) if sig + XLA < NT else []
        j = i + WLA
        if j < KA:
            w_ = w5a(j, (sR, ((i + 5) % 4) * 16384) if inloop else None)
            ex += w_[:4] if s == 0 else w_[4:]
        elif j < KA + KB and s == 0:
            ex += w5b(j)
        if sig % 8 == 1 and 6 <= sig < NA - 8 and PF3:
            ex += [f"buffer_load_dword {fl}, {vpf}, {SB}, {sPF} offen", f"s_add_u32 {sPF}, {sPF}, {4*64*2048}"]
        ex += side[sig]
        upd = {}
        if s == 0 and sig < NA - 2 and (i + 5) % 4 == 3:
            upd = {2 * t + 1: f"v_xor_b32 {wa[t]}, {(R5 + 65536) ^ R5}, {wa[t]}" for t in range(8)}
        if s == 1 and inloop and (i + 5) % 4 == 3:
            ex += [f"s_xor_b32 {sR}, {sR}, {(R5 + 65536) ^ R5}"]
        if sig >= NA and s == 0 and not last and bbase[i - KA + 1] != bbase[i - KA]:
            d = (bbase[i - KA + 1] - bbase[i - KA]) * 16384
            upd = {2 * t + 1: (f"v_add_u32 {wb[t]}, {d}, {wb[t]}" if d > 0 else f"v_subrev_u32 {wb[t]}, {-d}, {wb[t]}") for t in range(4)}
        rd2 = [x + ("\n" + upd[k] if k in upd else "") for k, x in enumerate(rd)]
        ng = len(m)
        rper = -(-len(rd2) // ng) if rd2 else 0
        for g in range(ng):
            if g == ng // 2:
                a(f"s_waitcnt lgkmcnt(@r5_{sig}_{nt-1})")
            a(m[g])
            a.ext(rd2[g * rper:(g + 1) * rper])
            lo = (g * len(ex)) // ng; hi = ((g + 1) * len(ex)) // ng
            a.ext(ex[lo:hi])
        if inloop and sig % 8 == 5:
            a.endit()
    stamp(a, 14)
    tmp = R("v", Xf[0][0].b, 32); pk = R("v", Xf[4][0].b, 16)
    a(f"s_lshl_b32 s30, {S_W}, 12")
    dlayout_addr(a, t1, t0, "s30")
    for k in range(16):
        a(f"v_lshlrev_b32 {tmp[2*k]}, 16, {res[k]}\nv_and_b32 {tmp[2*k+1]}, 0xffff0000, {res[k]}")
    for mt in range(2):
        for k in range(8):
            a(f"v_pk_fma_f32 {tmp[16*mt+2*k:16*mt+2*k+2]}, {acc[mt][k//2][2*(k%2):2*(k%2)+2]}, {r2}, {tmp[16*mt+2*k:16*mt+2*k+2]} op_sel:[0,{mt},0] op_sel_hi:[1,{mt},1]")
    def pchk(o):
        P4 = [part[k // 2][2 * (k % 2)] for k in range(4)]
        o(f"s_waitcnt vmcnt(0)\nv_max3_u32 {fl}, {P4[0][0]}, {P4[0][1]}, {P4[0][2]}\nv_max3_u32 {fa}, {P4[2][0]}, {P4[2][1]}, {P4[2][2]}")
        o(f"v_max3_u32 {fl}, {fl}, {P4[0][3]}, {P4[1][0]}\nv_max3_u32 {fa}, {fa}, {P4[2][3]}, {P4[3][0]}\nv_max3_u32 {fl}, {fl}, {P4[1][1]}, {P4[1][2]}\nv_max3_u32 {fa}, {fa}, {P4[3][1]}, {P4[3][2]}")
        o(f"v_max3_u32 {fl}, {fl}, {P4[1][3]}, {P4[3][3]}\nv_max_u32 {fl}, {fl}, {fa}\nv_cmp_eq_u32 vcc, -1, {fl}\ns_nop 1\ns_cmp_lg_u64 vcc, 0")
    pchk(a)
    a("s_cbranch_scc1 L_p5x_spin\nL_p5x_back:")
    t = Asm()
    t(f"L_p5x_spin:\ns_mov_b32 s26, {SPIN_MAX}\nv_lshlrev_b32 {vpf}, 4, {lane}\nL_p5x_spin2:\ns_sleep 2")
    t(f"s_xor_b32 s27, {S_WG}, 0\ns_lshl_b32 s27, s27, 14\ns_lshl_b32 s28, {S_W}, 12\ns_add_u32 s27, s27, s28\ns_add_u32 s27, s27, {XP}")
    t.ext([x.replace("s30", "s27") for x in pl])
    pchk(t)
    t("s_cbranch_scc0 L_p5x_back\ns_sub_u32 s26, s26, 1\ns_cbranch_scc0 L_p5x_spin2\ns_branch L_p5x_back")
    tails.append(t)
    for mt in range(2):
        if True:
            for p in range(2):
                A, B = part[mt][2 * p], part[mt][2 * p + 1]
                a(f"v_lshlrev_b32 {B[0]}, 16, {A[2]}\nv_and_b32 {B[1]}, 0xffff0000, {A[2]}\nv_lshlrev_b32 {B[2]}, 16, {A[3]}\nv_and_b32 {B[3]}, 0xffff0000, {A[3]}")
                a(f"v_lshlrev_b32 {A[2]}, 16, {A[1]}\nv_and_b32 {A[3]}, 0xffff0000, {A[1]}\nv_and_b32 {A[1]}, 0xffff0000, {A[0]}\nv_lshlrev_b32 {A[0]}, 16, {A[0]}")
        for k in range(8):
            a(f"v_pk_fma_f32 {tmp[16*mt+2*k:16*mt+2*k+2]}, {part[mt][k//2][2*(k%2):2*(k%2)+2]}, {r2}, {tmp[16*mt+2*k:16*mt+2*k+2]} op_sel:[0,{mt},0] op_sel_hi:[1,{mt},1]")
        for k in range(8):
            a(f"v_cvt_pk_bf16_f32 {pk[8*mt+k]}, {tmp[16*mt+2*k]}, {tmp[16*mt+2*k+1]}")
    for t in range(4):
        a(f"v_xor_b32 {t2}, {32*t}, {t0}\nv_add_u32 {t2}, {t2}, {t1}")
        for mt in range(2):
            a(f"ds_write_b64 {t2}, {pk[8*mt+2*t:8*mt+2*t+2]} offset:{2048*mt}")
    a(f"v_add_u32 {t2}, s30, {vl}\ns_waitcnt lgkmcnt(0)")
    for i in range(4):
        a(f"ds_read_b128 {tmp[4*i:4*i+4]}, {t2} offset:{i*1024}")
    a(f"s_lshl_b32 s30, {TT}, 4")
    rowmajor_voff(a, t2, t3, t0, t1, "s30", NJ5)
    for i in range(4):
        a(f"s_mov_b32 s29, {i*8*2048}\ns_waitcnt lgkmcnt({3-i})")
        a(f"buffer_store_dwordx4 {tmp[4*i:4*i+4]}, {t2 if i%2==0 else t3}, {SA}, s29 offen {SC}")
    if STAMPS:
        a("s_waitcnt vmcnt(0)")
        stamp(a, 15)
        a(f"s_add_u32 s88, s{P_WS}, {STAMP}\ns_addc_u32 s89, s{P_WS+1}, 0\ns_lshl_b32 s87, {S_WG}, 10\ns_lshl_b32 s86, {S_W}, 8\ns_add_u32 s87, s87, s86")
        a(f"v_lshlrev_b32 {t0}, 2, {lane}\nv_add_u32 {t0}, s87, {t0}\nglobal_store_dword {t0}, {vst}, s[88:89]")
CHK5, PF3, XLA, WLA = 3, True, 6, 4
CORR = 'fmac'

KN = "sequential_preLN__mha_block__glu_gated_reglu__prompt_kernel"
def build(path):
    hdr = open("sequential_preLN__mha_block__glu_gated_reglu__prompt.s.ref").read().split("\n")
    hdr = [l for l in hdr if l.startswith(";") and "@launch" not in l]
    a = Prog()
    a(f"s_cmp_ge_u32 s2, 256\ns_cbranch_scc1 L_end")
    entry(a)
    a.label("L_P1")
    phase1(a)
    a.label("L_P2")
    sxr = phase2(a)
    a.label("L_P3")
    phase3(a, sxr)
    a.label("L_P4")
    phase4(a)
    a.label("L_P5")
    phase5(a)
    a.resolve()
    a.fold()
    errs = check(a.lines, "main")
    a.label("L_end")
    a("s_endpgm")
    for t in tails:
        errs += check(t.lines, "tail")
        a.lines += t.lines
    for e in errs:
        print(e)
    out = list(hdr)
    out.append("; @launch grid=(256,1,1) block=(256,1,1) lds=163840")
    out.append('.amdgcn_target "amdgcn-amd-amdhsa--gfx950"\n.text')
    out.append(f".globl {KN}\n.p2align 8\n.type {KN},@function\n{KN}:")
    out.append(a.text())
    out.append(f""".section .rodata,"a"
.p2align 6
.amdhsa_kernel {KN}
  .amdhsa_next_free_vgpr 512
  .amdhsa_next_free_sgpr 102
  .amdhsa_accum_offset 256
  .amdhsa_group_segment_fixed_size 0
  .amdhsa_kernarg_size 80
  .amdhsa_user_sgpr_count 2
  .amdhsa_user_sgpr_kernarg_segment_ptr 1
  .amdhsa_system_sgpr_workgroup_id_x 1
.end_amdhsa_kernel""")
    open(path, "w").write("\n".join(out) + "\n")
    print(f"wrote {path}: {len(errs)} checker errors")

if __name__ == "__main__":
    import argparse
    ap = argparse.ArgumentParser()
    ap.add_argument("-o", default="v2.s")
    ap.add_argument("--stamps", action="store_true")
    ap.add_argument("--slow", action="store_true")
    ap.add_argument("--spin", type=int, default=None)
    ap.add_argument("--dbg", default=None)
    ap.add_argument("--set", action="append", default=[])
    args = ap.parse_args()
    DBG = args.dbg
    for kv in args.set:
        k, v = kv.split("=")
        globals()[k] = eval(v)
    STAMPS = args.stamps; FORCE_SLOW = args.slow
    if args.spin: SPIN_MAX = args.spin
    build(args.o)
```

```python
import sys, math, re, struct
from asmlib import *

MB = 1 << 20
QF = 0 * MB; KF = 4 * MB; VF = 8 * MB
OF = 12 * MB
AF = 16 * MB
HF = 32 * MB
ST = 36 * MB
CS = 39 * MB
RA = 37 * MB + 65536
CQ = RA + 16384
FLG = 38 * MB
FSM, FSN, F1, F2, FC, F3, F4 = [FLG + 128 * k for k in (0, 16, 32, 48, 64, 72, 80)]
QL = 16384
FLG_BYTES = 128 * 128
XP = 40 * MB
WSZ = 48 * MB
STAMP = 200 * MB
OOB = 0x7ff00000
EPS = 1e-5
SC = "sc1"
STAMPS = False
FORCE_SLOW = False
DBG = None
SPIN_MAX = 1 << 22
def f32(x):
    return "0x%08x" % struct.unpack("<I", struct.pack("<f", x))[0]
def mf32(d, a, b, c=None):
    return f"v_mfma_f32_32x32x16_bf16 {d}, {a}, {b}, {c if c is not None else d}"
def mf16(d, a, b, c=None):
    return f"v_mfma_f32_16x16x32_bf16 {d}, {a}, {b}, {c if c is not None else d}"

S_WG, S_XCD, S_IDX, S_W = "s2", "s3", "s4", "s5"
WS = "s[8:11]"; SA = "s[12:15]"; SB = "s[16:19]"; SCc = "s[20:23]"
P_X, P_WQKV, P_WO, P_BX, P_WG, P_WU, P_WD, P_OUT, P_DBG, P_WS = 64, 66, 68, 70, 72, 74, 76, 78, 80, 82
lane, vl, t16, g4, r32, hh, vst = (R("v", i) for i in range(1, 8))
V0 = 8

class Prog(Asm):
    def it(self, name):
        self.lines.append(f";ITER {name}")
    def endit(self):
        self.lines.append(";ENDITER")
    def resolve(self):
        ops = []
        dso = []
        out = []
        for l in self.lines:
            m = re.search(r"lgkmcnt\(@([^)]*)\)", l)
            if m:
                idx = [i for i, t in enumerate(dso) if t == m.group(1)]
                assert idx, f"ds tag {m.group(1)} not issued"
                l = l.replace(m.group(0), f"lgkmcnt({min(len(dso) - 1 - idx[-1], 15)})")
            if l.startswith("ds_"):
                m = re.search(r";@(\S+)", l)
                dso.append(m.group(1) if m else None)
                l = l.split(";@")[0].strip()
            m = re.search(r"vmcnt\(@([^)]*)\)", l)
            if m:
                tags = m.group(1).split("&")
                n = 10 ** 9
                for tg in tags:
                    idx = [i for i, t in enumerate(ops) if t == tg]
                    assert idx, f"tag {tg} not issued before wait"
                    n = min(n, len(ops) - 1 - idx[-1])
                l = l.replace(m.group(0), f"vmcnt({min(n, 63)})")
            if re.match(r"(buffer_|global_)", l):
                m = re.search(r";@(\S+)", l)
                if not (m and m.group(1) == "skip"):
                    ops.append(m.group(1) if m else None)
                l = l.split(";@")[0].strip()
            out.append(l)
        self.lines = out
    def fold(self, counter="s24"):
        blocks = []
        cur = None
        for l in self.lines:
            if l.startswith(";ITER"):
                cur = (l.split()[1], [])
            elif l.startswith(";ENDITER"):
                blocks.append(("it", cur[0], cur[1])); cur = None
            elif cur is not None:
                cur[1].append(l)
            else:
                blocks.append(("line", l))
        strip = lambda L: [re.sub(r"vmcnt\(\d+\)", "vmcnt()", x) for x in L]
        nums = lambda L: [int(m) for x in L for m in re.findall(r"vmcnt\((\d+)\)", x)]
        for i in range(len(blocks) - 2, -1, -1):
            b, c = blocks[i], blocks[i + 1]
            if b[0] == "it" and c[0] == "it" and b[1] == c[1] and b[2] != c[2] and strip(b[2]) == strip(c[2]):
                if all(y <= x for x, y in zip(nums(b[2]), nums(c[2]))):
                    blocks[i] = ("it", b[1], list(c[2]))
                else:
                    print("   cannot unify", b[1], nums(b[2]), nums(c[2]))
        out = []
        i = 0; k = 0
        while i < len(blocks):
            b = blocks[i]
            if b[0] == "line":
                out.append(b[1]); i += 1; continue
            j = i
            while j + 1 < len(blocks) and blocks[j + 1][0] == "it" and blocks[j + 1][1] == b[1] and blocks[j + 1][2] == b[2]:
                j += 1
            n = j - i + 1
            if n == 1:
                out += b[2]
                print(f"  iter {b[1]}: single ({len(b[2])} instrs)")
            else:
                k += 1
                print(f"  iter {b[1]}: loop x{n} ({len(b[2])} instrs)")
                out += [f"s_mov_b32 {counter}, {n}", ".p2align 4", f"L_{b[1]}_{k}:", ";LOOP"] + b[2] + \
                       [f"s_sub_u32 {counter}, {counter}, 1", f"s_cmp_lg_u32 {counter}, 0", f"s_cbranch_scc1 L_{b[1]}_{k}", ";ENDLOOP"]
            i = j + 1
        self.lines = out

def srd(a, s, ptr, nbytes):
    a(f"s_mov_b32 s{s}, s{ptr}\ns_mov_b32 s{s+1}, s{ptr+1}\ns_mov_b32 s{s+2}, {nbytes}\ns_mov_b32 s{s+3}, 0x20000")

def stamp(a, k):
    if not STAMPS:
        return
    a(f"s_memrealtime s[90:91]\ns_memtime s[88:89]\ns_waitcnt lgkmcnt(0)")
    a(f"v_writelane_b32 {vst}, s90, {k}\nv_writelane_b32 {vst}, s88, {32+k}")

def spread(spine, fillers, maxper=None, start=0, end=None):
    n = len(spine); end = n if end is None else end
    g = end - start
    cnt = [0] * n
    for i in range(len(fillers)):
        cnt[start + (i * g) // len(fillers)] += 1
    return interleave(spine, fillers, per_gap=cnt)

tails = []
def is_mem(x):
    return any(l.startswith(("buffer_", "global_", "ds_")) for l in x.split("\n"))
def sched(spine, lds, other, lds_end=None, first=0):
    n = len(spine)
    lds_end = n - 4 if lds_end is None else lds_end
    nm = sum(is_mem(x) for x in other)
    for lcap in range(1, 40):
        for mcap in (1, 2, 3):
            L = list(lds); O = list(other)
            seq = []; cnt = []; done_m = 0
            for g in range(n):
                c = 0; light = 0; mem = 0
                if g >= first:
                    while True:
                        must_l = L and (len(L) > (lds_end - g - 1) * mcap + (mcap - mem - 1))
                        if O and not is_mem(O[0]) and light < lcap:
                            x = O.pop(0); seq.append(x); c += 1; light += x.count("\n") + 1
                        elif mem < mcap and O and is_mem(O[0]) and not must_l and (done_m * (n - first) <= (g - first) * nm or not L):
                            seq.append(O.pop(0)); c += 1; mem += 1; done_m += 1
                        elif mem < mcap and L:
                            seq.append(L.pop(0)); c += 1; mem += 1
                        else:
                            break
                cnt.append(c)
            if not L and not O:
                return interleave(spine, seq, per_gap=cnt)
    raise RuntimeError("sched failed")

pfn = [0]
def codepf(a, l0, l1, vt, dist=True):
    if not CODEPF:
        return
    a(f"s_add_u32 s56, s58, {l0}-L_base\ns_addc_u32 s57, s59, 0")
    a(f"v_and_b32 {vt}, 7, v0\nv_lshl_add_u32 {vt}, {vt}, 5, {S_IDX}\nv_lshlrev_b32 {vt}, 7, {vt}\nv_min_u32 {vt}, {l1}-{l0}-4, {vt}\nglobal_load_dword {vt}, {vt}, s[56:57]")
CODEPF = True
P1MODE = 2
NTS = 10
ROT = 0
EXP = ''
SWAP37 = True
PF1 = 6
DUMPQ = False
WOT = False
EARLY2 = False
def w0sel(a, dst, val):
    a(f"s_cmp_eq_u32 {S_W}, 0\ns_cselect_b32 {dst}, {val}, {OOB}")
def publish(a, offs, tag, tmp):
    a(f"v_mov_b32 {tmp[0]}, 1\nv_mov_b32 {tmp[1]}, 0")
    for o in offs:
        w0sel(a, o, o)
    a(f"s_waitcnt vmcnt(@{tag})\ns_barrier")
    for o in offs:
        a(f"buffer_store_dword {tmp[0]}, {tmp[1]}, {WS}, {o} offen {SC}")
def poll(a, name, vaddr, t):
    va_ = vaddr if isinstance(vaddr, list) else [vaddr]
    ts = t if isinstance(t, list) else [t]
    a(f"s_cmp_lg_u32 {S_W}, 0\ns_cbranch_scc1 L_{name}_ok\ns_mov_b32 s26, {SPIN_MAX}")
    a.label(f"L_{name}_poll")
    for v, x in zip(va_, ts):
        a(f"buffer_load_dword {x}, {v}, {WS}, 0 offen {SC} ;@skip")
    a(f"s_waitcnt vmcnt(0)")
    if len(ts) == 2:
        a(f"v_min_u32 {ts[0]}, {ts[0]}, {ts[1]}")
    a(f"v_cmp_eq_u32 vcc, 0, {ts[0]}\ns_sub_u32 s26, s26, 1\ns_cselect_b32 s27, 0, vcc_lo\ns_cselect_b32 s28, 0, vcc_hi")
    a(f"s_or_b32 s27, s27, s28\ns_cbranch_scc0 L_{name}_ok\ns_sleep 1\ns_branch L_{name}_poll")
    a.label(f"L_{name}_ok")
    a("s_barrier")
def lazy_check(name, reg, vaddr, srdn, restore):
    t = Asm()
    t.label(f"L_{name}_spin")
    t(f"s_mov_b32 s26, {SPIN_MAX}")
    t.ext(restore)
    t.label(f"L_{name}_spin2")
    t(f"s_sleep 2\nbuffer_load_dword {reg}, {vaddr}, {srdn}, 0 offen {SC}\ns_waitcnt vmcnt(0)\nv_cmp_eq_u32 vcc, 0, {reg}")
    t(f"s_sub_u32 s26, s26, 1\ns_cbranch_scc1 L_{name}_back\ns_cmp_lg_u64 vcc, 0\ns_cbranch_scc1 L_{name}_spin2\ns_branch L_{name}_back")
    tails.append(t)
    return f"v_cmp_eq_u32 vcc, 0, {reg}\ns_nop 1\ns_cmp_lg_u64 vcc, 0\ns_cbranch_scc1 L_{name}_spin\nL_{name}_back:"

def xsum16_32(a, x, y):
    a(f"v_mov_b32 {y}, {x}\ns_nop 1\nv_permlane16_swap_b32 {x}, {y}\nv_add_f32 {x}, {x}, {y}")
    a(f"v_mov_b32 {y}, {x}\ns_nop 1\nv_permlane32_swap_b32 {x}, {y}\nv_add_f32 {x}, {x}, {y}")

def entry(a):
    a("s_getpc_b64 s[58:59]\nL_base:")
    a(f"s_load_dwordx16 s[64:79], s[0:1], 0\ns_load_dwordx4 s[80:83], s[0:1], 64")
    a(f"v_lshrrev_b32 {lane}, 6, v0\nv_and_b32 {r32}, 31, v0\nv_readfirstlane_b32 {S_W}, {lane}\nv_and_b32 {lane}, 63, v0")
    a(f"v_lshlrev_b32 {vl}, 4, {lane}\nv_and_b32 {t16}, 15, {lane}\nv_lshrrev_b32 {g4}, 4, {lane}\nv_lshrrev_b32 {hh}, 5, {lane}")
    a(f"s_and_b32 {S_XCD}, {S_WG}, 7\ns_lshr_b32 {S_IDX}, {S_WG}, 3")
    if STAMPS:
        a(f"v_mov_b32 {vst}, 0")

def phase1(a):
    XS, HS, WB, NW = 16384, 12288, 65536, 7
    TAB = WB + NW * HS
    va = Alloc("v", V0, 256); aa = Alloc("a", 0, 256)
    vxd = va(4); vwd = va(3); xa = va(2); wa = [va(2), va(2)]
    t0, t1, t2, t3 = va(), va(), va(), va()
    acc = [[[va(4, 4) for dt in range(2)] for sg in range(3)] for mt in range(4)]
    Xf = [[aa(4, 4) for mt in range(4)] for b in range(2)]
    Wf = [[[aa(4, 4) for dt in range(2)] for sg in range(3)] for b in range(2)]
    sx = va(16, 4)
    sacc = va(16, 4)
    sw = aa(32, 4); ident = aa(4, 4)
    u = va(8, 4)
    cq = va(16, 4); cv = va(2); dbg = va()
    MI, NJ, WM, WN = "s32", "s33", "s34", "s35"
    sX, sW, sDW, sRW, mX, mW = "s36", "s37", "s38", "s39", "s40", "s41"
    stamp(a, 0)
    a(f"s_and_b32 {MI}, {S_XCD}, 1\ns_lshl_b32 {MI}, {MI}, 3\ns_and_b32 s29, {S_IDX}, 7\ns_add_u32 {MI}, {MI}, s29")
    a(f"s_lshr_b32 {NJ}, {S_XCD}, 1\ns_lshl_b32 {NJ}, {NJ}, 2\ns_lshr_b32 s29, {S_IDX}, 3\ns_add_u32 {NJ}, {NJ}, s29")
    a(f"s_and_b32 {WM}, {S_W}, 1\ns_lshr_b32 {WN}, {S_W}, 1")
    a(f"v_lshrrev_b32 {t0}, 3, {lane}\ns_lshl_b32 s29, {MI}, 7\ns_lshl_b32 s28, {S_W}, 5\ns_add_u32 s29, s29, s28")
    a(f"v_add_u32 {t1}, s29, {t0}\nv_lshlrev_b32 {t1}, 11, {t1}")
    a(f"v_and_b32 {t2}, 7, {lane}\nv_xor_b32 {t2}, {t2}, {g4}\nv_xor_b32 {t3}, 4, {t2}")
    a(f"v_lshl_add_u32 {vxd[0]}, {t2}, 4, {t1}\nv_lshl_add_u32 {t3}, {t3}, 4, {t1}")
    a(f"v_add_u32 {vxd[1]}, {15360}, {t3}\nv_add_u32 {vxd[2]}, {2*15360}, {vxd[0]}\nv_add_u32 {vxd[3]}, {3*15360}, {t3}")
    a(f"v_mul_u32_u24 {t0}, 6144, {t0}\nv_and_b32 {t1}, 1, {g4}\nv_lshlrev_b32 {t1}, 1, {t1}\nv_and_b32 {t2}, 7, {lane}\nv_xor_b32 {t1}, {t1}, {t2}")
    a(f"s_mul_i32 s31, {S_W}, 3\ns_and_b32 s30, {NJ}, 12")
    for i in range(3):
        a(f"s_add_u32 s28, s31, {i}\ns_lshr_b32 s29, s28, 2\ns_mul_i32 s27, s29, {ROT}\ns_add_u32 s27, s27, {NJ}\ns_and_b32 s27, s27, 3\ns_or_b32 s27, s27, s30")
        a(f"s_lshl_b32 s29, s29, 4\ns_add_u32 s29, s29, s27\ns_lshl_b32 s29, s29, 7\ns_and_b32 s28, s28, 3")
        a(f"s_and_b32 s27, s28, 1\ns_lshl_b32 s27, s27, 2\ns_mul_i32 s28, s28, {8*6144}\ns_add_u32 s28, s28, s29\ns_sub_u32 s28, s28, {1024*i}")
        a(f"v_xor_b32 {t2}, s27, {t1}\nv_lshl_add_u32 {t2}, {t2}, 4, {t0}\nv_add_u32 {vwd[i]}, s28, {t2}")
    for sg in range(3):
        a(f"s_add_u32 s27, {NJ}, {ROT*sg}\ns_and_b32 s27, s27, 3\ns_or_b32 s{60+sg}, s27, s30")
    a("s_waitcnt lgkmcnt(0)")
    srd(a, 12, P_X, 2048 * 2048)
    srd(a, 16, P_WQKV, 1024 * 6144)
    a(f"s_mov_b32 {sX}, 0\ns_mov_b32 {sW}, 0")
    a(f"s_lshl_b32 {mX}, {S_W}, 12\ns_mul_i32 {mW}, {S_W}, 3072\ns_add_u32 {mW}, {mW}, {WB}")
    def xdma(slab, rng=range(4)):
        o = [f"s_add_u32 m0, {mX}, {(slab%4)*XS}", f"s_mov_b32 {sX}, {128*slab}"]
        o += [f"buffer_load_dwordx4 {vxd[i]}, {SA}, {sX} offen offset:{i*1024} lds ;@x{slab}" for i in rng]
        return o
    def wdma(hs):
        o = [f"s_add_u32 m0, {mW}, {(hs%NW)*HS}", f"s_mov_b32 {sW}, {32*6144*hs}"]
        o += [f"buffer_load_dwordx4 {vwd[i]}, {SB}, {sW} offen offset:{i*1024} lds ;@w{hs}" for i in range(3)]
        return o
    def dmas(sig):
        i, s = divmod(sig, 2)
        o = []
        if P1MODE == 0:
            if sig == 0:
                return xdma(2) + wdma(4) + wdma(5)
            if sig == 1:
                return wdma(6) + wdma(7) + xdma(3)
            if sig == 2:
                return wdma(8) + xdma(4)
        elif P1MODE == 1:
            if sig == 0:
                return wdma(6) + xdma(3)
        else:
            if sig == 0:
                return xdma(2) + wdma(4) + wdma(5)
            if sig == 1:
                return wdma(6) + wdma(7) + xdma(3)
            if sig == 2:
                return wdma(8) + xdma(4)
        if s == 1:
            if 2 * i + 7 < 32: o += wdma(2 * i + 7)
            if i + 4 < 16: o += xdma(i + 4, range(2))
        else:
            if 2 * i + 6 < 32: o += wdma(2 * i + 6)
            if i + 3 < 16: o += xdma(i + 3, range(2, 4))
        return o
    def side_loads():
        a(f"s_lshl_b32 s42, {MI}, 7\ns_lshl_b32 s28, {NJ}, 3\ns_add_u32 s42, s42, s28\ns_lshl_b32 s28, {S_W}, 1\ns_add_u32 s42, s42, s28")
        a(f"v_lshlrev_b32 {t0}, 11, {hh}\nv_lshl_add_u32 {t0}, {r32}, 4, {t0}\ns_lshl_b32 s28, s42, 11")
        for i in range(4):
            a(f"buffer_load_dwordx4 {sx[4*i:4*i+4]}, {t0}, {SA}, s28 offen offset:{512*i} ;@sx")
        a(f"v_lshrrev_b32 {t0}, 2, {r32}\nv_mul_u32_u24 {t0}, 6144, {t0}\nv_and_b32 {t1}, 3, {lane}\nv_lshl_add_u32 {t0}, {t1}, 5, {t0}\nv_lshl_add_u32 {t0}, {hh}, 4, {t0}")
        a(f"s_and_b32 s28, {MI}, 3\ns_lshl_b32 s28, s28, 2\ns_add_u32 s28, s28, {S_W}\ns_mul_i32 s28, s28, {64*6144}")
        a(f"s_lshr_b32 s43, {MI}, 2\ns_mul_i32 s63, s43, {ROT}\ns_add_u32 s63, s63, {NJ}\ns_and_b32 s63, s63, 3\ns_or_b32 s63, s63, s30\ns_lshl_b32 s29, s43, 11\ns_add_u32 s28, s28, s29\ns_lshl_b32 s29, s63, 7\ns_add_u32 s28, s28, s29\ns_cmp_eq_u32 s43, 3\ns_cselect_b32 s28, {OOB}, s28")
        for i in range(8):
            a(f"buffer_load_dwordx4 {sw[4*i:4*i+4]}, {t0}, {SB}, s28 offen ;@sw\ns_add_u32 s28, s28, {8*6144}")
    def resets():
        srd(a, 8, P_WS, WSZ)
        srd(a, 20, P_DBG, 256)
        a(f"s_lshl_b32 s28, {S_W}, 12\ns_add_u32 s28, s28, {FLG}\ns_cmp_eq_u32 {S_WG}, 0\ns_cselect_b32 s28, s28, {OOB}")
        for r in range(4):
            a(f"v_mov_b32 {cq[r]}, 0\nv_mov_b32 {cq[4+r]}, -1")
        for i in range(4):
            a(f"buffer_store_dwordx4 {cq[0:4]}, {vl}, {WS}, s28 offen offset:{1024*i} {SC} ;@rst")
    if P1MODE == 0:
        if DBG == "p0": stamp(a, 16)
        a.ext(xdma(0) + wdma(0) + wdma(1))
        if DBG == "p0": stamp(a, 17)
        codepf(a, "L_P1", "L_P2", dbg)
        resets()
        if DBG == "p0": stamp(a, 18)
        a.ext(xdma(1) + wdma(2) + wdma(3))
        if DBG == "p0": stamp(a, 19)
        side_loads()
        if DBG == "p0": stamp(a, 20)
    elif P1MODE == 2:
        if DBG == "p0": stamp(a, 16)
        a.ext(xdma(0) + wdma(0) + wdma(1))
        if DBG == "p0": stamp(a, 17)
        a(f"v_min_u32 {t0}, {2*NTS-1}, {lane}\nv_lshrrev_b32 {t1}, 1, {t0}\nv_and_b32 {t0}, 1, {t0}\ns_lshl_b32 s28, {S_WG}, 3\ns_lshl_b32 s29, {S_W}, 1\ns_add_u32 s28, s28, s29")
        a(f"v_add_u32 {t0}, s28, {t0}\nv_lshlrev_b32 {t0}, 11, {t0}\nv_lshl_add_u32 {t0}, {t1}, 7, {t0}")
        a(f"buffer_load_dword {cv[0]}, {t0}, {SA}, 0 offen offset:128")
        a(f"v_min_u32 {t0}, {3*NTS-1}, {lane}\nv_mul_u32_u24 {t1}, 43, {t0}\nv_lshrrev_b32 {t1}, 7, {t1}\nv_mul_u32_u24 {t2}, 3, {t1}\nv_sub_u32 {t0}, {t0}, {t2}")
        a(f"s_mul_i32 s28, {S_WG}, 12\ns_mul_i32 s29, {S_W}, 3\ns_add_u32 s28, s28, s29\nv_add_u32 {t0}, s28, {t0}")
        a(f"s_mov_b32 s28, {(1<<32)//48 + 1}\nv_mul_hi_u32 {t2}, {t0}, s28\nv_lshl_add_u32 {t1}, {t1}, 6, {t2}\nv_mul_u32_u24 {t2}, 48, {t2}\nv_sub_u32 {t0}, {t0}, {t2}")
        a(f"v_mul_u32_u24 {t1}, 6144, {t1}\nv_lshl_add_u32 {t0}, {t0}, 7, {t1}\ns_mov_b32 s28, {64*6144}")
        a(f"buffer_load_dword {cv[1]}, {t0}, {SB}, s28 offen")
        codepf(a, "L_P1", "L_P2", dbg)
        if DBG == "p0": stamp(a, 18)
        a.ext(xdma(1) + wdma(2) + wdma(3))
        if DBG == "p0": stamp(a, 19); stamp(a, 20)
        srd(a, 8, P_WS, WSZ)
        srd(a, 20, P_DBG, 256)
    else:
        side_loads()
        codepf(a, "L_P1", "L_P2", dbg)
        a.ext(xdma(0) + wdma(0) + wdma(1))
        resets()
        a.ext(xdma(1) + wdma(2) + wdma(3) + xdma(2) + wdma(4) + wdma(5))
    a(f"v_lshrrev_b32 {t0}, 1, {t16}\nv_xor_b32 {t0}, {t0}, {g4}\ns_lshl_b32 s28, {WM}, 13\nv_lshlrev_b32 {t1}, 7, {t16}\nv_add_u32 {t1}, s28, {t1}")
    a(f"v_lshl_add_u32 {xa[0]}, {t0}, 4, {t1}\nv_xor_b32 {xa[1]}, 64, {xa[0]}")
    a(f"v_lshrrev_b32 {t0}, 2, {lane}\nv_and_b32 {t0}, 3, {t0}\nv_lshl_add_u32 {t1}, {g4}, 3, {t0}\nv_lshlrev_b32 {t1}, 7, {t1}")
    a(f"v_lshrrev_b32 {t0}, 1, {t0}\nv_and_b32 {t2}, 1, {g4}\nv_lshl_add_u32 {t0}, {t2}, 1, {t0}\ns_lshl_b32 s28, {WN}, 1\nv_xor_b32 {t0}, s28, {t0}")
    a(f"v_lshl_add_u32 {t1}, {t0}, 5, {t1}\nv_and_b32 {t0}, 3, {lane}\nv_lshl_add_u32 {t1}, {t0}, 3, {t1}\nv_add_u32 {wa[0][0]}, {WB}, {t1}\nv_xor_b32 {wa[0][1]}, 32, {wa[0][0]}")
    a(f"v_add_u32 {wa[1][0]}, {4*HS}, {wa[0][0]}\nv_add_u32 {wa[1][1]}, {4*HS}, {wa[0][1]}")
    a(f"v_lshrrev_b32 {t0}, 3, {r32}\nv_and_b32 {t1}, 7, {r32}\nv_and_b32 {t2}, 1, {t1}\nv_lshlrev_b32 {t2}, 4, {t2}\nv_mov_b32 {t3}, 0x3f80\nv_lshlrev_b32 {t3}, {t2}, {t3}")
    a(f"v_cmp_eq_u32 vcc, {t0}, {hh}\nv_lshrrev_b32 {t1}, 1, {t1}\ns_nop 0\nv_cndmask_b32 {t3}, 0, {t3}, vcc")
    for r in range(4):
        a(f"v_cmp_eq_u32 vcc, {r}, {t1}\ns_nop 1\nv_cndmask_b32 {t2}, 0, {t3}, vcc\nv_accvgpr_write_b32 {ident[r]}, {t2}")
    def xreads(sig):
        i, s = divmod(sig, 2)
        return [f"ds_read_b128 {Xf[sig%2][mt]}, {xa[s]} offset:{(i%4)*XS + mt*2048}" for mt in range(4)]
    def wreads(sig):
        sl = sig % NW
        return [f"ds_read_b64_tr_b16 {Wf[sig%2][sg][dt][2*j:2*j+2]}, {wa[sl//4][dt]} offset:{(sl%4)*HS + sg*4096 + 512*j}" for sg in range(3) for dt in range(2) for j in range(2)]
    stamp(a, 1)
    a("s_waitcnt vmcnt(@w1&x0)")
    if DBG == "p0": stamp(a, 21)
    a("s_barrier")
    a.ext(xreads(0) + wreads(0))
    side = {k: [] for k in range(32)}
    SH = 4 if P1MODE == 2 else 0
    if P1MODE == 2:
        real = a
        a = Asm(); side_loads(); L_ = a.lines
        grp = []
        for l in L_:
            if l.startswith("s_cselect"): grp[-1] += "\n" + l
            else: grp.append(l)
        h_ = (len(grp) + 2) // 3
        for k in range(3): side[3 + k] += grp[k * h_:(k + 1) * h_]
        a = Asm(); resets(); L_ = a.lines[8:]
        grp = []
        for l in L_:
            if l.startswith("s_cselect"): grp[-1] += "\n" + l
            else: grp.append(l)
        side[6] += grp
        a = real
    ss, sq, lo, hi = u[0], u[1], u[2], u[3]
    q = ["s_waitcnt vmcnt(@sw)", f"v_mov_b32 {ss}, 0", f"v_mov_b32 {sq}, 0"]
    q += [mf32(sacc, sw[0:4], ident, 0)] + [mf32(sacc, sw[4*i:4*i+4], ident) for i in range(1, 8)]
    for r in range(16):
        q += [f"v_lshlrev_b32 {lo}, 16, {sx[r]}", f"v_and_b32 {hi}, 0xffff0000, {sx[r]}", f"v_add_f32 {ss}, {ss}, {lo}", f"v_fmac_f32 {sq}, {lo}, {lo}",
              f"v_add_f32 {ss}, {ss}, {hi}", f"v_fmac_f32 {sq}, {hi}, {hi}"]
    for cb in range(4):
        q += [f"v_add_f32 {sacc[cb]}, {sacc[cb]}, {sacc[4+cb]}", f"v_add_f32 {sacc[8+cb]}, {sacc[8+cb]}, {sacc[12+cb]}"]
    for cb in range(4):
        q += [f"v_add_f32 {sacc[cb]}, {sacc[cb]}, {sacc[8+cb]}"]
    for cb in range(4):
        q += [f"v_mov_b32 {sacc[4+cb]}, {sacc[cb]}"]
    dpp = lambda x, m: f"v_add_f32_dpp {x}, {x}, {x} {m} row_mask:0xf bank_mask:0xf"
    q += [dpp(ss, "quad_perm:[1,0,3,2]"), dpp(sq, "quad_perm:[1,0,3,2]")]
    q += [f"v_permlane32_swap_b32 {sacc[cb]}, {sacc[4+cb]}" for cb in range(2)]
    q += [dpp(ss, "quad_perm:[2,3,0,1]"), dpp(sq, "quad_perm:[2,3,0,1]")]
    q += [f"v_permlane32_swap_b32 {sacc[cb]}, {sacc[4+cb]}" for cb in range(2, 4)]
    q += [dpp(ss, "row_half_mirror"), dpp(sq, "row_half_mirror")]
    q += [f"v_add_f32 {sacc[cb]}, {sacc[cb]}, {sacc[4+cb]}" for cb in range(2)]
    q += [dpp(ss, "row_mirror"), dpp(sq, "row_mirror")]
    q += [f"v_add_f32 {sacc[cb]}, {sacc[cb]}, {sacc[4+cb]}" for cb in range(2, 4)]
    q += [f"v_mov_b32 {lo}, {ss}", f"v_mov_b32 {hi}, {sq}", f"s_lshl_b32 s28, {S_W}, 8", f"s_add_u32 s28, s28, {TAB}", f"v_lshl_add_u32 {t0}, {t16}, 4, s28", f"v_and_b32 {t1}, 16, {lane}", f"v_lshl_add_u32 {t0}, {t1}, 6, {t0}"]
    q += [f"v_permlane16_swap_b32 {ss}, {lo}", f"v_permlane16_swap_b32 {sq}, {hi}",
          f"ds_write_b128 {t0}, {sacc[0:4]}"]
    q += [f"v_add_f32 {ss}, {ss}, {lo}", f"v_add_f32 {sq}, {sq}, {hi}", f"v_mul_f32 {ss}, {f32(-1/1024)}, {ss}", f"v_mul_f32 {sq}, {f32(1/1024)}, {sq}",
          f"v_fma_f32 {sq}, -{ss}, {ss}, {sq}", f"v_max_f32 {sq}, 0, {sq}", f"v_add_f32 {sq}, {f32(EPS)}, {sq}", f"v_rsq_f32 {sq}, {sq}",
          f"v_lshlrev_b32 {t0}, 2, {hh}", f"s_lshl_b32 s28, s42, 2", f"s_add_u32 s28, s28, {RA}",
          f"buffer_store_dword {sq}, {t0}, {WS}, s28 offen {SC}", f"s_add_u32 s28, s28, 8192", f"buffer_store_dword {ss}, {t0}, {WS}, s28 offen {SC}"]
    s0 = {0: 3, 1: 0, 2: 7}[P1MODE]; s1 = 9 + SH
    per = -(-len(q) // (s1 - s0))
    for k in range(s1 - s0):
        side[s0 + k] += q[k * per:(k + 1) * per]
    q = [f"v_lshlrev_b32 {t0}, 4, {t16}", f"v_lshl_add_u32 {t0}, {g4}, 2, {t0}", f"v_add_u32 {t0}, {TAB}, {t0}"]
    q += [f"ds_read_b32 {u[4+k]}, {t0} offset:{256*k}" for k in range(4)]
    q += [f"s_and_b32 s28, {MI}, 3", f"s_mul_i32 s28, s28, {3072*4}", "s_lshl_b32 s29, s43, 12", "s_add_u32 s28, s28, s29", f"s_lshl_b32 s29, s63, 8",
          "s_add_u32 s28, s28, s29", f"s_add_u32 s28, s28, {CQ}", f"s_lshl_b32 s29, {S_W}, 2", "s_or_b32 s29, s29, s43", f"s_cmp_lt_u32 s29, 3\ns_cselect_b32 s28, s28, {OOB}",
          f"v_lshlrev_b32 {t0}, 2, {lane}", "s_waitcnt lgkmcnt(0)",
          f"v_add_f32 {u[4]}, {u[4]}, {u[5]}", f"v_add_f32 {u[6]}, {u[6]}, {u[7]}", f"v_add_f32 {u[4]}, {u[4]}, {u[6]}",
          f"buffer_store_dword {u[4]}, {t0}, {WS}, s28 offen {SC} ;@sdone"]
    side[9 + SH] += q
    RS = 1 if P1MODE != 2 else 9
    side[RS] = [f"v_mov_b32 {t2}, 1", f"v_mov_b32 {t3}, 0", f"s_or_b32 s28, {S_WG}, {S_W}", f"s_cmp_eq_u32 s28, 0\ns_cselect_b32 s28, 0, {OOB}",
                f"buffer_store_dword {t2}, {t3}, {SCc}, s28 offen {SC}"] + side[RS]
    side[8 + SH] = [f"v_mov_b32 {t3}, 0", f"v_mov_b32 {dbg}, 1", f"s_cmp_lg_u32 {S_W}, 0\ns_cbranch_scc1 L_p1_nd\nbuffer_load_dword {dbg}, {t3}, {SCc}, 0 offen {SC} ;@skip\nL_p1_nd:"] + side[8 + SH]
    side[10 + SH] += ["s_waitcnt vmcnt(@sdone)", lazy_check("p1d", dbg, t3, SCc, [])]
    side[11 + SH] += [f"v_mov_b32 {t0}, 1", f"v_mov_b32 {t1}, 0", f"s_lshl_b32 s28, {MI}, 7", f"s_lshl_b32 s29, {NJ}, 2", "s_add_u32 s28, s28, s29", f"s_add_u32 s28, s28, {FSM}",
                 f"s_cmp_eq_u32 {S_W}, 0\ns_cselect_b32 s28, s28, {OOB}", f"buffer_store_dword {t0}, {t1}, {WS}, s28 offen {SC}",
                 f"s_lshl_b32 s28, {NJ}, 7", f"s_lshl_b32 s29, {MI}, 2", "s_add_u32 s28, s28, s29", f"s_add_u32 s28, s28, {FSN}",
                 f"s_cmp_eq_u32 {S_W}, 0\ns_cselect_b32 s28, s28, {OOB}", f"buffer_store_dword {t0}, {t1}, {WS}, s28 offen {SC}"]
    if CODEPF:
        t = Asm(); codepf(t, "L_P2", "L_P4", cv[0])
        side[20] += ["\n".join(t.lines[:2])] + t.lines[2:]
    side[16] += [f"s_lshl_b32 s28, {S_WG}, 14", f"s_lshl_b32 s29, {S_W}, 12", "s_add_u32 s28, s28, s29", f"s_add_u32 s28, s28, {XP}"]
    for i in range(4):
        side[16 + i] += [f"buffer_store_dwordx4 {cq[4:8]}, {vl}, {WS}, s28 offen offset:{1024*i} {SC}"]
    if WOT:
        side[21] += [f"s_mov_b32 s20, s{P_WO}", f"s_mov_b32 s21, s{P_WO+1}", f"s_mov_b32 s22, {1024*2048}", f"s_lshl_b32 s28, {S_WG}, 2", f"s_add_u32 s28, s28, {S_W}", "s_lshl_b32 s28, s28, 11",
                     f"v_lshlrev_b32 {t0}, 7, {t16}", f"buffer_load_dword {cv[1]}, {t0}, {SCc}, s28 offen"]
    if PF1:
        pfv = cq[10]
        side[0] = [f"v_min_u32 {pfv}, 2, {lane}", f"v_lshlrev_b32 {pfv}, 11, {pfv}", f"s_lshl_b32 s28, {S_IDX}, 2", f"s_add_u32 s28, s28, {S_W}", "s_mul_i32 s28, s28, 6144",
                   f"s_or_b32 s29, {NJ}, 3", "s_lshl_b32 s27, s29, 7", "s_add_u32 s28, s28, s27", f"s_add_u32 s28, s28, {PF1*64*6144}", "s_and_b32 s29, s29, 7",
                   f"s_cmp_eq_u32 s29, 3\ns_cselect_b32 s49, s28, {OOB}"] + side[0]
        for j in range((16 - PF1) // 2):
            side[1 + 4 * j if j else 1] += [f"buffer_load_dword {cq[11 + j % 2]}, {pfv}, {SB}, s49 offen", f"s_add_u32 s49, s49, {128*6144}"]
    side[22] += [f"s_lshl_b32 s28, {MI}, 7", f"s_add_u32 s28, s28, {FSM}", f"s_lshl_b32 s29, {NJ}, 7", f"s_add_u32 s29, s29, {FSN}", f"v_and_b32 {t2}, 1, {g4}",
                 f"v_mov_b32 {t3}, s28", f"v_mov_b32 {dbg}, s29", f"v_cmp_eq_u32 vcc, 0, {t2}\ns_nop 1\nv_cndmask_b32 {t3}, {dbg}, {t3}, vcc", f"v_lshl_add_u32 {t3}, {t16}, 2, {t3}",
                 f"v_mov_b32 {dbg}, 1", f"s_cmp_lg_u32 {S_W}, 0\ns_cbranch_scc1 L_p1_nf\nbuffer_load_dword {dbg}, {t3}, {WS}, 0 offen {SC} ;@skip\nL_p1_nf:"]
    side[24] += ["s_waitcnt vmcnt(@w29)", lazy_check("p1f", dbg, t3, WS, [])]
    la, lb = u[0:4], u[4:8]
    q = [f"v_and_b32 {t0}, 127, v0", f"v_lshlrev_b32 {t0}, 2, {t0}", f"v_lshrrev_b32 {t1}, 7, v0", f"v_lshl_add_u32 {t0}, {t1}, 13, {t0}", f"s_lshl_b32 s28, {MI}, 9", f"s_add_u32 s28, s28, {RA}",
         f"buffer_load_dword {cq[0]}, {t0}, {WS}, s28 offen {SC}",
         f"v_lshlrev_b32 {t0}, 2, {lane}", f"s_min_u32 s29, {S_W}, 2", f"s_mul_i32 s28, s29, {ROT}", f"s_add_u32 s28, s28, {NJ}", "s_and_b32 s28, s28, 3", "s_or_b32 s28, s28, s30", "s_lshl_b32 s28, s28, 8", "s_lshl_b32 s29, s29, 12", "s_add_u32 s28, s28, s29", f"s_add_u32 s28, s28, {CQ}"]
    for k in range(4):
        q += [f"buffer_load_dword {cq[1+k]}, {t0}, {WS}, s28 offen {SC} ;@cons", f"s_add_u32 s28, s28, {3072*4}"]
    side[25] += q
    side[28] += ["s_waitcnt vmcnt(@cons)", f"v_add_f32 {cq[1]}, {cq[1]}, {cq[2]}", f"v_add_f32 {cq[3]}, {cq[3]}, {cq[4]}", f"v_lshlrev_b32 {t0}, 2, v0", f"v_add_u32 {t0}, {TAB}, {t0}",
                 f"v_add_f32 {cq[1]}, {cq[1]}, {cq[3]}", f"ds_write_b32 {t0}, {cq[0]}", f"ds_write_b32 {t0}, {cq[1]} offset:1024"]
    q = [f"s_lshl_b32 s28, {WM}, 8", f"s_add_u32 s28, s28, {TAB}", f"v_lshl_add_u32 {t0}, {t16}, 2, s28", f"v_lshl_add_u32 {t1}, {g4}, 4, s28",
         f"s_lshl_b32 s28, {WN}, 7", f"s_add_u32 s28, s28, {TAB + 1024}", f"v_lshl_add_u32 {t2}, {t16}, 2, s28", f"v_lshl_add_u32 {t3}, {g4}, 4, s28"]
    side[30] += q
    q = []
    for k in range(4):
        q += [f"ds_read_b128 {cq[4*k:4*k+4]}, {t3} offset:{(k//2)*256 + (k%2)*64}"]
    for mt in range(4):
        q += [f"ds_read_b32 {la[mt]}, {t0} offset:{64*mt}", f"ds_read_b32 {lb[mt]}, {t0} offset:{512 + 64*mt}"]
    for mt in range(4):
        q += [f"ds_read_b128 {sx[4*mt:4*mt+4]}, {t1} offset:{64*mt}", f"ds_read_b128 {sacc[4*mt:4*mt+4]}, {t1} offset:{512 + 64*mt}"]
    q += [f"ds_read_b32 {cv[0]}, {t2} offset:512", f"ds_read_b32 {cv[1]}, {t2} offset:576"]
    side[31] += q
    for sig in range(32):
        i, s = divmod(sig, 2)
        if sig % 8 == 0:
            a.it("p1")
        if DBG == "p0" and sig < 8:
            stamp(a, 22 + sig)
        if sig % 2 == 0 and DBG == "p1":
            stamp(a, 16 + sig // 2)
        cur = sig % 2
        if s == 1 and i < 15:
            extra = "&rst" if sig == RS else ""
            a(f"s_waitcnt vmcnt(@w{2*i+3}&x{i+1}{extra}) lgkmcnt(0)\ns_barrier")
        else:
            a("s_waitcnt lgkmcnt(0)")
        m = []
        for sg in range(3):
            for dt in range(2):
                for mt in range(4):
                    c = 0 if sig == 0 else None
                    if sg < 2:
                        m.append(mf16(acc[mt][sg][dt], Wf[cur][sg][dt], Xf[cur][mt], c))
                    else:
                        m.append(mf16(acc[mt][sg][dt], Xf[cur][mt], Wf[cur][sg][dt], c))
        fl = xreads(sig + 1) + wreads(sig + 1) if sig < 31 else []
        a.ext(sched(m, fl, dmas(sig) + side[sig]))
        if sig % 8 == 7:
            a.endit()
    stamp(a, 2)
    a("s_waitcnt lgkmcnt(0)")
    CQS = (32 ** -0.5) * math.log2(math.e)
    a(f"s_lshl_b32 s28, {WN}, 17\ns_lshl_b32 s29, {MI}, 13\ns_add_u32 s28, s28, s29\ns_lshl_b32 s29, {WM}, 12\ns_add_u32 s46, s28, s29")
    a(f"v_lshlrev_b32 {t0}, 9, {g4}\nv_lshl_add_u32 {t0}, {t16}, 4, {t0}")
    a(f"v_and_b32 {t1}, 1, {g4}\nv_lshlrev_b32 {t1}, 9, {t1}\nv_lshl_add_u32 {t1}, {hh}, 8, {t1}\nv_lshl_add_u32 {t1}, {t16}, 4, {t1}")
    laq = R("v", vxd.b, 4)
    for mt in range(4):
        a(f"v_mul_f32 {laq[mt]}, {f32(CQS)}, {la[mt]}")
    def sel(r):
        base = r.b & ~1
        return R("v", base, 2), r.b & 1
    def qk(sg):
        if sg == 1:
            a(f"s_lshl_b32 s28, s{60+sg}, 18\ns_add_u32 s28, s28, s46\ns_add_u32 s28, s28, {sg*4*MB}")
        else:
            a(f"s_lshl_b32 s28, {WN}, 13\ns_lshl_b32 s29, {WM}, 12\ns_add_u32 s28, s28, s29\ns_add_u32 s28, s28, {QL}\nv_add_u32 {t0}, s28, {t0}")
        for mt in range(4):
            bp, bo = sel(lb[mt]); ap, ao = sel(laq[mt] if sg == 0 else la[mt])
            A = [acc[mt][sg][0], acc[mt][sg][1]]
            for dt in range(2):
                for p in range(2):
                    a(f"v_pk_fma_f32 {A[dt][2*p:2*p+2]}, {cq[8*sg+4*dt+2*p:8*sg+4*dt+2*p+2]}, {bp}, {A[dt][2*p:2*p+2]} op_sel:[0,{bo},0] op_sel_hi:[1,{bo},1]")
            for dt in range(2):
                for p in range(2):
                    a(f"v_pk_mul_f32 {A[dt][2*p:2*p+2]}, {A[dt][2*p:2*p+2]}, {ap} op_sel:[0,{ao}] op_sel_hi:[1,{ao}]")
            a(f"v_cvt_pk_bf16_f32 {A[0][0]}, {A[0][0]}, {A[0][1]}\nv_cvt_pk_bf16_f32 {A[0][1]}, {A[0][2]}, {A[0][3]}")
            a(f"v_cvt_pk_bf16_f32 {A[0][2]}, {A[1][0]}, {A[1][1]}\nv_cvt_pk_bf16_f32 {A[0][3]}, {A[1][2]}, {A[1][3]}")
            if sg == 1:
                a(f"buffer_store_dwordx4 {A[0]}, {t0}, {WS}, s28 offen offset:{(mt>>1)*2048 + (mt&1)*256} {SC}")
            else:
                a(f"ds_write_b128 {t0}, {A[0]} offset:{(mt>>1)*2048 + (mt&1)*256}")
                if DUMPQ:
                    a(f"s_lshl_b32 s28, s60, 18\ns_add_u32 s28, s28, s46\nv_lshlrev_b32 {t2}, 9, {g4}\nv_lshl_add_u32 {t2}, {t16}, 4, {t2}")
                    a(f"buffer_store_dwordx4 {A[0]}, {t2}, {WS}, s28 offen offset:{(mt>>1)*2048 + (mt&1)*256} {SC}")
    qk(1)
    a(f"s_lshl_b32 s28, s62, 18\ns_add_u32 s28, s28, s46\ns_add_u32 s28, s28, {8*MB}")
    a(f"s_lshl_b32 s47, {NJ}, 7\ns_lshl_b32 s29, {MI}, 2\ns_add_u32 s47, s47, s29\ns_add_u32 s47, s47, {F1}")
    for mt in range(4):
        A = [acc[mt][2][0], acc[mt][2][1]]
        for dt in range(2):
            for p in range(2):
                a(f"v_pk_fma_f32 {A[dt][2*p:2*p+2]}, {sacc[4*mt+2*p:4*mt+2*p+2]}, {cv}, {A[dt][2*p:2*p+2]} op_sel:[0,{dt},0] op_sel_hi:[1,{dt},1]")
        for dt in range(2):
            for p in range(2):
                a(f"v_pk_mul_f32 {A[dt][2*p:2*p+2]}, {A[dt][2*p:2*p+2]}, {sx[4*mt+2*p:4*mt+2*p+2]}")
        a(f"v_cvt_pk_bf16_f32 {A[0][0]}, {A[0][0]}, {A[0][1]}\nv_cvt_pk_bf16_f32 {A[0][1]}, {A[0][2]}, {A[0][3]}")
        a(f"v_cvt_pk_bf16_f32 {A[0][2]}, {A[1][0]}, {A[1][1]}\nv_cvt_pk_bf16_f32 {A[0][3]}, {A[1][2]}, {A[1][3]}\ns_nop 1")
        a(f"v_permlane32_swap_b32 {A[0][0]}, {A[0][2]}\nv_permlane32_swap_b32 {A[0][1]}, {A[0][3]}")
        a(f"buffer_store_dwordx4 {A[0]}, {t1}, {WS}, s28 offen offset:{mt*1024} {SC} ;@p1st")
    qk(0)
    a("s_waitcnt lgkmcnt(0)")

EXO = 131072
EXL = 122880
def w64_dma_voff(a, vw, t0, t1, nj):
    a(f"v_lshrrev_b32 {t0}, 3, {lane}\nv_and_b32 {t1}, 6, {t0}\ns_lshl_b32 s29, {S_W}, 4\nv_add_u32 {t0}, s29, {t0}\nv_lshlrev_b32 {t0}, 11, {t0}")
    a(f"v_and_b32 {vw[0]}, 7, {lane}\nv_xor_b32 {t1}, {t1}, {vw[0]}\nv_lshl_add_u32 {t0}, {t1}, 4, {t0}")
    a(f"s_lshl_b32 s29, {nj}, 7\nv_add_u32 {vw[0]}, s29, {t0}\nv_add_u32 {vw[1]}, {8*2048-1024}, {vw[0]}")
def mn35(a, MI, NJ):
    a(f"s_and_b32 {MI}, {S_XCD}, 3\ns_lshl_b32 {MI}, {MI}, 2\ns_and_b32 s29, {S_IDX}, 3\ns_add_u32 {MI}, {MI}, s29")
    a(f"s_lshr_b32 {NJ}, {S_XCD}, 2\ns_lshl_b32 {NJ}, {NJ}, 3\ns_lshr_b32 s29, {S_IDX}, 2")
    if SWAP37:
        a(f"s_and_b32 s28, s29, 3\ns_cmp_eq_u32 s28, 3\ns_cselect_b32 s28, 4, 0\ns_xor_b32 s29, s29, s28")
    a(f"s_add_u32 {NJ}, {NJ}, s29")
MI3, NJ3 = "s50", "s51"
VW3 = R("v", 250, 2)

def phase2(a):
    va = Alloc("v", V0, 250); aa = Alloc("a", 0, 256)
    vl2 = va(); vcs = va()
    t0, t1, t2, t3 = va(), va(), va(), va()
    As = va(4, 4)
    O = [va(16, 4) for sl in range(4)]
    L = [va(4, 4) for sl in range(4)]
    S = [va(16, 4) for b in range(2)]
    P = va(8, 4)
    cacc = va(16, 4)
    Q = [[aa(4, 4) for m in range(2)] for sl in range(4)]
    NB = 8
    cw = [aa(4, 4) for k in range(4)]
    Kf = [[aa(4, 4) for m in range(2)] for b in range(NB)]
    ident = aa(4, 4); assert ident.b == 112
    Vf = [[aa(4, 4) for m in range(2)] for b in range(NB)]
    vk = [vl, va(), va(), va()]
    MI, NJ, HD, KH = "s32", "s33", "s34", "s35"
    sK, sV, sKe, sVe, sHB, sQT, sSX, sWo, sMo, sCS = "s36", "s37", "s38", "s39", "s40", "s41", "s42", "s43", "s44", "s45"
    a(f"s_and_b32 s31, {S_W}, 1\ns_lshl_b32 {HD}, {NJ}, 1\ns_add_u32 {HD}, {HD}, s31\ns_lshr_b32 {KH}, {S_W}, 1")
    a(f"s_lshl_b32 {sHB}, {HD}, 17\ns_lshl_b32 {sQT}, {MI}, 2")
    a(f"s_lshl_b32 s28, {KH}, 16\ns_add_u32 s28, s28, {sHB}\ns_add_u32 {sK}, s28, {KF}\ns_add_u32 {sV}, s28, {VF}")
    a(f"s_add_u32 {sKe}, {sK}, 65536\ns_add_u32 {sVe}, {sV}, 65536\ns_xor_b32 {sSX}, {KH}, 1\ns_lshl_b32 {sSX}, {sSX}, 1")
    pa = S[0][0]
    a(f"v_and_b32 {pa}, 1, {g4}\nv_add_u32 {pa}, 1, {pa}\nv_mul_u32_u24 {pa}, {ROT}, {pa}\nv_sub_u32 {pa}, {NJ}, {pa}\nv_and_b32 {pa}, 3, {pa}\ns_and_b32 s28, {NJ}, 12\nv_or_b32 {pa}, s28, {pa}")
    a(f"v_lshlrev_b32 {pa}, 7, {pa}\nv_lshl_add_u32 {pa}, {t16}, 2, {pa}\nv_add_u32 {pa}, {F1}, {pa}")
    publish(a, ["s47"], "p1st", S[1][0:2])
    stamp(a, 3)
    a(f"s_lshl_b32 s28, s31, 13\ns_add_u32 s28, s28, {QL}\ns_lshl_b32 s29, {sSX}, 11\ns_add_u32 s30, s28, s29\nv_add_u32 {t0}, s30, {vl}\nv_xor_b32 {t1}, 4096, {t0}")
    for sl in range(4):
        for m in range(2):
            a(f"ds_read_b128 {Q[sl][m]}, {t0 if sl < 2 else t1} offset:{(sl%2)*2048 + 1024*m}")
    for k in range(1, 4):
        a(f"v_add_u32 {vk[k]}, {4096*k}, {vl}")
    a(f"v_lshrrev_b32 {t1}, 2, {lane}\nv_xor_b32 {t0}, {g4}, {t1}\nv_and_b32 {t0}, 1, {t0}")
    a(f"v_cmp_eq_u32 vcc, 0, {t0}\nv_mov_b32 {t1}, 0x3f803f80\ns_nop 0\nv_cndmask_b32 {As[0]}, 0, {t1}, vcc")
    a(f"v_mov_b32 {As[1]}, {As[0]}\nv_mov_b32 {As[2]}, {As[0]}\nv_mov_b32 {As[3]}, {As[0]}")
    for sl in range(4):
        for r in range(16):
            a(f"v_mov_b32 {O[sl][r]}, 0")
        for r in range(4):
            a(f"v_mov_b32 {L[sl][r]}, 0")
    for r in range(8):
        a(f"v_mov_b32 {P[r]}, 0")
    for r in range(4):
        a(f"v_accvgpr_write_b32 {Vf[NB-1][1][r]}, 0")
        for k in range(4):
            a(f"v_accvgpr_write_b32 {cw[k][r]}, 0")
    for r in range(16):
        a(f"v_mov_b32 {cacc[r]}, 0")
    mn35(a, MI3, NJ3)
    w64_dma_voff(a, VW3, t0, t1, NJ3)
    srd(a, 12, P_WO, 0 if 'wo' in EXP else 1024 * 2048)
    a(f"s_cmp_ge_u32 {S_WG}, 112\ns_cselect_b32 s16, s{P_WU}, s{P_WG}\ns_cselect_b32 s17, s{P_WU+1}, s{P_WG+1}\ns_cselect_b32 s29, 112, 0\ns_cselect_b32 s62, {3584*4}, 0")
    a(f"s_mov_b32 s18, {1024*7168}\ns_mov_b32 s19, 0x20000\ns_sub_u32 s28, {S_WG}, s29\ns_mul_i32 s60, s28, 147\ns_lshr_b32 s60, s60, 10\ns_mul_i32 s29, s60, 7\ns_sub_u32 s61, s28, s29")
    a(f"s_lshl_b32 s28, s60, 2\ns_add_u32 s28, s28, {S_W}\ns_mul_i32 s28, s28, {16*7168}\ns_lshl_b32 s29, s61, 10\ns_add_u32 {sCS}, s28, s29")
    a(f"s_cmp_ge_u32 {S_WG}, 224\ns_cselect_b32 {sCS}, {OOB}, {sCS}")
    a(f"s_lshl_b32 s28, {S_WG}, 2\ns_add_u32 s28, s28, {S_W}\ns_lshl_b32 s63, s28, 11\nv_lshlrev_b32 {vcs}, 7, {t16}")
    a(f"s_mov_b32 {sWo}, 0\ns_lshl_b32 {sMo}, {S_W}, 11\ns_mov_b32 s48, {OOB}")
    srd(a, 20, P_WD, 0 if 'wd' in EXP else 3584 * 2048)
    a(f"s_lshl_b32 s28, {S_WG}, 2\ns_add_u32 s28, s28, {S_W}\ns_mul_i32 s47, s28, {56*128}\nv_min_u32 {t2}, 13, {lane}\nv_lshlrev_b32 {t2}, 7, {t2}")
    a("s_waitcnt lgkmcnt(0)")
    poll(a, "p2", pa, S[1][0])
    stamp(a, 4)
    def kload(kt):
        k = kt % NB
        return [f"buffer_load_dwordx4 {Kf[k][m]}, {vk[k//2]}, {WS}, {sK} offen offset:{(k%2)*2048 + 1024*m} {SC} ;@k{kt}" for m in range(2)]
    def vload(kt):
        k = kt % NB
        return [f"buffer_load_dwordx4 {Vf[k][m]}, {vk[k//2]}, {WS}, {sV} offen offset:{(k%2)*2048 + 1024*m} {SC} ;@v{kt}" for m in range(2)]
    kbump = [f"s_add_u32 {sK}, {sK}, 16384", f"s_cmp_ge_u32 {sK}, {sKe}\ns_cselect_b32 {sK}, {OOB}, {sK}"]
    vbump = [f"s_add_u32 {sV}, {sV}, 16384", f"s_cmp_ge_u32 {sV}, {sVe}\ns_cselect_b32 {sV}, {OOB}, {sV}"]
    a.ext(kload(0))
    for kt in range(2):
        a.ext(vload(kt) + kload(kt + 1))
    catch = []
    for kt in range(2, NB - 1):
        catch += vload(kt) + kload(kt + 1)
    catch += vload(NB - 1)
    a("s_waitcnt vmcnt(@k0)")
    a(mf32(S[0], Kf[0][0], Q[0][0], 0))
    a(mf32(S[0], Kf[0][1], Q[0][1]))
    a("s_waitcnt vmcnt(@v0)\ns_nop 7\ns_nop 3")
    def unit(u):
        kt, sl = divmod(u, 4)
        b = u % 2
        kn, sn = divmod(u + 1, 4)
        kp, sp = divmod(u - 1, 4)
        Sb = S[b]
        x = {}
        k8 = kt % NB
        if sl == 3:
            ld = kload(kt + NB); x[0] = [ld[0]]; x[8] = [ld[1]]
            if k8 == NB - 1: x[12] = kbump
        if sl == 1 and u != 1:
            ld = vload(kt + NB - 1); x[0] = [ld[0]]; x[8] = [ld[1]]
            if k8 == 0: x[12] = vbump
        if kt >= NB and sl == 2 and k8 in (0, 2, 4, 6, 7):
            x[0] = [f"s_mov_b32 m0, {sMo}", f"s_add_u32 {sMo}, {sMo}, 8192"]
            x[4] = [f"buffer_load_dwordx4 {VW3[0]}, {SA}, {sWo} offen lds ;@wo"]
            x[8] = [f"buffer_load_dwordx4 {VW3[1]}, {SA}, {sWo} offen offset:1024 lds ;@wo"]
            x[12] = [f"s_add_u32 {sWo}, {sWo}, {64*2048}"]
        if kt < NB and sl == 2 and k8 in (0, 2, 4, 6, 7):
            x.setdefault(4, []).append(f"buffer_load_dword a{240 + k8}, {vl}, {WS}, s48 offen")
            x.setdefault(8, []).append(f"buffer_load_dword a{248 + k8}, {vl}, {WS}, s48 offen")
        if u == 6:
            x[0] = [f"buffer_load_dword {t3}, {vcs}, {SA}, s63 offen"]
        if sl == 0 and k8 % 2 == 1 and k8 < 7 or sl == 0 and k8 == 4:
            c = cw[{1: 0, 3: 1, 4: 2, 5: 3}[k8]]
            x[0] = [mf32(cacc, ident, c)]
            x[8] = [f"buffer_load_dwordx4 {c}, {vl}, {SB}, {sCS} offen", f"s_add_u32 {sCS}, {sCS}, 7168"]
        if u < 3:
            for p in (1, 3, 5, 7, 9, 11, 13, 14):
                if catch:
                    x.setdefault(p, []).append(catch.pop(0))
            if u == 2:
                assert not catch
                x.setdefault(15, []).extend(kbump + vbump)
        if sl == 0 and k8 == 2:
            x[0] = [f"buffer_load_dword {t1}, {t2}, {SCc}, s47 offen", f"s_add_u32 s47, s47, {14*128}"]
        e = [[f"v_exp_f32 {Sb[i]}, {Sb[i]}"] + x.get(i, []) for i in range(16)]
        c = [[f"v_cvt_pk_bf16_f32 {P[i]}, {Sb[2*i]}, {Sb[2*i+1]}"] for i in range(8)]
        seq = []
        if sl == 3:
            seq.append([f"s_waitcnt vmcnt(@k{kn}&v{kn})"])
        seq += [[mf32(S[1 - b], Kf[kn % NB][0], Q[sn][0], 0)], e[0], e[1], e[2], e[3],
                [mf32(S[1 - b], Kf[kn % NB][1], Q[sn][1])], e[4], e[5], e[6], c[0], c[1],
                [mf32(O[sp], Vf[kp % NB][1], P[4:8])], e[7], e[8], e[9], c[2], c[3],
                [mf16(L[sp], As, P[4:8])], e[10], e[11],
                [mf32(O[sl], Vf[kt % NB][0], P[0:4])], e[12], e[13], e[14], c[4], c[5],
                [mf16(L[sl], As, P[0:4])], e[15], c[6], c[7]]
        return [y for z in seq for y in z]
    for it in range(4):
        a.it("p2")
        for u in range(32 * it, 32 * it + 32):
            if DBG == "p2" and it == 0 and u % 2 == 0:
                stamp(a, 16 + u // 2)
            a.ext(unit(u))
        a.endit()
    a("s_waitcnt vmcnt(0)")
    a(mf32(O[3], Vf[NB-1][1], P[4:8]))
    a(mf16(L[3], As, P[4:8]))
    for k in range(4):
        a(mf32(cacc, ident, cw[k]))
    stamp(a, 5)
    a(f"s_lshl_b32 s28, {S_W}, 13\ns_add_u32 s28, s28, {EXO}\nv_add_u32 {t0}, s28, {vl}\ns_xor_b32 s46, s28, 0x4000\nv_add_u32 {t1}, s46, {vl}")
    a(f"s_lshl_b32 s28, {S_W}, 9\ns_add_u32 s28, s28, {EXL}\nv_lshlrev_b32 {t3}, 2, {lane}\nv_add_u32 {t3}, s28, {t3}\nv_xor_b32 {t2}, 0x400, {t3}")
    for sl in range(2):
        for j in range(4):
            a(f"ds_write_b128 {t0}, {O[sl][4*j:4*j+4]} offset:{sl*4096 + j*1024}")
        a(f"ds_write_b32 {t2}, {L[sl][0]} offset:{sl*256}")
    a(f"s_cmp_eq_u32 {S_W}, 0\ns_cbranch_scc1 L_p2_nocw\ns_lshl_b32 s28, {S_W}, 11\ns_add_u32 s28, s28, {EXL}\nv_add_u32 {t0}, s28, {vl}")
    a(f"ds_write_b128 {t0}, {cacc[0:4]}\nds_write_b128 {t0}, {cacc[4:8]} offset:1024")
    a.label("L_p2_nocw")
    if DBG == "e2": stamp(a, 16)
    a("s_waitcnt lgkmcnt(0)\ns_barrier")
    if DBG == "e2": stamp(a, 17)
    for sl in range(2):
        for j in range(4):
            a(f"ds_read_b128 {S[sl][4*j:4*j+4]}, {t1} offset:{sl*4096 + j*1024}")
        a(f"ds_read_b32 {L[sl][1]}, {t3} offset:{sl*256}")
    a(f"s_cmp_lg_u32 {S_W}, 0\ns_cbranch_scc1 L_p2_nocs\nv_add_u32 {t0}, {EXL + 2048}, {vl}")
    cb_ = [cacc[8:16], O[0][0:8], O[0][8:16]]
    for k in range(3):
        a(f"ds_read_b128 {cb_[k][0:4]}, {t0} offset:{2048*k}\nds_read_b128 {cb_[k][4:8]}, {t0} offset:{2048*k + 1024}")
    a(f"s_mul_i32 s28, s60, {7168*4}\ns_lshl_b32 s29, s61, 11\ns_add_u32 s28, s28, s29\ns_add_u32 s28, s28, s62\ns_add_u32 s28, s28, {CS}")
    a(f"s_cmp_ge_u32 {S_WG}, 224\ns_cselect_b32 s28, {OOB}, s28\nv_lshlrev_b32 {t0}, 5, {r32}\nv_lshl_add_u32 {t0}, {hh}, 4, {t0}\ns_waitcnt lgkmcnt(0)")
    for p in range(4):
        a(f"v_pk_add_f32 {cacc[2*p:2*p+2]}, {cacc[2*p:2*p+2]}, {cb_[0][2*p:2*p+2]}\nv_pk_add_f32 {cb_[1][2*p:2*p+2]}, {cb_[1][2*p:2*p+2]}, {cb_[2][2*p:2*p+2]}")
    for p in range(4):
        a(f"v_pk_add_f32 {cacc[2*p:2*p+2]}, {cacc[2*p:2*p+2]}, {cb_[1][2*p:2*p+2]}")
    a(f"buffer_store_dwordx4 {cacc[0:4]}, {t0}, {WS}, s28 offen {SC} ;@skip\nbuffer_store_dwordx4 {cacc[4:8]}, {t0}, {WS}, s28 offen offset:1024 {SC} ;@skip")
    a.label("L_p2_nocs")
    a("s_waitcnt lgkmcnt(0)")
    for sl in range(2):
        a(f"v_add_f32 {L[2+sl][0]}, {L[2+sl][0]}, {L[sl][1]}")
        for p in range(8):
            a(f"v_pk_add_f32 {O[2+sl][2*p:2*p+2]}, {O[2+sl][2*p:2*p+2]}, {S[sl][2*p:2*p+2]}")
    a(f"s_mov_b32 s28, {f32(2.0**-60)}\ns_mov_b32 s29, {f32(2.0**60)}")
    a(f"v_cmp_nge_f32 vcc, {L[2][0]}, s28\nv_cmp_nle_f32 s[52:53], {L[2][0]}, s29\nv_cmp_nge_f32 s[54:55], {L[3][0]}, s28\nv_cmp_nle_f32 s[56:57], {L[3][0]}, s29")
    a(f"v_lshrrev_b32 {t0}, 4, {r32}\nv_lshlrev_b32 {t0}, 15, {t0}\nv_lshl_add_u32 {t0}, {hh}, 8, {t0}\nv_lshl_add_u32 {vl2}, {t16}, 4, {t0}")
    a("s_or_b64 s[52:53], s[52:53], vcc\ns_or_b64 s[54:55], s[54:55], s[56:57]\ns_or_b64 s[52:53], s[52:53], s[54:55]")
    if FORCE_SLOW:
        a("s_cmp_eq_u32 s2, s2")
    a(f"s_cbranch_scc1 L_p2_slow")
    a.label("L_p2_fin")
    if DBG == "e2": stamp(a, 18)
    a(f"s_lshl_b32 s47, {MI}, 7\ns_lshl_b32 s29, {NJ}, 2\ns_add_u32 s47, s47, s29\ns_add_u32 s47, s47, {F2}\ns_lshl_b32 s48, {S_WG}, 2\ns_add_u32 s48, s48, {FC}")
    for sl in range(2, 4):
        a(f"v_rcp_f32 {L[sl][2]}, {L[sl][0]}")
        a(f"s_xor_b32 s28, {sSX}, {sl}\ns_add_u32 s28, s28, {sQT}\ns_lshl_b32 s28, s28, 16\ns_lshl_b32 s29, {HD}, 10\ns_add_u32 s28, s28, s29\ns_add_u32 s28, s28, {OF}")
        for p in range(8):
            a(f"v_pk_mul_f32 {O[sl][2*p:2*p+2]}, {O[sl][2*p:2*p+2]}, {L[sl][2:4]} op_sel_hi:[1,0]")
        for p in range(8):
            a(f"v_cvt_pk_bf16_f32 {O[sl][p]}, {O[sl][2*p]}, {O[sl][2*p+1]}")
        a(f"buffer_store_dwordx4 {O[sl][0:4]}, {vl2}, {WS}, s28 offen {SC}")
        a(f"buffer_store_dwordx4 {O[sl][4:8]}, {vl2}, {WS}, s28 offen offset:512 {SC} ;@p2st")
    if DBG == "e2":
        stamp(a, 19)
        a("s_waitcnt vmcnt(0)")
        stamp(a, 20)
    s = Asm()
    s.label("L_p2_slow")
    mx, mn, al, tt = t0, t1, t2, t3
    for sl in range(2, 4):
        s(f"v_mov_b32 {mx}, 0xff800000\nv_mov_b32 {L[sl][0]}, 0")
        for r in range(16):
            s(f"v_mov_b32 {O[sl][r]}, 0")
        s(f"s_add_u32 {sK}, {sHB}, {KF}\ns_add_u32 {sV}, {sHB}, {VF}\ns_mov_b32 s24, 64")
        s.label(f"L_p2_slow{sl}")
        s.lines.append(";LOOP")
        for m in range(2):
            s(f"buffer_load_dwordx4 {Kf[0][m]}, {vl}, {WS}, {sK} offen offset:{1024*m} {SC}")
            s(f"buffer_load_dwordx4 {Vf[0][m]}, {vl}, {WS}, {sV} offen offset:{1024*m} {SC}")
        s(f"s_add_u32 {sK}, {sK}, 2048\ns_add_u32 {sV}, {sV}, 2048\ns_waitcnt vmcnt(0)")
        s(mf32(S[0], Kf[0][0], Q[sl][0], 0))
        s(mf32(S[0], Kf[0][1], Q[sl][1]))
        s("s_nop 7\ns_nop 7")
        s(f"v_max_f32 {mn}, {S[0][0]}, {S[0][1]}")
        for p in range(1, 8):
            s(f"v_max3_f32 {mn}, {mn}, {S[0][2*p]}, {S[0][2*p+1]}")
        s(f"v_mov_b32 {tt}, {mn}\ns_nop 1\nv_permlane32_swap_b32 {mn}, {tt}\nv_max3_f32 {mn}, {mn}, {tt}, {mx}")
        s(f"v_sub_f32 {al}, {mx}, {mn}\nv_exp_f32 {al}, {al}\nv_mov_b32 {mx}, {mn}")
        for i in range(16):
            s(f"v_sub_f32 {S[0][i]}, {S[0][i]}, {mn}")
        for i in range(16):
            s(f"v_exp_f32 {S[0][i]}, {S[0][i]}")
        s(f"v_mul_f32 {L[sl][0]}, {L[sl][0]}, {al}")
        for i in range(16):
            s(f"v_mul_f32 {O[sl][i]}, {O[sl][i]}, {al}")
        for i in range(8):
            s(f"v_cvt_pk_bf16_f32 {P[i]}, {S[0][2*i]}, {S[0][2*i+1]}")
        for i in range(8):
            s(f"v_lshlrev_b32 {tt}, 16, {P[i]}\nv_add_f32 {L[sl][0]}, {L[sl][0]}, {tt}\nv_and_b32 {tt}, 0xffff0000, {P[i]}\nv_add_f32 {L[sl][0]}, {L[sl][0]}, {tt}")
        s(mf32(O[sl], Vf[0][0], P[0:4]))
        s(mf32(O[sl], Vf[0][1], P[4:8]))
        s("s_nop 7\ns_nop 7")
        s(f"s_sub_u32 s24, s24, 1\ns_cmp_lg_u32 s24, 0\ns_cbranch_scc1 L_p2_slow{sl}")
        s.lines.append(";ENDLOOP")
        s(f"v_mov_b32 {tt}, {L[sl][0]}\ns_nop 1\nv_permlane32_swap_b32 {L[sl][0]}, {tt}\nv_add_f32 {L[sl][0]}, {L[sl][0]}, {tt}")
    s("s_branch L_p2_fin")
    tails.append(s)
    return "s46"

def wa35(a, wa, t0, t1, base):
    a(f"v_lshrrev_b32 {t0}, 2, {lane}\nv_and_b32 {t0}, 3, {t0}\nv_and_b32 {t1}, 1, {g4}\nv_lshl_add_u32 {wa[1]}, {t1}, 2, {t0}\nv_lshl_add_u32 {wa[1]}, {hh}, 4, {wa[1]}")
    a(f"v_lshlrev_b32 {wa[1]}, 7, {wa[1]}\nv_lshrrev_b32 {t0}, 1, {t0}\nv_lshl_add_u32 {t0}, {t1}, 1, {t0}\nv_lshl_add_u32 {wa[1]}, {t0}, 5, {wa[1]}")
    a(f"v_and_b32 {t0}, 3, {lane}\nv_lshl_add_u32 {wa[0]}, {t0}, 3, {wa[1]}")
    if base:
        a(f"v_add_u32 {wa[0]}, {base}, {wa[0]}")
    for t in range(1, 4):
        a(f"v_xor_b32 {wa[t]}, {32*t}, {wa[0]}")
def rowmajor_voff(a, ve, vo, t0, t1, row0, nj):
    a(f"v_lshrrev_b32 {t0}, 3, {lane}\nv_add_u32 {t1}, {row0}, {t0}\nv_lshlrev_b32 {t1}, 11, {t1}\ns_lshl_b32 s29, {nj}, 7\nv_add_u32 {t1}, s29, {t1}")
    a(f"v_and_b32 {ve}, 7, {lane}\nv_xor_b32 {ve}, {ve}, {g4}\nv_xor_b32 {vo}, 4, {ve}\nv_lshl_add_u32 {ve}, {ve}, 4, {t1}\nv_lshl_add_u32 {vo}, {vo}, 4, {t1}")
def dlayout_addr(a, ad, t0, base):
    a(f"v_lshrrev_b32 {t0}, 1, {t16}\nv_xor_b32 {t0}, {t0}, {hh}\nv_lshlrev_b32 {t0}, 4, {t0}")
    a(f"v_and_b32 {ad}, 1, {g4}\nv_lshlrev_b32 {ad}, 3, {ad}\nv_lshl_add_u32 {ad}, {t16}, 7, {ad}\nv_add_u32 {ad}, {base}, {ad}")

MI4, FJ4 = "s52", "s53"
def phase3(a, sXR):
    va = Alloc("v", V0, 250)
    vx = va(2); wa = va(4)
    t0, t1, t2, t3 = va(), va(), va(), va()
    acc = [[va(4, 4) for t in range(4)] for mt in range(2)]
    Wf = [[va(4, 4) for t in range(4)] for b in range(2)]
    NB = 8
    Xf = [[va(4, 4) for mt in range(2)] for b in range(NB)]
    res = va(16, 4); tmp = va(16, 4); pk = va(16, 4)
    TT, sX, sXe = "s32", "s33", "s34"
    a(f"s_lshl_b32 {TT}, {MI3}, 3\ns_lshl_b32 s28, {S_W}, 1\ns_add_u32 {TT}, {TT}, s28\ns_lshl_b32 s30, {TT}, 4")
    srd(a, 16, P_X, 2048 * 2048)
    rowmajor_voff(a, t2, t3, t0, t1, "s30", NJ3)
    pa = res[0]
    a(f"s_and_b32 {MI4}, {S_IDX}, 7\ns_lshr_b32 s29, {S_IDX}, 3\ns_lshl_b32 {FJ4}, {S_XCD}, 2\ns_add_u32 {FJ4}, {FJ4}, s29")
    a(f"s_lshl_b32 s28, {MI3}, 7\ns_add_u32 s28, s28, {F2}\nv_lshlrev_b32 {pa}, 2, {t16}\nv_add_u32 {pa}, s28, {pa}")
    publish(a, ["s47", "s48"], "p2st", tmp[0:2])
    stamp(a, 6)
    codepf(a, "L_P3", "L_P5", tmp[2])
    a(f"s_lshl_b32 s28, {S_W}, 11\ns_add_u32 m0, s28, {EXL}\ns_mov_b32 s28, {15*64*2048}")
    a(f"buffer_load_dwordx4 {VW3[0]}, {SA}, s28 offen lds\nbuffer_load_dwordx4 {VW3[1]}, {SA}, s28 offen offset:1024 lds")
    a(f"s_mov_b32 m0, {sXR}")
    for i in range(4):
        a(f"s_mov_b32 s29, {i*15360}\nbuffer_load_dwordx4 {t2 if i%2==0 else t3}, {SB}, s29 offen offset:{i*1024} lds")
    wa35(a, wa, t0, t1, 0)
    a(f"s_lshl_b32 {sX}, {TT}, 15\ns_add_u32 {sX}, {sX}, {OF}\ns_add_u32 {sXe}, {sX}, 32768\nv_mov_b32 {vx[0]}, {vl}\nv_add_u32 {vx[1]}, 32768, {vl}")
    for mt in range(2):
        for t in range(4):
            for r in range(4):
                a(f"v_mov_b32 {acc[mt][t][r]}, 0")
    a.ext([f"ds_read_b64_tr_b16 {Wf[0][t][2*j:2*j+2]}, {wa[t]} offset:{1024*j} ;@r3_0_{t}" for t in range(4) for j in range(2)])
    poll(a, "p3", pa, tmp[0])
    stamp(a, 7)
    def xload(sig):
        o = []
        if sig % 4 == 0 and sig > 0:
            o += [f"s_add_u32 {sX}, {sX}, 4096", f"s_cmp_ge_u32 {sX}, {sXe}\ns_cselect_b32 {sX}, {OOB}, {sX}"]
        o += [f"buffer_load_dwordx4 {Xf[sig%NB][mt]}, {vx[mt]}, {WS}, {sX} offen offset:{(sig%4)*1024} {SC} ;@p3x{sig}" for mt in range(2)]
        return o
    def wreads(sig):
        return [f"ds_read_b64_tr_b16 {Wf[sig%2][t][2*j:2*j+2]}, {wa[t]} offset:{(sig%8)*4096 + 1024*j} ;@r3_{sig}_{t}" for t in range(4) for j in range(2)]
    for sig in range(7):
        a.ext(xload(sig))
    for sig in range(32):
        if sig % 8 == 0:
            a.it("p3")
        a(f"s_waitcnt vmcnt(@p3x{sig}) lgkmcnt(@r3_{sig}_1)")
        if sig % 8 == 4:
            a("s_barrier")
        m = [mf16(acc[mt][t], Wf[sig % 2][t], Xf[sig % NB][mt]) for t in range(4) for mt in range(2)]
        rd = wreads(sig + 1); xl = xload(sig + 7)
        light = [x for x in xl if not is_mem(x)]; mem = [x for x in xl if is_mem(x)]
        for g in range(8):
            if g == 4:
                a(f"s_waitcnt lgkmcnt(@r3_{sig}_3)")
            a(m[g])
            if sig % 8 == 7 and g % 2 == 0:
                a(f"v_add_u32 {wa[g//2]}, 0x8000, {wa[g//2]}")
            a(rd[g])
            if g == 1: a.ext(light)
            if g in (2, 6): a(mem.pop(0))
        if sig % 8 == 7:
            a.endit()
    stamp(a, 8)
    a("s_waitcnt vmcnt(0) lgkmcnt(0)")
    dlayout_addr(a, t1, t0, sXR)
    for t in range(4):
        a(f"v_xor_b32 {t2}, {32*t}, {t0}\nv_add_u32 {t2}, {t2}, {t1}")
        for mt in range(2):
            a(f"ds_read_b64 {res[8*mt+2*t:8*mt+2*t+2]}, {t2} offset:{2048*mt}")
    a(f"s_lshl_b32 s28, {TT}, 15\ns_lshl_b32 s29, {NJ3}, 11\ns_add_u32 s28, s28, s29\ns_add_u32 s28, s28, {HF}\ns_waitcnt lgkmcnt(0)")
    for mt in range(2):
        for k in range(8):
            a(f"v_lshlrev_b32 {tmp[2*k]}, 16, {res[8*mt+k]}\nv_and_b32 {tmp[2*k+1]}, 0xffff0000, {res[8*mt+k]}")
        for k in range(8):
            a(f"v_pk_add_f32 {tmp[2*k:2*k+2]}, {tmp[2*k:2*k+2]}, {acc[mt][k//2][2*(k%2):2*(k%2)+2]}")
        for k in range(8):
            a(f"v_cvt_pk_bf16_f32 {pk[8*mt+k]}, {tmp[2*k]}, {tmp[2*k+1]}")
        for p in range(2):
            a(f"buffer_store_dwordx4 {pk[8*mt+4*p:8*mt+4*p+4]}, {vx[mt]}, {WS}, s28 offen offset:{1024*p} {SC}")
    a(f"v_mov_b32 {t1}, 0x3f803f80")
    for k in range(4):
        a(f"v_mov_b32 {tmp[k]}, 0")
    for k in range(8):
        for mt in range(2):
            a(f"v_dot2c_f32_bf16 {tmp[2*mt]}, {pk[8*mt+k]}, {t1}\nv_dot2c_f32_bf16 {tmp[2*mt+1]}, {pk[8*mt+k]}, {pk[8*mt+k]}")
    a("s_nop 2")
    for sw_ in ("16", "32"):
        for k in range(4):
            a(f"v_mov_b32 {tmp[4+k]}, {tmp[k]}")
        a("s_nop 0")
        for k in range(4):
            a(f"v_permlane{sw_}_swap_b32 {tmp[k]}, {tmp[4+k]}")
        for k in range(4):
            a(f"v_add_f32 {tmp[k]}, {tmp[k]}, {tmp[4+k]}")
    a(f"v_and_b32 {t0}, 1, {g4}\nv_cmp_eq_u32 vcc, 1, {t0}\nv_lshlrev_b32 {t0}, 3, {r32}")
    a(f"s_lshl_b32 s28, {NJ3}, 14\ns_lshl_b32 s29, {TT}, 7\ns_add_u32 s28, s28, s29\ns_add_u32 s28, s28, {ST}")
    a(f"v_cndmask_b32 {tmp[0]}, {tmp[0]}, {tmp[2]}, vcc\nv_cndmask_b32 {tmp[1]}, {tmp[1]}, {tmp[3]}, vcc")
    a(f"buffer_store_dwordx2 {tmp[0:2]}, {t0}, {WS}, s28 offen {SC} ;@p3st")
    a(f"s_lshr_b32 s47, {MI3}, 1\ns_lshl_b32 s47, s47, 7\ns_and_b32 s29, {MI3}, 1\ns_lshl_b32 s29, s29, 6\ns_add_u32 s47, s47, s29\ns_lshl_b32 s29, {NJ3}, 2\ns_add_u32 s47, s47, s29\ns_add_u32 s47, s47, {F3}")

R5 = 32768
KA, KB = 24, 8
MI5, NB5 = "s54", "s55"
def lane_consts(a):
    a(f"v_and_b32 {lane}, 63, v0\nv_and_b32 {r32}, 31, v0\nv_lshlrev_b32 {vl}, 4, {lane}\nv_and_b32 {t16}, 15, {lane}\nv_lshrrev_b32 {g4}, 4, {lane}\nv_lshrrev_b32 {hh}, 5, {lane}")
VW5 = R("v", 1, 4)
s5W, s5M = "s40", "s41"
def w5a(j, rel=None):
    base, c = (s5M, ((j + 5) % 8) * 16384) if rel is None else rel
    o = [f"s_add_u32 m0, {base}, {c}", "s_nop 0" if False else f"s_add_u32 {s5W}, {s5W}, {64*2048}"]
    o += [f"buffer_load_dwordx4 {VW5x[i]}, {SB}, {s5W} offen offset:{1024*i} lds ;@p5w{j}" for i in range(4)]
    return o
VW5x = None
def phase4(a):
    global VW5x
    SLAB, GU, RING = 28672, 14336, 4
    CST = SLAB
    va = Alloc("v", V0, 256); aa = Alloc("a", 0, 256)
    vx = va(4); wa = va(); ca = va()
    mq = va(4, 2)
    acc = [[va(4, 4) for n in range(14)] for mt in range(4)]
    vw = [va() for i in range(7)]
    ct = R("v", 252, 4)
    assert va.cur <= 252, va.cur
    t0, t1, t2, t3 = ct[0], ct[1], ct[2], ct[3]
    VW5x = [mq[0], mq[1], mq[2], mq[3]]
    Wf = [[aa(4, 4) for n in range(14)] for b in range(2)]
    NB = 4
    Xf = [[aa(4, 4) for mt in range(4)] for b in range(NB)]
    stt = aa(16, 4)
    TT, sX, sW, sD, sWP, sM2, sR = "s32", "s33", "s35", "s36", "s37", "s38", "s39"
    a(f"s_and_b32 s29, {S_W}, 1\ns_mul_i32 s29, s29, 448\nv_add_u32 {t0}, s29, {lane}")
    a(f"s_mov_b32 s28, {(1<<32)//14 + 1}\ns_mul_i32 s30, {FJ4}, 224\ns_movk_i32 s31, {7168 - 14*16}")
    for i in range(7):
        a(f"v_add_u32 {t1}, {64*i}, {t0}\nv_mul_hi_u32 {t2}, {t1}, s28\nv_mul_lo_u32 {t2}, {t2}, s31\nv_lshl_add_u32 {t2}, {t1}, 4, {t2}")
        a(f"s_sub_u32 s29, s30, {1024*(i%4)}\nv_add_u32 {vw[i]}, s29, {t2}")
    a(f"s_cmp_lt_u32 {S_W}, 2\ns_cselect_b32 s12, s{P_WG}, s{P_WU}\ns_cselect_b32 s13, s{P_WG+1}, s{P_WU+1}\ns_mov_b32 s14, {1024*7168}\ns_mov_b32 s15, 0x20000")
    a(f"s_mul_i32 {sWP}, {S_W}, 7168\ns_mov_b32 {sW}, 0\ns_mov_b32 {sD}, 0\ns_mov_b32 {sR}, 0")
    def wdma(slab, part):
        if part == 0:
            o = [f"s_add_u32 m0, {sD}, {sWP}", f"s_add_u32 {sM2}, {sD}, {sWP}"]
            rng = range(0, 4)
        else:
            o = [f"s_add_u32 m0, {sM2}, 4096", f"s_add_u32 {sD}, {sD}, {SLAB}"]
            rng = range(4, 7)
        o += [f"buffer_load_dwordx4 {vw[i]}, {SA}, {sW} offen offset:{(i%4)*1024} lds ;@p4w{slab}" for i in rng]
        if part == 1:
            o += [f"s_cmp_ge_u32 {sD}, {RING*SLAB}\ns_cselect_b32 {sD}, 0, {sD}", f"s_add_u32 {sW}, {sW}, {64*7168}"]
        return o
    def dmas(sig):
        i, s = divmod(sig, 2)
        slab = i + 4 if s == 1 else i + 3
        return wdma(slab, 0 if s == 1 else 1) if 0 <= slab < 16 else []
    pa = acc[2][0][0]
    a(f"s_lshl_b32 s28, {MI4}, 7\ns_add_u32 s28, s28, {F3}\nv_lshlrev_b32 {pa}, 2, {r32}\nv_add_u32 {pa}, s28, {pa}")
    pb = acc[2][0][1]
    a(f"s_mul_i32 s28, {FJ4}, 112\ns_add_u32 s29, s28, 111\ns_lshr_b32 s28, s28, 9\ns_lshr_b32 s29, s29, 9\ns_sub_u32 s29, s29, s28")
    a(f"v_mul_u32_u24 {pb}, 7, {t16}\nv_and_b32 {t0}, 1, {g4}\nv_mul_u32_u24 {t0}, 112, {t0}\nv_mul_u32_u24 {t1}, s29, {hh}\nv_add3_u32 {pb}, {pb}, {t0}, {t1}\nv_add_u32 {pb}, s28, {pb}")
    a(f"v_lshlrev_b32 {pb}, 2, {pb}\nv_add_u32 {pb}, {FC}, {pb}")
    publish(a, ["s47"], "p3st", acc[2][1][0:2])
    stamp(a, 9)
    a.ext(wdma(0, 0) + wdma(0, 1) + wdma(1, 0) + wdma(1, 1) + wdma(2, 0) + wdma(2, 1))
    a(f"s_lshl_b32 {TT}, {MI4}, 4\ns_lshl_b32 s28, {S_W}, 2\ns_add_u32 {TT}, {TT}, s28")
    a(f"s_lshl_b32 {sX}, {TT}, 15\ns_add_u32 {sX}, {sX}, {HF}\nv_mov_b32 {vx[0]}, {vl}")
    for mt in range(1, 4):
        a(f"v_add_u32 {vx[mt]}, {32768*mt}, {vl}")
    a(f"v_lshrrev_b32 {t0}, 2, {lane}\nv_and_b32 {t0}, 3, {t0}\nv_lshl_add_u32 {t0}, {g4}, 2, {t0}\nv_mul_u32_u24 {t0}, 224, {t0}\nv_and_b32 {t1}, 3, {lane}\nv_lshl_add_u32 {wa}, {t1}, 3, {t0}")
    for mt in range(4):
        for n in range(14):
            if (mt, n) not in ((2, 0), (2, 1)):
                for e in range(4):
                    a(f"v_mov_b32 {acc[mt][n][e]}, 0")
    a("s_waitcnt vmcnt(@p4w0)")
    poll(a, "p4", [pa, pb], [acc[2][1][0], acc[2][1][1]])
    stamp(a, 10)
    def xload(sig):
        o = []
        if sig % 4 == 0 and sig > 0:
            o += [f"s_add_u32 {sX}, {sX}, 4096"]
        o += [f"buffer_load_dwordx4 {Xf[sig%NB][mt]}, {vx[mt]}, {WS}, {sX} offen offset:{(sig%4)*1024} {SC} ;@p4x{sig}" for mt in range(4)]
        return o
    def wreads(sig):
        s = sig % 2
        return [f"ds_read_b64_tr_b16 {Wf[sig%2][n][2*j:2*j+2]}, {wa} offset:{(32*s + 16*j)*224 + (n//7)*GU + 32*(n%7)}" for n in range(14) for j in range(2)]
    def wbump():
        return [f"s_add_u32 s44, {sR}, {SLAB}", f"s_cmp_ge_u32 s44, {RING*SLAB}\ns_cselect_b32 s44, 0, s44", f"s_sub_u32 s45, s44, {sR}",
                f"s_mov_b32 {sR}, s44", f"v_add_u32 {wa}, s45, {wa}"]
    a.ext(xload(0) + wdma(3, 0) + xload(1) + wdma(3, 1)[:0])
    a.ext(wreads(0))
    a.ext(xload(2))
    for n in range(2):
        for e in range(4):
            a(f"v_mov_b32 {acc[2][n][e]}, 0")
    side = {k: [] for k in range(32)}
    csp = aa(16, 4)
    side[24] = [f"v_lshrrev_b32 {t0}, 2, {lane}", f"v_min_u32 {t0}, 13, {t0}", f"v_lshlrev_b32 {t0}, 4, {t0}", f"v_and_b32 {t1}, 3, {lane}", f"v_mul_u32_u24 {t1}, {7168*4}, {t1}",
                f"v_add_u32 {ca}, {t0}, {t1}", f"s_mul_i32 s29, {S_W}, 224", f"s_add_u32 s29, s29, {CST}", f"v_add_u32 {t3}, s29, {t0}",
                f"s_and_b32 s29, {S_W}, 1", "s_mul_i32 s29, s29, 224", f"s_lshr_b32 s28, {S_W}, 1", f"s_mul_i32 s28, s28, {3584*4}", "s_add_u32 s28, s28, s29",
                f"s_mul_i32 s31, {FJ4}, 448", "s_add_u32 s31, s31, s28", f"s_add_u32 s31, s31, {CS}"]
    for k in range(4):
        side[25] += [f"buffer_load_dwordx4 {csp[4*k:4*k+4]}, {ca}, {WS}, s31 offen {SC} ;@p4cs", f"s_add_u32 s31, s31, {4*7168*4}"]
    q = ["s_waitcnt vmcnt(@p4cs)"] + [f"v_accvgpr_read_b32 {mq[e]}, {csp[e]}" for e in range(4)]
    for k in range(1, 4):
        for e in range(4):
            q += [f"v_accvgpr_read_b32 {t0 if e % 2 else t2}, {csp[4*k+e]}", f"v_add_f32 {mq[e]}, {mq[e]}, {t0 if e % 2 else t2}"]
    for m_ in ("quad_perm:[1,0,3,2]", "quad_perm:[2,3,0,1]"):
        q += [f"v_add_f32_dpp {mq[e]}, {mq[e]}, {mq[e]} {m_} row_mask:0xf bank_mask:0xf" for e in range(4)]
    assert mq.b % 2 == 0
    q += [f"ds_write_b128 {t3}, {mq}"]
    side[27] = q
    q = [f"v_lshlrev_b32 {t1}, 3, {t16}", f"v_lshl_add_u32 {t1}, {g4}, 16, {t1}", f"s_lshl_b32 s30, {TT}, 7", f"s_add_u32 s30, s30, {ST}"]
    for k in range(4):
        q += [f"buffer_load_dword {stt[4*mt+k]}, {t1}, {WS}, s30 offen offset:{128*mt} {SC} ;@p4st" for mt in range(4)] + ["s_add_u32 s30, s30, 16384"]
    side[26] = q[:14]; side[28] = q[14:]
    q = ["s_waitcnt vmcnt(@p4st)"]
    mq5 = mq; mq = vx
    for mt in range(4):
        q += [f"v_accvgpr_read_b32 {mq[mt]}, {stt[4*mt]}", f"v_accvgpr_read_b32 {t0}, {stt[4*mt+1]}", f"v_accvgpr_read_b32 {t1}, {stt[4*mt+2]}", f"v_accvgpr_read_b32 {t2}, {stt[4*mt+3]}",
              f"v_add_f32 {mq[mt]}, {mq[mt]}, {t0}", f"v_add_f32 {t1}, {t1}, {t2}", f"v_add_f32 {mq[mt]}, {mq[mt]}, {t1}"]
    for sw_ in ("16", "32"):
        q += [f"v_mov_b32 {ct[k]}, {mq[k]}" for k in range(4)] + ["s_nop 0"]
        q += [f"v_permlane{sw_}_swap_b32 {mq[k]}, {ct[k]}" for k in range(4)]
        q += [f"v_add_f32 {mq[k]}, {mq[k]}, {ct[k]}" for k in range(4)]
    q += [f"v_mul_f32 {mq[k]}, {f32(-1/1024)}, {mq[k]}" for k in range(4)]
    side[30] = q; mean = mq; mq = mq5
    q = [f"s_and_b32 s28, {S_XCD}, 2", "s_lshl_b32 s28, s28, 2", f"s_and_b32 s29, {S_IDX}, 7", f"s_add_u32 {MI5}, s28, s29",
         f"s_lshr_b32 s28, {S_XCD}, 2", "s_lshl_b32 s28, s28, 2", f"s_lshr_b32 s29, {S_IDX}, 3", f"s_add_u32 {NB5}, s28, s29",
         f"s_lshl_b32 s28, {S_W}, 4", f"v_add_u32 {t0}, s28, {g4}", f"v_lshlrev_b32 {t0}, 11, {t0}", f"s_lshl_b32 s28, {NB5}, 8", f"v_add_u32 {t0}, s28, {t0}",
         f"v_lshlrev_b32 {t1}, 1, {g4}", f"v_xor_b32 {t1}, {t1}, {t16}", f"v_xor_b32 {t2}, 8, {t1}",
         f"v_lshl_add_u32 {VW5x[0]}, {t1}, 4, {t0}", f"v_lshl_add_u32 {t2}, {t2}, 4, {t0}",
         f"v_add_u32 {VW5x[1]}, {4*2048-1024}, {t2}", f"v_add_u32 {VW5x[2]}, {2*(4*2048-1024)}, {VW5x[0]}", f"v_add_u32 {VW5x[3]}, {3*(4*2048-1024)}, {t2}",
         f"s_mov_b32 s16, s{P_WD}", f"s_mov_b32 s17, s{P_WD+1}", f"s_mov_b32 s18, {3584*2048}", "s_mov_b32 s19, 0x20000",
         f"s_and_b32 s28, {S_XCD}, 1", f"s_mul_i32 {s5W}, s28, {KA*64*2048}", f"s_sub_u32 {s5W}, {s5W}, {64*2048}", f"s_lshl_b32 {s5M}, {S_W}, 12", f"s_add_u32 {s5M}, {s5M}, {R5}"]
    side[28] = side[28] + q
    if CODEPF:
        t = Asm(); codepf(t, "L_P5", "L_end", ca)
        side[26] += ["\n".join(t.lines[:2])] + t.lines[2:]
    for k in range(3):
        side[29 + k] = w5a(k) + side[29 + k]
    for sig in range(32):
        i, s = divmod(sig, 2)
        if sig % 4 == 0:
            a.it("p4")
        if DBG == "p4" and (sig < 8 or sig >= 24):
            stamp(a, 16 + (sig if sig < 8 else sig - 16))
        a(f"s_waitcnt vmcnt(@p4x{sig}" + (f"&p4w{i+1}" if s == 1 and i < 15 else "") + ") lgkmcnt(0)")
        if s == 1 and i < 15:
            a("s_barrier")
        m = [mf16(acc[mt][n], Wf[sig % 2][n], Xf[sig % NB][mt]) for n in range(14) for mt in range(4)]
        rd = wreads(sig + 1) if sig < 31 else []
        ex = (xload(sig + 3) if sig + 3 < 32 else []) + dmas(sig) + side[sig]
        if False:
            pass
        elif s == 0:
            body = sched(m[:50], rd, ex, lds_end=48) + spread(m[50:], wbump())
        else:
            body = sched(m, rd, ex, lds_end=48)
        a.ext(body)
        if sig % 4 == 3:
            a.endit()
    stamp(a, 11)
    cbuf = [ct, R("v", vw[0].b, 4)]
    assert vw[0].b % 2 == 0
    so = wa
    a(f"v_lshlrev_b32 {ca}, 4, {g4}\nv_add_u32 {ca}, {CST}, {ca}")
    a(f"ds_read_b128 {cbuf[0]}, {ca}\nds_read_b128 {cbuf[1]}, {ca} offset:448")
    a(f"v_mul_u32_u24 {so}, {224*512}, {hh}\nv_lshl_add_u32 {so}, {r32}, 4, {so}")
    a(f"s_mul_i32 s28, {TT}, {224*512}\ns_mul_i32 s29, {FJ4}, {7*512}\ns_add_u32 s28, s28, s29\ns_add_u32 s28, s28, {AF}\ns_add_u32 s29, s28, {2*224*512}")
    for t in range(7):
        for gu in range(2):
            a(f"s_waitcnt lgkmcnt({1 if (gu == 0 or t < 6) else 0})")
            for mt in range(4):
                A = acc[mt][7 * gu + t]
                for p in range(2):
                    a(f"v_pk_fma_f32 {A[2*p:2*p+2]}, {cbuf[gu][2*p:2*p+2]}, {mean[(mt//2)*2:(mt//2)*2+2]}, {A[2*p:2*p+2]} op_sel:[0,{mt%2},0] op_sel_hi:[1,{mt%2},1]")
            if t < 6:
                a(f"ds_read_b128 {cbuf[gu]}, {ca} offset:{gu*448 + 64*(t+1)}")
        for mp in range(2):
            G = [acc[2*mp][t], acc[2*mp+1][t]]; U = [acc[2*mp][7+t], acc[2*mp+1][7+t]]
            for k in range(2):
                for e in range(4):
                    a(f"v_max_f32 {G[k][e]}, 0, {G[k][e]}")
            for k in range(2):
                for p in range(2):
                    a(f"v_pk_mul_f32 {G[k][2*p:2*p+2]}, {G[k][2*p:2*p+2]}, {U[k][2*p:2*p+2]}")
            D = U[0]
            a(f"v_cvt_pk_bf16_f32 {D[0]}, {G[0][0]}, {G[0][1]}\nv_cvt_pk_bf16_f32 {D[1]}, {G[0][2]}, {G[0][3]}")
            a(f"v_cvt_pk_bf16_f32 {D[2]}, {G[1][0]}, {G[1][1]}\nv_cvt_pk_bf16_f32 {D[3]}, {G[1][2]}, {G[1][3]}\ns_nop 1")
            a(f"v_permlane32_swap_b32 {D[0]}, {D[2]}\nv_permlane32_swap_b32 {D[1]}, {D[3]}")
            a(f"buffer_store_dwordx4 {D}, {so}, {WS}, s{28+mp} offen offset:{512*t} {SC} ;@p4out")
    a(f"s_lshl_b32 s47, {MI4}, 7\ns_lshl_b32 s29, {FJ4}, 2\ns_add_u32 s47, s47, s29\ns_add_u32 s47, s47, {F4}")

def phase5(a):
    va = Alloc("v", VW5x[3].b + 1, 256)
    vx = va(2); wa = va(8); wb = va(4); vwb = va(2); vpf = va(); fl = va(); fa = va()
    t0, t1, t2, t3 = va(), va(), va(), va()
    acc = [[va(4, 4) for t in range(8)] for mt in range(2)]
    Wf = [[va(4, 4) for t in range(8)] for b in range(2)]
    NB = 8
    Xf = [[va(4, 4) for mt in range(2)] for b in range(NB)]
    part = [[acc[mt][4 + t] for t in range(4)] for mt in range(2)]
    res = R("v", Wf[0][4].b, 16); stt = R("v", Wf[1][4].b, 16); r2 = wa[0:2]; u = wa[2:8]
    TT, sX, KH5, NJ5, sR, sPF = "s32", "s33", "s34", "s35", "s36", "s37"
    NA, NT = 2 * KA, 2 * (KA + KB)
    pa = Xf[7][1][0]
    a(f"s_lshr_b32 s28, {MI5}, 1\ns_lshl_b32 s28, s28, 7\ns_add_u32 s28, s28, {F4}\nv_lshlrev_b32 {pa}, 2, {r32}\nv_add_u32 {pa}, s28, {pa}")
    publish(a, ["s47"], "p4out", Xf[7][0][0:2])
    stamp(a, 12)
    for j in range(3, WLA):
        a.ext(w5a(j))
    a(f"s_and_b32 {KH5}, {S_XCD}, 1\ns_lshl_b32 {NJ5}, {NB5}, 1\ns_add_u32 {NJ5}, {NJ5}, {KH5}")
    a(f"s_lshl_b32 {TT}, {MI5}, 3\ns_lshl_b32 s28, {S_W}, 1\ns_add_u32 {TT}, {TT}, s28")
    a(f"v_lshrrev_b32 {t0}, 2, {lane}\nv_and_b32 {t0}, 3, {t0}\nv_and_b32 {t1}, 1, {g4}\nv_lshl_add_u32 {t0}, {t1}, 2, {t0}\nv_lshl_add_u32 {t1}, {hh}, 4, {t0}\nv_lshlrev_b32 {t1}, 8, {t1}")
    a(f"s_lshl_b32 s28, {KH5}, 2\nv_xor_b32 {t0}, s28, {t0}\nv_lshl_add_u32 {t1}, {t0}, 5, {t1}\nv_and_b32 {t0}, 3, {lane}\nv_lshl_add_u32 {t1}, {t0}, 3, {t1}\nv_add_u32 {wa[0]}, {R5 + 4*16384}, {t1}")
    for t in range(1, 8):
        a(f"v_xor_b32 {wa[t]}, {32*t}, {wa[0]}")
    wa35(a, wb, t0, t1, R5 + ((KA + 5) % 8) * 16384)
    w64_dma_voff(a, vwb, t0, t1, NJ5)
    a(f"s_add_u32 {sR}, {s5M}, 65536")
    a(f"s_mul_i32 {sX}, {TT}, {224*512}\ns_mul_i32 s28, {KH5}, {NA*1024}\ns_add_u32 {sX}, {sX}, s28\ns_add_u32 {sX}, {sX}, {AF}\nv_mov_b32 {vx[0]}, {vl}\nv_add_u32 {vx[1]}, {224*512}, {vl}")
    a(f"s_lshl_b32 s28, {S_IDX}, 3\ns_lshl_b32 s29, {S_W}, 1\ns_add_u32 s28, s28, s29\nv_and_b32 {vpf}, 1, {lane}\nv_add_u32 {vpf}, s28, {vpf}\nv_lshlrev_b32 {vpf}, 11, {vpf}")
    a(f"s_lshr_b32 s28, {S_XCD}, 2\ns_lshl_b32 s28, s28, 10\ns_add_u32 s28, s28, 384\ns_mul_i32 {sPF}, {KH5}, {KA*64*2048}\ns_add_u32 {sPF}, {sPF}, s28\ns_add_u32 {sPF}, {sPF}, {4*64*2048}")
    a(f"buffer_load_dword {fl}, {vpf}, {SB}, {sPF} offen\ns_add_u32 {sPF}, {sPF}, {4*64*2048}")
    srd(a, 12, P_OUT, 2048 * 2048)
    def wreads(sig):
        s = sig % 2
        if sig < NA:
            return [f"ds_read_b64_tr_b16 {Wf[sig%2][t][2*j:2*j+2]}, {wa[t]} offset:{(((sig//2)+5)%4)*16384 + s*8192 + 2048*j} ;@r5_{sig}_{t}" for t in range(8) for j in range(2)]
        i = sig // 2 - KA
        sl = (KA + i + 5) % 8; b0 = (KA + 5) % 8
        grp = 0 if sl >= b0 and i < 8 - b0 else None
        return [f"ds_read_b64_tr_b16 {Wf[sig%2][t][2*j:2*j+2]}, {wb[t]} offset:{boff(i)*16384 + s*4096 + 1024*j} ;@r5_{sig}_{t}" for t in range(4) for j in range(2)]
    bbase = {}
    cur = (KA + 5) % 8
    for i in range(KB):
        sl = (KA + i + 5) % 8
        if not (0 <= sl - cur < 4):
            cur = sl
        bbase[i] = cur
    boff = lambda i: (KA + i + 5) % 8 - bbase[i]
    a.ext(wreads(0))
    poll(a, "p5", pa, Xf[7][0][0])
    stamp(a, 13)
    def xload(sig):
        o = []
        if sig == NA:
            o += [f"s_mul_i32 {sX}, {TT}, {224*512}", f"s_add_u32 {sX}, {sX}, {AF + 2*NA*1024}"]
        elif sig % 4 == 0 and sig > 0:
            o += [f"s_add_u32 {sX}, {sX}, 4096"]
        o += [f"buffer_load_dwordx4 {Xf[sig%NB][mt]}, {vx[mt]}, {WS}, {sX} offen offset:{(sig%4)*1024} {SC} ;@p5x{sig}" for mt in range(2)]
        return o
    def w5b(j):
        o = []
        if j == KA:
            o += [f"s_mov_b32 {s5W}, {(2*KA-1)*64*2048}", f"s_lshl_b32 s28, {S_W}, 11", f"s_sub_u32 {s5M}, {s5M}, s28"]
        o += [f"s_add_u32 m0, {s5M}, {((j+5)%8)*16384}", f"s_add_u32 {s5W}, {s5W}, {64*2048}"]
        o += [f"buffer_load_dwordx4 {vwb[i]}, {SB}, {s5W} offen offset:{1024*i} lds ;@p5w{j}" for i in range(2)]
        return o
    for sig in range(XLA):
        a.ext(xload(sig))
    side = {k: [] for k in range(NT)}
    side[NA - 1] += [f"s_xor_b32 s28, {S_WG}, 1", "s_lshl_b32 s28, s28, 14", f"s_lshl_b32 s29, {S_W}, 12", "s_add_u32 s28, s28, s29", f"s_add_u32 s30, s28, {XP}"]
    for mt in range(2):
        for p in range(2):
            A, B = acc[mt][4 + 2 * p], acc[mt][5 + 2 * p]
            side[NA + mt] += [f"v_cvt_pk_bf16_f32 {A[0]}, {A[0]}, {A[1]}", f"v_cvt_pk_bf16_f32 {A[1]}, {A[2]}, {A[3]}", f"v_cvt_pk_bf16_f32 {A[2]}, {B[0]}, {B[1]}", f"v_cvt_pk_bf16_f32 {A[3]}, {B[2]}, {B[3]}",
                              f"buffer_store_dwordx4 {A}, {vl}, {WS}, s30 offen offset:{1024*(2*mt+p)} {SC}"]
    pl = [f"buffer_load_dwordx4 {part[k//2][2*(k%2)]}, {vl}, {WS}, s30 offen offset:{1024*k} {SC}" for k in range(4)]
    side[NT - CHK5] += ["s_xor_b32 s30, s30, 16384"] + pl
    side[NA + 4] += [f"s_lshl_b32 s28, {TT}, 15", f"s_lshl_b32 s29, {NJ5}, 11", "s_add_u32 s28, s28, s29", f"s_add_u32 s28, s28, {HF}", f"v_add_u32 {t0}, 32768, {vl}"]
    side[NA + 4] += [f"buffer_load_dwordx4 {res[8*mt+4*p:8*mt+4*p+4]}, {vl if mt == 0 else t0}, {WS}, s28 offen offset:{1024*p} {SC}" for mt in range(2) for p in range(2)]
    q = [f"v_lshlrev_b32 {t1}, 3, {t16}", f"v_lshl_add_u32 {t1}, {g4}, 16, {t1}", f"s_lshl_b32 s28, {TT}, 7", f"s_add_u32 s28, s28, {ST}"]
    for k in range(4):
        q += [f"buffer_load_dwordx2 {stt[8*mt+2*k:8*mt+2*k+2]}, {t1}, {WS}, s28 offen offset:{128*mt} {SC} ;@p5st" for mt in range(2)] + ["s_add_u32 s28, s28, 16384"]
    side[NA + 5] += q[:10]; side[NA + 6] += q[10:]
    q = ["s_waitcnt vmcnt(@p5st)"]
    for mt in range(2):
        T = stt[8 * mt:8 * mt + 8]
        q += [f"v_add_f32 {T[e]}, {T[e]}, {T[2+e]}" for e in range(2)] + [f"v_add_f32 {T[4+e]}, {T[4+e]}, {T[6+e]}" for e in range(2)]
    for mt in range(2):
        q += [f"v_add_f32 {stt[8*mt+e]}, {stt[8*mt+e]}, {stt[8*mt+4+e]}" for e in range(2)]
    vals = [stt[0], stt[1], stt[8], stt[9]]; tm = [stt[2], stt[3], stt[10], stt[11]]
    for sw_ in ("16", "32"):
        q += [f"v_mov_b32 {tm[k]}, {vals[k]}" for k in range(4)] + ["s_nop 0"]
        q += [f"v_permlane{sw_}_swap_b32 {vals[k]}, {tm[k]}" for k in range(4)]
        q += [f"v_add_f32 {vals[k]}, {vals[k]}, {tm[k]}" for k in range(4)]
    for mt in range(2):
        m_, q_ = stt[8 * mt], stt[8 * mt + 1]
        q += [f"v_mul_f32 {m_}, {f32(1/1024)}, {m_}", f"v_mul_f32 {q_}, {f32(1/1024)}, {q_}", f"v_fma_f32 {q_}, -{m_}, {m_}, {q_}", f"v_max_f32 {q_}, 0, {q_}",
              f"v_add_f32 {q_}, {f32(EPS)}, {q_}", f"v_rcp_f32 {r2[mt]}, {q_}"]
    h_ = (len(q) + 2) // 3
    for k in range(3):
        side[NT - 4 + k] += q[k * h_:(k + 1) * h_]
    assert WLA == 4
    for sig in range(NT):
        i, s = divmod(sig, 2)
        inloop = 6 <= sig < 6 + 8 * ((NA - 6) // 8)
        if inloop and sig % 8 == 6:
            a.it("p5")
        if DBG == "p5" and (sig < 6 and sig % 2 == 0 or sig == 6 + 8 * ((NA - 6) // 8) or sig >= NA and sig % 2 == 0):
            stamp(a, 16 + (sig // 2 if sig < 6 else 3 if sig < NA else 4 + (sig - NA) // 2))
        last = i == KA + KB - 1
        nt = 8 if sig < NA else 4
        a(f"s_waitcnt vmcnt(@p5x{sig}" + (f"&p5w{i+1}" if s == 1 and not last else "") + f") lgkmcnt(@r5_{sig}_{nt//2-1})")
        if s == 1 and not last:
            a("s_barrier")
        m = [mf16(acc[mt][t], Wf[sig % 2][t], Xf[sig % NB][mt], 0 if sig == 0 else None) for t in range(nt) for mt in range(2)]
        rd = wreads(sig + 1) if sig < NT - 1 else []
        ex = xload(sig + XLA) if sig + XLA < NT else []
        j = i + WLA
        if j < KA:
            w_ = w5a(j, (sR, ((i + 5) % 4) * 16384) if inloop else None)
            ex += w_[:4] if s == 0 else w_[4:]
        elif j < KA + KB and s == 0:
            ex += w5b(j)
        if sig % 8 == 1 and 6 <= sig < NA - 8 and PF3:
            ex += [f"buffer_load_dword {fl}, {vpf}, {SB}, {sPF} offen", f"s_add_u32 {sPF}, {sPF}, {4*64*2048}"]
        ex += side[sig]
        upd = {}
        if s == 0 and sig < NA - 2 and (i + 5) % 4 == 3:
            upd = {2 * t + 1: f"v_xor_b32 {wa[t]}, {(R5 + 65536) ^ R5}, {wa[t]}" for t in range(8)}
        if s == 1 and inloop and (i + 5) % 4 == 3:
            ex += [f"s_xor_b32 {sR}, {sR}, {(R5 + 65536) ^ R5}"]
        if sig >= NA and s == 0 and not last and bbase[i - KA + 1] != bbase[i - KA]:
            d = (bbase[i - KA + 1] - bbase[i - KA]) * 16384
            upd = {2 * t + 1: (f"v_add_u32 {wb[t]}, {d}, {wb[t]}" if d > 0 else f"v_subrev_u32 {wb[t]}, {-d}, {wb[t]}") for t in range(4)}
        rd2 = [x + ("\n" + upd[k] if k in upd else "") for k, x in enumerate(rd)]
        ng = len(m)
        rper = -(-len(rd2) // ng) if rd2 else 0
        for g in range(ng):
            if g == ng // 2:
                a(f"s_waitcnt lgkmcnt(@r5_{sig}_{nt-1})")
            a(m[g])
            a.ext(rd2[g * rper:(g + 1) * rper])
            lo = (g * len(ex)) // ng; hi = ((g + 1) * len(ex)) // ng
            a.ext(ex[lo:hi])
        if inloop and sig % 8 == 5:
            a.endit()
    stamp(a, 14)
    tmp = R("v", Xf[0][0].b, 32); pk = R("v", Xf[4][0].b, 16)
    a(f"s_lshl_b32 s30, {S_W}, 12")
    dlayout_addr(a, t1, t0, "s30")
    for k in range(16):
        a(f"v_lshlrev_b32 {tmp[2*k]}, 16, {res[k]}\nv_and_b32 {tmp[2*k+1]}, 0xffff0000, {res[k]}")
    for mt in range(2):
        for k in range(8):
            a(f"v_pk_fma_f32 {tmp[16*mt+2*k:16*mt+2*k+2]}, {acc[mt][k//2][2*(k%2):2*(k%2)+2]}, {r2}, {tmp[16*mt+2*k:16*mt+2*k+2]} op_sel:[0,{mt},0] op_sel_hi:[1,{mt},1]")
    def pchk(o):
        P4 = [part[k // 2][2 * (k % 2)] for k in range(4)]
        o(f"s_waitcnt vmcnt(0)\nv_max3_u32 {fl}, {P4[0][0]}, {P4[0][1]}, {P4[0][2]}\nv_max3_u32 {fa}, {P4[2][0]}, {P4[2][1]}, {P4[2][2]}")
        o(f"v_max3_u32 {fl}, {fl}, {P4[0][3]}, {P4[1][0]}\nv_max3_u32 {fa}, {fa}, {P4[2][3]}, {P4[3][0]}\nv_max3_u32 {fl}, {fl}, {P4[1][1]}, {P4[1][2]}\nv_max3_u32 {fa}, {fa}, {P4[3][1]}, {P4[3][2]}")
        o(f"v_max3_u32 {fl}, {fl}, {P4[1][3]}, {P4[3][3]}\nv_max_u32 {fl}, {fl}, {fa}\nv_cmp_eq_u32 vcc, -1, {fl}\ns_nop 1\ns_cmp_lg_u64 vcc, 0")
    pchk(a)
    a("s_cbranch_scc1 L_p5x_spin\nL_p5x_back:")
    t = Asm()
    t(f"L_p5x_spin:\ns_mov_b32 s26, {SPIN_MAX}\nv_lshlrev_b32 {vpf}, 4, {lane}\nL_p5x_spin2:\ns_sleep 2")
    t(f"s_xor_b32 s27, {S_WG}, 0\ns_lshl_b32 s27, s27, 14\ns_lshl_b32 s28, {S_W}, 12\ns_add_u32 s27, s27, s28\ns_add_u32 s27, s27, {XP}")
    t.ext([x.replace("s30", "s27") for x in pl])
    pchk(t)
    t("s_cbranch_scc0 L_p5x_back\ns_sub_u32 s26, s26, 1\ns_cbranch_scc0 L_p5x_spin2\ns_branch L_p5x_back")
    tails.append(t)
    for mt in range(2):
        if True:
            for p in range(2):
                A, B = part[mt][2 * p], part[mt][2 * p + 1]
                a(f"v_lshlrev_b32 {B[0]}, 16, {A[2]}\nv_and_b32 {B[1]}, 0xffff0000, {A[2]}\nv_lshlrev_b32 {B[2]}, 16, {A[3]}\nv_and_b32 {B[3]}, 0xffff0000, {A[3]}")
                a(f"v_lshlrev_b32 {A[2]}, 16, {A[1]}\nv_and_b32 {A[3]}, 0xffff0000, {A[1]}\nv_and_b32 {A[1]}, 0xffff0000, {A[0]}\nv_lshlrev_b32 {A[0]}, 16, {A[0]}")
        for k in range(8):
            a(f"v_pk_fma_f32 {tmp[16*mt+2*k:16*mt+2*k+2]}, {part[mt][k//2][2*(k%2):2*(k%2)+2]}, {r2}, {tmp[16*mt+2*k:16*mt+2*k+2]} op_sel:[0,{mt},0] op_sel_hi:[1,{mt},1]")
        for k in range(8):
            a(f"v_cvt_pk_bf16_f32 {pk[8*mt+k]}, {tmp[16*mt+2*k]}, {tmp[16*mt+2*k+1]}")
    for t in range(4):
        a(f"v_xor_b32 {t2}, {32*t}, {t0}\nv_add_u32 {t2}, {t2}, {t1}")
        for mt in range(2):
            a(f"ds_write_b64 {t2}, {pk[8*mt+2*t:8*mt+2*t+2]} offset:{2048*mt}")
    a(f"v_add_u32 {t2}, s30, {vl}\ns_waitcnt lgkmcnt(0)")
    for i in range(4):
        a(f"ds_read_b128 {tmp[4*i:4*i+4]}, {t2} offset:{i*1024}")
    a(f"s_lshl_b32 s30, {TT}, 4")
    rowmajor_voff(a, t2, t3, t0, t1, "s30", NJ5)
    for i in range(4):
        a(f"s_mov_b32 s29, {i*8*2048}\ns_waitcnt lgkmcnt({3-i})")
        a(f"buffer_store_dwordx4 {tmp[4*i:4*i+4]}, {t2 if i%2==0 else t3}, {SA}, s29 offen {SC}")
    if STAMPS:
        a("s_waitcnt vmcnt(0)")
        stamp(a, 15)
        a(f"s_add_u32 s88, s{P_WS}, {STAMP}\ns_addc_u32 s89, s{P_WS+1}, 0\ns_lshl_b32 s87, {S_WG}, 10\ns_lshl_b32 s86, {S_W}, 8\ns_add_u32 s87, s87, s86")
        a(f"v_lshlrev_b32 {t0}, 2, {lane}\nv_add_u32 {t0}, s87, {t0}\nglobal_store_dword {t0}, {vst}, s[88:89]")
CHK5, PF3, XLA, WLA = 3, True, 6, 4
CORR = 'fmac'

KN = "sequential_preLN__mha_block__glu_gated_reglu__prompt_kernel"
def build(path):
    hdr = open("sequential_preLN__mha_block__glu_gated_reglu__prompt.s.ref").read().split("\n")
    hdr = [l for l in hdr if l.startswith(";") and "@launch" not in l]
    a = Prog()
    a(f"s_cmp_ge_u32 s2, 256\ns_cbranch_scc1 L_end")
    entry(a)
    a.label("L_P1")
    phase1(a)
    a.label("L_P2")
    sxr = phase2(a)
    a.label("L_P3")
    phase3(a, sxr)
    a.label("L_P4")
    phase4(a)
    a.label("L_P5")
    phase5(a)
    a.resolve()
    a.fold()
    errs = check(a.lines, "main")
    a.label("L_end")
    a("s_endpgm")
    for t in tails:
        errs += check(t.lines, "tail")
        a.lines += t.lines
    for e in errs:
        print(e)
    out = list(hdr)
    out.append("; @launch grid=(256,1,1) block=(256,1,1) lds=163840")
    out.append('.amdgcn_target "amdgcn-amd-amdhsa--gfx950"\n.text')
    out.append(f".globl {KN}\n.p2align 8\n.type {KN},@function\n{KN}:")
    out.append(a.text())
    out.append(f""".section .rodata,"a"
.p2align 6
.amdhsa_kernel {KN}
  .amdhsa_next_free_vgpr 512
  .amdhsa_next_free_sgpr 102
  .amdhsa_accum_offset 256
  .amdhsa_group_segment_fixed_size 0
  .amdhsa_kernarg_size 80
  .amdhsa_user_sgpr_count 2
  .amdhsa_user_sgpr_kernarg_segment_ptr 1
  .amdhsa_system_sgpr_workgroup_id_x 1
.end_amdhsa_kernel""")
    open(path, "w").write("\n".join(out) + "\n")
    print(f"wrote {path}: {len(errs)} checker errors")

if __name__ == "__main__":
    import argparse
    ap = argparse.ArgumentParser()
    ap.add_argument("-o", default="v2.s")
    ap.add_argument("--stamps", action="store_true")
    ap.add_argument("--slow", action="store_true")
    ap.add_argument("--spin", type=int, default=None)
    ap.add_argument("--dbg", default=None)
    ap.add_argument("--set", action="append", default=[])
    args = ap.parse_args()
    DBG = args.dbg
    for kv in args.set:
        k, v = kv.split("=")
        globals()[k] = eval(v)
    STAMPS = args.stamps; FORCE_SLOW = args.slow
    if args.spin: SPIN_MAX = args.spin
    build(args.o)
```

```python
import sys, math, re, struct
from asmlib import *

MB = 1 << 20
QF = 0 * MB; KF = 4 * MB; VF = 8 * MB
OF = 12 * MB
AF = 16 * MB
HF = 32 * MB
ST = 36 * MB
CS = 39 * MB
RA = 37 * MB + 65536
CQ = RA + 16384
FLG = 38 * MB
FSM, FSN, F1, F2, FC, F3, F4 = [FLG + 128 * k for k in (0, 16, 32, 48, 64, 72, 80)]
QL = 16384
FLG_BYTES = 128 * 128
XP = 40 * MB
WSZ = 48 * MB
STAMP = 200 * MB
OOB = 0x7ff00000
EPS = 1e-5
SC = "sc1"
STAMPS = False
FORCE_SLOW = False
DBG = None
SPIN_MAX = 1 << 22
def f32(x):
    return "0x%08x" % struct.unpack("<I", struct.pack("<f", x))[0]
def mf32(d, a, b, c=None):
    return f"v_mfma_f32_32x32x16_bf16 {d}, {a}, {b}, {c if c is not None else d}"
def mf16(d, a, b, c=None):
    return f"v_mfma_f32_16x16x32_bf16 {d}, {a}, {b}, {c if c is not None else d}"

S_WG, S_XCD, S_IDX, S_W = "s2", "s3", "s4", "s5"
WS = "s[8:11]"; SA = "s[12:15]"; SB = "s[16:19]"; SCc = "s[20:23]"
P_X, P_WQKV, P_WO, P_BX, P_WG, P_WU, P_WD, P_OUT, P_DBG, P_WS = 64, 66, 68, 70, 72, 74, 76, 78, 80, 82
lane, vl, t16, g4, r32, hh, vst = (R("v", i) for i in range(1, 8))
V0 = 8

class Prog(Asm):
    def it(self, name):
        self.lines.append(f";ITER {name}")
    def endit(self):
        self.lines.append(";ENDITER")
    def resolve(self):
        ops = []
        dso = []
        out = []
        for l in self.lines:
            m = re.search(r"lgkmcnt\(@([^)]*)\)", l)
            if m:
                idx = [i for i, t in enumerate(dso) if t == m.group(1)]
                assert idx, f"ds tag {m.group(1)} not issued"
                l = l.replace(m.group(0), f"lgkmcnt({min(len(dso) - 1 - idx[-1], 15)})")
            if l.startswith("ds_"):
                m = re.search(r";@(\S+)", l)
                dso.append(m.group(1) if m else None)
                l = l.split(";@")[0].strip()
            m = re.search(r"vmcnt\(@([^)]*)\)", l)
            if m:
                tags = m.group(1).split("&")
                n = 10 ** 9
                for tg in tags:
                    idx = [i for i, t in enumerate(ops) if t == tg]
                    assert idx, f"tag {tg} not issued before wait"
                    n = min(n, len(ops) - 1 - idx[-1])
                l = l.replace(m.group(0), f"vmcnt({min(n, 63)})")
            if re.match(r"(buffer_|global_)", l):
                m = re.search(r";@(\S+)", l)
                if not (m and m.group(1) == "skip"):
                    ops.append(m.group(1) if m else None)
                l = l.split(";@")[0].strip()
            out.append(l)
        self.lines = out
    def fold(self, counter="s24"):
        blocks = []
        cur = None
        for l in self.lines:
            if l.startswith(";ITER"):
                cur = (l.split()[1], [])
            elif l.startswith(";ENDITER"):
                blocks.append(("it", cur[0], cur[1])); cur = None
            elif cur is not None:
                cur[1].append(l)
            else:
                blocks.append(("line", l))
        strip = lambda L: [re.sub(r"vmcnt\(\d+\)", "vmcnt()", x) for x in L]
        nums = lambda L: [int(m) for x in L for m in re.findall(r"vmcnt\((\d+)\)", x)]
        for i in range(len(blocks) - 2, -1, -1):
            b, c = blocks[i], blocks[i + 1]
            if b[0] == "it" and c[0] == "it" and b[1] == c[1] and b[2] != c[2] and strip(b[2]) == strip(c[2]):
                if all(y <= x for x, y in zip(nums(b[2]), nums(c[2]))):
                    blocks[i] = ("it", b[1], list(c[2]))
                else:
                    print("   cannot unify", b[1], nums(b[2]), nums(c[2]))
        out = []
        i = 0; k = 0
        while i < len(blocks):
            b = blocks[i]
            if b[0] == "line":
                out.append(b[1]); i += 1; continue
            j = i
            while j + 1 < len(blocks) and blocks[j + 1][0] == "it" and blocks[j + 1][1] == b[1] and blocks[j + 1][2] == b[2]:
                j += 1
            n = j - i + 1
            if n == 1:
                out += b[2]
                print(f"  iter {b[1]}: single ({len(b[2])} instrs)")
            else:
                k += 1
                print(f"  iter {b[1]}: loop x{n} ({len(b[2])} instrs)")
                out += [f"s_mov_b32 {counter}, {n}", ".p2align 4", f"L_{b[1]}_{k}:", ";LOOP"] + b[2] + \
                       [f"s_sub_u32 {counter}, {counter}, 1", f"s_cmp_lg_u32 {counter}, 0", f"s_cbranch_scc1 L_{b[1]}_{k}", ";ENDLOOP"]
            i = j + 1
        self.lines = out

def srd(a, s, ptr, nbytes):
    a(f"s_mov_b32 s{s}, s{ptr}\ns_mov_b32 s{s+1}, s{ptr+1}\ns_mov_b32 s{s+2}, {nbytes}\ns_mov_b32 s{s+3}, 0x20000")

def stamp(a, k):
    if not STAMPS:
        return
    a(f"s_memrealtime s[90:91]\ns_memtime s[88:89]\ns_waitcnt lgkmcnt(0)")
    a(f"v_writelane_b32 {vst}, s90, {k}\nv_writelane_b32 {vst}, s88, {32+k}")

def spread(spine, fillers, maxper=None, start=0, end=None):
    n = len(spine); end = n if end is None else end
    g = end - start
    cnt = [0] * n
    for i in range(len(fillers)):
        cnt[start + (i * g) // len(fillers)] += 1
    return interleave(spine, fillers, per_gap=cnt)

tails = []
def is_mem(x):
    return any(l.startswith(("buffer_", "global_", "ds_")) for l in x.split("\n"))
def sched(spine, lds, other, lds_end=None, first=0):
    n = len(spine)
    lds_end = n - 4 if lds_end is None else lds_end
    nm = sum(is_mem(x) for x in other)
    for lcap in range(1, 40):
        for mcap in (1, 2, 3):
            L = list(lds); O = list(other)
            seq = []; cnt = []; done_m = 0
            for g in range(n):
                c = 0; light = 0; mem = 0
                if g >= first:
                    while True:
                        must_l = L and (len(L) > (lds_end - g - 1) * mcap + (mcap - mem - 1))
                        if O and not is_mem(O[0]) and light < lcap:
                            x = O.pop(0); seq.append(x); c += 1; light += x.count("\n") + 1
                        elif mem < mcap and O and is_mem(O[0]) and not must_l and (done_m * (n - first) <= (g - first) * nm or not L):
                            seq.append(O.pop(0)); c += 1; mem += 1; done_m += 1
                        elif mem < mcap and L:
                            seq.append(L.pop(0)); c += 1; mem += 1
                        else:
                            break
                cnt.append(c)
            if not L and not O:
                return interleave(spine, seq, per_gap=cnt)
    raise RuntimeError("sched failed")

pfn = [0]
def codepf(a, l0, l1, vt, dist=True):
    if not CODEPF:
        return
    a(f"s_add_u32 s56, s58, {l0}-L_base\ns_addc_u32 s57, s59, 0")
    a(f"v_and_b32 {vt}, 7, v0\nv_lshl_add_u32 {vt}, {vt}, 5, {S_IDX}\nv_lshlrev_b32 {vt}, 7, {vt}\nv_min_u32 {vt}, {l1}-{l0}-4, {vt}\nglobal_load_dword {vt}, {vt}, s[56:57]")
CODEPF = True
P1MODE = 2
NTS = 10
ROT = 0
DIAG = False
EXP = ''
SWAP37 = True
PF1 = 6
DUMPQ = False
WOT = False
EARLY2 = False
def w0sel(a, dst, val):
    a(f"s_cmp_eq_u32 {S_W}, 0\ns_cselect_b32 {dst}, {val}, {OOB}")
def publish(a, offs, tag, tmp):
    a(f"v_mov_b32 {tmp[0]}, 1\nv_mov_b32 {tmp[1]}, 0")
    for o in offs:
        w0sel(a, o, o)
    a(f"s_waitcnt vmcnt(@{tag})\ns_barrier")
    for o in offs:
        a(f"buffer_store_dword {tmp[0]}, {tmp[1]}, {WS}, {o} offen {SC}")
def poll(a, name, vaddr, t):
    va_ = vaddr if isinstance(vaddr, list) else [vaddr]
    ts = t if isinstance(t, list) else [t]
    a(f"s_cmp_lg_u32 {S_W}, 0\ns_cbranch_scc1 L_{name}_ok\ns_mov_b32 s26, {SPIN_MAX}")
    a.label(f"L_{name}_poll")
    for v, x in zip(va_, ts):
        a(f"buffer_load_dword {x}, {v}, {WS}, 0 offen {SC} ;@skip")
    a(f"s_waitcnt vmcnt(0)")
    if len(ts) == 2:
        a(f"v_min_u32 {ts[0]}, {ts[0]}, {ts[1]}")
    a(f"v_cmp_eq_u32 vcc, 0, {ts[0]}\ns_sub_u32 s26, s26, 1\ns_cselect_b32 s27, 0, vcc_lo\ns_cselect_b32 s28, 0, vcc_hi")
    a(f"s_or_b32 s27, s27, s28\ns_cbranch_scc0 L_{name}_ok\ns_sleep 1\ns_branch L_{name}_poll")
    a.label(f"L_{name}_ok")
    a("s_barrier")
def lazy_check(name, reg, vaddr, srdn, restore):
    t = Asm()
    t.label(f"L_{name}_spin")
    t(f"s_mov_b32 s26, {SPIN_MAX}")
    t.ext(restore)
    t.label(f"L_{name}_spin2")
    t(f"s_sleep 2\nbuffer_load_dword {reg}, {vaddr}, {srdn}, 0 offen {SC}\ns_waitcnt vmcnt(0)\nv_cmp_eq_u32 vcc, 0, {reg}")
    t(f"s_sub_u32 s26, s26, 1\ns_cbranch_scc1 L_{name}_back\ns_cmp_lg_u64 vcc, 0\ns_cbranch_scc1 L_{name}_spin2\ns_branch L_{name}_back")
    tails.append(t)
    return f"v_cmp_eq_u32 vcc, 0, {reg}\ns_nop 1\ns_cmp_lg_u64 vcc, 0\ns_cbranch_scc1 L_{name}_spin\nL_{name}_back:"

def xsum16_32(a, x, y):
    a(f"v_mov_b32 {y}, {x}\ns_nop 1\nv_permlane16_swap_b32 {x}, {y}\nv_add_f32 {x}, {x}, {y}")
    a(f"v_mov_b32 {y}, {x}\ns_nop 1\nv_permlane32_swap_b32 {x}, {y}\nv_add_f32 {x}, {x}, {y}")

def entry(a):
    a("s_getpc_b64 s[58:59]\nL_base:")
    if DIAG:
        a("s_memrealtime s[92:93]\ns_memtime s[94:95]")
    a(f"s_load_dwordx16 s[64:79], s[0:1], 0\ns_load_dwordx4 s[80:83], s[0:1], 64")
    a(f"v_lshrrev_b32 {lane}, 6, v0\nv_and_b32 {r32}, 31, v0\nv_readfirstlane_b32 {S_W}, {lane}\nv_and_b32 {lane}, 63, v0")
    a(f"v_lshlrev_b32 {vl}, 4, {lane}\nv_and_b32 {t16}, 15, {lane}\nv_lshrrev_b32 {g4}, 4, {lane}\nv_lshrrev_b32 {hh}, 5, {lane}")
    a(f"s_and_b32 {S_XCD}, {S_WG}, 7\ns_lshr_b32 {S_IDX}, {S_WG}, 3")
    if STAMPS:
        a(f"v_mov_b32 {vst}, 0")

def phase1(a):
    XS, HS, WB, NW = 16384, 12288, 65536, 7
    TAB = WB + NW * HS
    va = Alloc("v", V0, 256); aa = Alloc("a", 0, 256)
    vxd = va(4); vwd = va(3); xa = va(2); wa = [va(2), va(2)]
    t0, t1, t2, t3 = va(), va(), va(), va()
    acc = [[[va(4, 4) for dt in range(2)] for sg in range(3)] for mt in range(4)]
    Xf = [[aa(4, 4) for mt in range(4)] for b in range(2)]
    Wf = [[[aa(4, 4) for dt in range(2)] for sg in range(3)] for b in range(2)]
    sx = va(16, 4)
    sacc = va(16, 4)
    sw = aa(32, 4); ident = aa(4, 4)
    u = va(8, 4)
    cq = va(16, 4); cv = va(2); dbg = va()
    MI, NJ, WM, WN = "s32", "s33", "s34", "s35"
    sX, sW, sDW, sRW, mX, mW = "s36", "s37", "s38", "s39", "s40", "s41"
    stamp(a, 0)
    a(f"s_and_b32 {MI}, {S_XCD}, 1\ns_lshl_b32 {MI}, {MI}, 3\ns_and_b32 s29, {S_IDX}, 7\ns_add_u32 {MI}, {MI}, s29")
    a(f"s_lshr_b32 {NJ}, {S_XCD}, 1\ns_lshl_b32 {NJ}, {NJ}, 2\ns_lshr_b32 s29, {S_IDX}, 3\ns_add_u32 {NJ}, {NJ}, s29")
    a(f"s_and_b32 {WM}, {S_W}, 1\ns_lshr_b32 {WN}, {S_W}, 1")
    a(f"v_lshrrev_b32 {t0}, 3, {lane}\ns_lshl_b32 s29, {MI}, 7\ns_lshl_b32 s28, {S_W}, 5\ns_add_u32 s29, s29, s28")
    a(f"v_add_u32 {t1}, s29, {t0}\nv_lshlrev_b32 {t1}, 11, {t1}")
    a(f"v_and_b32 {t2}, 7, {lane}\nv_xor_b32 {t2}, {t2}, {g4}\nv_xor_b32 {t3}, 4, {t2}")
    a(f"v_lshl_add_u32 {vxd[0]}, {t2}, 4, {t1}\nv_lshl_add_u32 {t3}, {t3}, 4, {t1}")
    a(f"v_add_u32 {vxd[1]}, {15360}, {t3}\nv_add_u32 {vxd[2]}, {2*15360}, {vxd[0]}\nv_add_u32 {vxd[3]}, {3*15360}, {t3}")
    a(f"v_mul_u32_u24 {t0}, 6144, {t0}\nv_and_b32 {t1}, 1, {g4}\nv_lshlrev_b32 {t1}, 1, {t1}\nv_and_b32 {t2}, 7, {lane}\nv_xor_b32 {t1}, {t1}, {t2}")
    a(f"s_mul_i32 s31, {S_W}, 3\ns_and_b32 s30, {NJ}, 12")
    for i in range(3):
        a(f"s_add_u32 s28, s31, {i}\ns_lshr_b32 s29, s28, 2\ns_mul_i32 s27, s29, {ROT}\ns_add_u32 s27, s27, {NJ}\ns_and_b32 s27, s27, 3\ns_or_b32 s27, s27, s30")
        a(f"s_lshl_b32 s29, s29, 4\ns_add_u32 s29, s29, s27\ns_lshl_b32 s29, s29, 7\ns_and_b32 s28, s28, 3")
        a(f"s_and_b32 s27, s28, 1\ns_lshl_b32 s27, s27, 2\ns_mul_i32 s28, s28, {8*6144}\ns_add_u32 s28, s28, s29\ns_sub_u32 s28, s28, {1024*i}")
        a(f"v_xor_b32 {t2}, s27, {t1}\nv_lshl_add_u32 {t2}, {t2}, 4, {t0}\nv_add_u32 {vwd[i]}, s28, {t2}")
    for sg in range(3):
        a(f"s_add_u32 s27, {NJ}, {ROT*sg}\ns_and_b32 s27, s27, 3\ns_or_b32 s{60+sg}, s27, s30")
    a("s_waitcnt lgkmcnt(0)")
    srd(a, 12, P_X, 2048 * 2048)
    srd(a, 16, P_WQKV, 1024 * 6144)
    a(f"s_mov_b32 {sX}, 0\ns_mov_b32 {sW}, 0")
    a(f"s_lshl_b32 {mX}, {S_W}, 12\ns_mul_i32 {mW}, {S_W}, 3072\ns_add_u32 {mW}, {mW}, {WB}")
    def xdma(slab, rng=range(4)):
        o = [f"s_add_u32 m0, {mX}, {(slab%4)*XS}", f"s_mov_b32 {sX}, {128*slab}"]
        o += [f"buffer_load_dwordx4 {vxd[i]}, {SA}, {sX} offen offset:{i*1024} lds ;@x{slab}" for i in rng]
        return o
    def wdma(hs):
        o = [f"s_add_u32 m0, {mW}, {(hs%NW)*HS}", f"s_mov_b32 {sW}, {32*6144*hs}"]
        o += [f"buffer_load_dwordx4 {vwd[i]}, {SB}, {sW} offen offset:{i*1024} lds ;@w{hs}" for i in range(3)]
        return o
    def dmas(sig):
        i, s = divmod(sig, 2)
        o = []
        if P1MODE == 0:
            if sig == 0:
                return xdma(2) + wdma(4) + wdma(5)
            if sig == 1:
                return wdma(6) + wdma(7) + xdma(3)
            if sig == 2:
                return wdma(8) + xdma(4)
        elif P1MODE == 1:
            if sig == 0:
                return wdma(6) + xdma(3)
        else:
            if sig == 0:
                return xdma(2) + wdma(4) + wdma(5)
            if sig == 1:
                return wdma(6) + wdma(7) + xdma(3)
            if sig == 2:
                return wdma(8) + xdma(4)
        if s == 1:
            if 2 * i + 7 < 32: o += wdma(2 * i + 7)
            if i + 4 < 16: o += xdma(i + 4, range(2))
        else:
            if 2 * i + 6 < 32: o += wdma(2 * i + 6)
            if i + 3 < 16: o += xdma(i + 3, range(2, 4))
        return o
    def side_loads():
        a(f"s_lshl_b32 s42, {MI}, 7\ns_lshl_b32 s28, {NJ}, 3\ns_add_u32 s42, s42, s28\ns_lshl_b32 s28, {S_W}, 1\ns_add_u32 s42, s42, s28")
        a(f"v_lshlrev_b32 {t0}, 11, {hh}\nv_lshl_add_u32 {t0}, {r32}, 4, {t0}\ns_lshl_b32 s28, s42, 11")
        for i in range(4):
            a(f"buffer_load_dwordx4 {sx[4*i:4*i+4]}, {t0}, {SA}, s28 offen offset:{512*i} ;@sx")
        a(f"v_lshrrev_b32 {t0}, 2, {r32}\nv_mul_u32_u24 {t0}, 6144, {t0}\nv_and_b32 {t1}, 3, {lane}\nv_lshl_add_u32 {t0}, {t1}, 5, {t0}\nv_lshl_add_u32 {t0}, {hh}, 4, {t0}")
        a(f"s_and_b32 s28, {MI}, 3\ns_lshl_b32 s28, s28, 2\ns_add_u32 s28, s28, {S_W}\ns_mul_i32 s28, s28, {64*6144}")
        a(f"s_lshr_b32 s43, {MI}, 2\ns_mul_i32 s63, s43, {ROT}\ns_add_u32 s63, s63, {NJ}\ns_and_b32 s63, s63, 3\ns_or_b32 s63, s63, s30\ns_lshl_b32 s29, s43, 11\ns_add_u32 s28, s28, s29\ns_lshl_b32 s29, s63, 7\ns_add_u32 s28, s28, s29\ns_cmp_eq_u32 s43, 3\ns_cselect_b32 s28, {OOB}, s28")
        for i in range(8):
            a(f"buffer_load_dwordx4 {sw[4*i:4*i+4]}, {t0}, {SB}, s28 offen ;@sw\ns_add_u32 s28, s28, {8*6144}")
    def resets():
        srd(a, 8, P_WS, WSZ)
        srd(a, 20, P_DBG, 256)
        a(f"s_lshl_b32 s28, {S_W}, 12\ns_add_u32 s28, s28, {FLG}\ns_cmp_eq_u32 {S_WG}, 0\ns_cselect_b32 s28, s28, {OOB}")
        for r in range(4):
            a(f"v_mov_b32 {cq[r]}, 0\nv_mov_b32 {cq[4+r]}, -1")
        for i in range(4):
            a(f"buffer_store_dwordx4 {cq[0:4]}, {vl}, {WS}, s28 offen offset:{1024*i} {SC} ;@rst")
    if P1MODE == 0:
        if DBG == "p0": stamp(a, 16)
        a.ext(xdma(0) + wdma(0) + wdma(1))
        if DBG == "p0": stamp(a, 17)
        codepf(a, "L_P1", "L_P2", dbg)
        resets()
        if DBG == "p0": stamp(a, 18)
        a.ext(xdma(1) + wdma(2) + wdma(3))
        if DBG == "p0": stamp(a, 19)
        side_loads()
        if DBG == "p0": stamp(a, 20)
    elif P1MODE == 2:
        if DBG == "p0": stamp(a, 16)
        a.ext(xdma(0) + wdma(0) + wdma(1))
        if DBG == "p0": stamp(a, 17)
        a(f"v_min_u32 {t0}, {2*NTS-1}, {lane}\nv_lshrrev_b32 {t1}, 1, {t0}\nv_and_b32 {t0}, 1, {t0}\ns_lshl_b32 s28, {S_WG}, 3\ns_lshl_b32 s29, {S_W}, 1\ns_add_u32 s28, s28, s29")
        a(f"v_add_u32 {t0}, s28, {t0}\nv_lshlrev_b32 {t0}, 11, {t0}\nv_lshl_add_u32 {t0}, {t1}, 7, {t0}")
        a(f"buffer_load_dword {cv[0]}, {t0}, {SA}, 0 offen offset:128")
        a(f"v_min_u32 {t0}, {3*NTS-1}, {lane}\nv_mul_u32_u24 {t1}, 43, {t0}\nv_lshrrev_b32 {t1}, 7, {t1}\nv_mul_u32_u24 {t2}, 3, {t1}\nv_sub_u32 {t0}, {t0}, {t2}")
        a(f"s_mul_i32 s28, {S_WG}, 12\ns_mul_i32 s29, {S_W}, 3\ns_add_u32 s28, s28, s29\nv_add_u32 {t0}, s28, {t0}")
        a(f"s_mov_b32 s28, {(1<<32)//48 + 1}\nv_mul_hi_u32 {t2}, {t0}, s28\nv_lshl_add_u32 {t1}, {t1}, 6, {t2}\nv_mul_u32_u24 {t2}, 48, {t2}\nv_sub_u32 {t0}, {t0}, {t2}")
        a(f"v_mul_u32_u24 {t1}, 6144, {t1}\nv_lshl_add_u32 {t0}, {t0}, 7, {t1}\ns_mov_b32 s28, {64*6144}")
        a(f"buffer_load_dword {cv[1]}, {t0}, {SB}, s28 offen")
        codepf(a, "L_P1", "L_P2", dbg)
        if DBG == "p0": stamp(a, 18)
        a.ext(xdma(1) + wdma(2) + wdma(3))
        if DBG == "p0": stamp(a, 19); stamp(a, 20)
        srd(a, 8, P_WS, WSZ)
        srd(a, 20, P_DBG, 256)
    else:
        side_loads()
        codepf(a, "L_P1", "L_P2", dbg)
        a.ext(xdma(0) + wdma(0) + wdma(1))
        resets()
        a.ext(xdma(1) + wdma(2) + wdma(3) + xdma(2) + wdma(4) + wdma(5))
    a(f"v_lshrrev_b32 {t0}, 1, {t16}\nv_xor_b32 {t0}, {t0}, {g4}\ns_lshl_b32 s28, {WM}, 13\nv_lshlrev_b32 {t1}, 7, {t16}\nv_add_u32 {t1}, s28, {t1}")
    a(f"v_lshl_add_u32 {xa[0]}, {t0}, 4, {t1}\nv_xor_b32 {xa[1]}, 64, {xa[0]}")
    a(f"v_lshrrev_b32 {t0}, 2, {lane}\nv_and_b32 {t0}, 3, {t0}\nv_lshl_add_u32 {t1}, {g4}, 3, {t0}\nv_lshlrev_b32 {t1}, 7, {t1}")
    a(f"v_lshrrev_b32 {t0}, 1, {t0}\nv_and_b32 {t2}, 1, {g4}\nv_lshl_add_u32 {t0}, {t2}, 1, {t0}\ns_lshl_b32 s28, {WN}, 1\nv_xor_b32 {t0}, s28, {t0}")
    a(f"v_lshl_add_u32 {t1}, {t0}, 5, {t1}\nv_and_b32 {t0}, 3, {lane}\nv_lshl_add_u32 {t1}, {t0}, 3, {t1}\nv_add_u32 {wa[0][0]}, {WB}, {t1}\nv_xor_b32 {wa[0][1]}, 32, {wa[0][0]}")
    a(f"v_add_u32 {wa[1][0]}, {4*HS}, {wa[0][0]}\nv_add_u32 {wa[1][1]}, {4*HS}, {wa[0][1]}")
    a(f"v_lshrrev_b32 {t0}, 3, {r32}\nv_and_b32 {t1}, 7, {r32}\nv_and_b32 {t2}, 1, {t1}\nv_lshlrev_b32 {t2}, 4, {t2}\nv_mov_b32 {t3}, 0x3f80\nv_lshlrev_b32 {t3}, {t2}, {t3}")
    a(f"v_cmp_eq_u32 vcc, {t0}, {hh}\nv_lshrrev_b32 {t1}, 1, {t1}\ns_nop 0\nv_cndmask_b32 {t3}, 0, {t3}, vcc")
    for r in range(4):
        a(f"v_cmp_eq_u32 vcc, {r}, {t1}\ns_nop 1\nv_cndmask_b32 {t2}, 0, {t3}, vcc\nv_accvgpr_write_b32 {ident[r]}, {t2}")
    def xreads(sig):
        i, s = divmod(sig, 2)
        return [f"ds_read_b128 {Xf[sig%2][mt]}, {xa[s]} offset:{(i%4)*XS + mt*2048}" for mt in range(4)]
    def wreads(sig):
        sl = sig % NW
        return [f"ds_read_b64_tr_b16 {Wf[sig%2][sg][dt][2*j:2*j+2]}, {wa[sl//4][dt]} offset:{(sl%4)*HS + sg*4096 + 512*j}" for sg in range(3) for dt in range(2) for j in range(2)]
    stamp(a, 1)
    a("s_waitcnt vmcnt(@w1&x0)")
    if DBG == "p0": stamp(a, 21)
    a("s_barrier")
    a.ext(xreads(0) + wreads(0))
    side = {k: [] for k in range(32)}
    SH = 4 if P1MODE == 2 else 0
    if P1MODE == 2:
        real = a
        a = Asm(); side_loads(); L_ = a.lines
        grp = []
        for l in L_:
            if l.startswith("s_cselect"): grp[-1] += "\n" + l
            else: grp.append(l)
        h_ = (len(grp) + 2) // 3
        for k in range(3): side[3 + k] += grp[k * h_:(k + 1) * h_]
        a = Asm(); resets(); L_ = a.lines[8:]
        grp = []
        for l in L_:
            if l.startswith("s_cselect"): grp[-1] += "\n" + l
            else: grp.append(l)
        side[6] += grp
        a = real
    ss, sq, lo, hi = u[0], u[1], u[2], u[3]
    q = ["s_waitcnt vmcnt(@sw)", f"v_mov_b32 {ss}, 0", f"v_mov_b32 {sq}, 0"]
    q += [mf32(sacc, sw[0:4], ident, 0)] + [mf32(sacc, sw[4*i:4*i+4], ident) for i in range(1, 8)]
    for r in range(16):
        q += [f"v_lshlrev_b32 {lo}, 16, {sx[r]}", f"v_and_b32 {hi}, 0xffff0000, {sx[r]}", f"v_add_f32 {ss}, {ss}, {lo}", f"v_fmac_f32 {sq}, {lo}, {lo}",
              f"v_add_f32 {ss}, {ss}, {hi}", f"v_fmac_f32 {sq}, {hi}, {hi}"]
    for cb in range(4):
        q += [f"v_add_f32 {sacc[cb]}, {sacc[cb]}, {sacc[4+cb]}", f"v_add_f32 {sacc[8+cb]}, {sacc[8+cb]}, {sacc[12+cb]}"]
    for cb in range(4):
        q += [f"v_add_f32 {sacc[cb]}, {sacc[cb]}, {sacc[8+cb]}"]
    for cb in range(4):
        q += [f"v_mov_b32 {sacc[4+cb]}, {sacc[cb]}"]
    dpp = lambda x, m: f"v_add_f32_dpp {x}, {x}, {x} {m} row_mask:0xf bank_mask:0xf"
    q += [dpp(ss, "quad_perm:[1,0,3,2]"), dpp(sq, "quad_perm:[1,0,3,2]")]
    q += [f"v_permlane32_swap_b32 {sacc[cb]}, {sacc[4+cb]}" for cb in range(2)]
    q += [dpp(ss, "quad_perm:[2,3,0,1]"), dpp(sq, "quad_perm:[2,3,0,1]")]
    q += [f"v_permlane32_swap_b32 {sacc[cb]}, {sacc[4+cb]}" for cb in range(2, 4)]
    q += [dpp(ss, "row_half_mirror"), dpp(sq, "row_half_mirror")]
    q += [f"v_add_f32 {sacc[cb]}, {sacc[cb]}, {sacc[4+cb]}" for cb in range(2)]
    q += [dpp(ss, "row_mirror"), dpp(sq, "row_mirror")]
    q += [f"v_add_f32 {sacc[cb]}, {sacc[cb]}, {sacc[4+cb]}" for cb in range(2, 4)]
    q += [f"v_mov_b32 {lo}, {ss}", f"v_mov_b32 {hi}, {sq}", f"s_lshl_b32 s28, {S_W}, 8", f"s_add_u32 s28, s28, {TAB}", f"v_lshl_add_u32 {t0}, {t16}, 4, s28", f"v_and_b32 {t1}, 16, {lane}", f"v_lshl_add_u32 {t0}, {t1}, 6, {t0}"]
    q += [f"v_permlane16_swap_b32 {ss}, {lo}", f"v_permlane16_swap_b32 {sq}, {hi}",
          f"ds_write_b128 {t0}, {sacc[0:4]}"]
    q += [f"v_add_f32 {ss}, {ss}, {lo}", f"v_add_f32 {sq}, {sq}, {hi}", f"v_mul_f32 {ss}, {f32(-1/1024)}, {ss}", f"v_mul_f32 {sq}, {f32(1/1024)}, {sq}",
          f"v_fma_f32 {sq}, -{ss}, {ss}, {sq}", f"v_max_f32 {sq}, 0, {sq}", f"v_add_f32 {sq}, {f32(EPS)}, {sq}", f"v_rsq_f32 {sq}, {sq}",
          f"v_lshlrev_b32 {t0}, 2, {hh}", f"s_lshl_b32 s28, s42, 2", f"s_add_u32 s28, s28, {RA}",
          f"buffer_store_dword {sq}, {t0}, {WS}, s28 offen {SC}", f"s_add_u32 s28, s28, 8192", f"buffer_store_dword {ss}, {t0}, {WS}, s28 offen {SC}"]
    s0 = {0: 3, 1: 0, 2: 7}[P1MODE]; s1 = 9 + SH
    per = -(-len(q) // (s1 - s0))
    for k in range(s1 - s0):
        side[s0 + k] += q[k * per:(k + 1) * per]
    q = [f"v_lshlrev_b32 {t0}, 4, {t16}", f"v_lshl_add_u32 {t0}, {g4}, 2, {t0}", f"v_add_u32 {t0}, {TAB}, {t0}"]
    q += [f"ds_read_b32 {u[4+k]}, {t0} offset:{256*k}" for k in range(4)]
    q += [f"s_and_b32 s28, {MI}, 3", f"s_mul_i32 s28, s28, {3072*4}", "s_lshl_b32 s29, s43, 12", "s_add_u32 s28, s28, s29", f"s_lshl_b32 s29, s63, 8",
          "s_add_u32 s28, s28, s29", f"s_add_u32 s28, s28, {CQ}", f"s_lshl_b32 s29, {S_W}, 2", "s_or_b32 s29, s29, s43", f"s_cmp_lt_u32 s29, 3\ns_cselect_b32 s28, s28, {OOB}",
          f"v_lshlrev_b32 {t0}, 2, {lane}", "s_waitcnt lgkmcnt(0)",
          f"v_add_f32 {u[4]}, {u[4]}, {u[5]}", f"v_add_f32 {u[6]}, {u[6]}, {u[7]}", f"v_add_f32 {u[4]}, {u[4]}, {u[6]}",
          f"buffer_store_dword {u[4]}, {t0}, {WS}, s28 offen {SC} ;@sdone"]
    side[9 + SH] += q
    RS = 1 if P1MODE != 2 else 9
    side[RS] = [f"v_mov_b32 {t2}, 1", f"v_mov_b32 {t3}, 0", f"s_or_b32 s28, {S_WG}, {S_W}", f"s_cmp_eq_u32 s28, 0\ns_cselect_b32 s28, 0, {OOB}",
                f"buffer_store_dword {t2}, {t3}, {SCc}, s28 offen {SC}"] + side[RS]
    side[8 + SH] = [f"v_mov_b32 {t3}, 0", f"v_mov_b32 {dbg}, 1", f"s_cmp_lg_u32 {S_W}, 0\ns_cbranch_scc1 L_p1_nd\nbuffer_load_dword {dbg}, {t3}, {SCc}, 0 offen {SC} ;@skip\nL_p1_nd:"] + side[8 + SH]
    side[10 + SH] += ["s_waitcnt vmcnt(@sdone)", lazy_check("p1d", dbg, t3, SCc, [])]
    side[11 + SH] += [f"v_mov_b32 {t0}, 1", f"v_mov_b32 {t1}, 0", f"s_lshl_b32 s28, {MI}, 7", f"s_lshl_b32 s29, {NJ}, 2", "s_add_u32 s28, s28, s29", f"s_add_u32 s28, s28, {FSM}",
                 f"s_cmp_eq_u32 {S_W}, 0\ns_cselect_b32 s28, s28, {OOB}", f"buffer_store_dword {t0}, {t1}, {WS}, s28 offen {SC}",
                 f"s_lshl_b32 s28, {NJ}, 7", f"s_lshl_b32 s29, {MI}, 2", "s_add_u32 s28, s28, s29", f"s_add_u32 s28, s28, {FSN}",
                 f"s_cmp_eq_u32 {S_W}, 0\ns_cselect_b32 s28, s28, {OOB}", f"buffer_store_dword {t0}, {t1}, {WS}, s28 offen {SC}"]
    if CODEPF:
        t = Asm(); codepf(t, "L_P2", "L_P4", cv[0])
        side[20] += ["\n".join(t.lines[:2])] + t.lines[2:]
    side[16] += [f"s_lshl_b32 s28, {S_WG}, 14", f"s_lshl_b32 s29, {S_W}, 12", "s_add_u32 s28, s28, s29", f"s_add_u32 s28, s28, {XP}"]
    for i in range(4):
        side[16 + i] += [f"buffer_store_dwordx4 {cq[4:8]}, {vl}, {WS}, s28 offen offset:{1024*i} {SC}"]
    if WOT:
        side[21] += [f"s_mov_b32 s20, s{P_WO}", f"s_mov_b32 s21, s{P_WO+1}", f"s_mov_b32 s22, {1024*2048}", f"s_lshl_b32 s28, {S_WG}, 2", f"s_add_u32 s28, s28, {S_W}", "s_lshl_b32 s28, s28, 11",
                     f"v_lshlrev_b32 {t0}, 7, {t16}", f"buffer_load_dword {cv[1]}, {t0}, {SCc}, s28 offen"]
    if PF1:
        pfv = cq[10]
        side[0] = [f"v_min_u32 {pfv}, 2, {lane}", f"v_lshlrev_b32 {pfv}, 11, {pfv}", f"s_lshl_b32 s28, {S_IDX}, 2", f"s_add_u32 s28, s28, {S_W}", "s_mul_i32 s28, s28, 6144",
                   f"s_or_b32 s29, {NJ}, 3", "s_lshl_b32 s27, s29, 7", "s_add_u32 s28, s28, s27", f"s_add_u32 s28, s28, {PF1*64*6144}", "s_and_b32 s29, s29, 7",
                   f"s_cmp_eq_u32 s29, 3\ns_cselect_b32 s49, s28, {OOB}"] + side[0]
        for j in range((16 - PF1) // 2):
            side[1 + 4 * j if j else 1] += [f"buffer_load_dword {cq[11 + j % 2]}, {pfv}, {SB}, s49 offen", f"s_add_u32 s49, s49, {128*6144}"]
    side[22] += [f"s_lshl_b32 s28, {MI}, 7", f"s_add_u32 s28, s28, {FSM}", f"s_lshl_b32 s29, {NJ}, 7", f"s_add_u32 s29, s29, {FSN}", f"v_and_b32 {t2}, 1, {g4}",
                 f"v_mov_b32 {t3}, s28", f"v_mov_b32 {dbg}, s29", f"v_cmp_eq_u32 vcc, 0, {t2}\ns_nop 1\nv_cndmask_b32 {t3}, {dbg}, {t3}, vcc", f"v_lshl_add_u32 {t3}, {t16}, 2, {t3}",
                 f"v_mov_b32 {dbg}, 1", f"s_cmp_lg_u32 {S_W}, 0\ns_cbranch_scc1 L_p1_nf\nbuffer_load_dword {dbg}, {t3}, {WS}, 0 offen {SC} ;@skip\nL_p1_nf:"]
    side[24] += ["s_waitcnt vmcnt(@w29)", lazy_check("p1f", dbg, t3, WS, [])]
    la, lb = u[0:4], u[4:8]
    q = [f"v_and_b32 {t0}, 127, v0", f"v_lshlrev_b32 {t0}, 2, {t0}", f"v_lshrrev_b32 {t1}, 7, v0", f"v_lshl_add_u32 {t0}, {t1}, 13, {t0}", f"s_lshl_b32 s28, {MI}, 9", f"s_add_u32 s28, s28, {RA}",
         f"buffer_load_dword {cq[0]}, {t0}, {WS}, s28 offen {SC}",
         f"v_lshlrev_b32 {t0}, 2, {lane}", f"s_min_u32 s29, {S_W}, 2", f"s_mul_i32 s28, s29, {ROT}", f"s_add_u32 s28, s28, {NJ}", "s_and_b32 s28, s28, 3", "s_or_b32 s28, s28, s30", "s_lshl_b32 s28, s28, 8", "s_lshl_b32 s29, s29, 12", "s_add_u32 s28, s28, s29", f"s_add_u32 s28, s28, {CQ}"]
    for k in range(4):
        q += [f"buffer_load_dword {cq[1+k]}, {t0}, {WS}, s28 offen {SC} ;@cons", f"s_add_u32 s28, s28, {3072*4}"]
    side[25] += q
    side[28] += ["s_waitcnt vmcnt(@cons)", f"v_add_f32 {cq[1]}, {cq[1]}, {cq[2]}", f"v_add_f32 {cq[3]}, {cq[3]}, {cq[4]}", f"v_lshlrev_b32 {t0}, 2, v0", f"v_add_u32 {t0}, {TAB}, {t0}",
                 f"v_add_f32 {cq[1]}, {cq[1]}, {cq[3]}", f"ds_write_b32 {t0}, {cq[0]}", f"ds_write_b32 {t0}, {cq[1]} offset:1024"]
    q = [f"s_lshl_b32 s28, {WM}, 8", f"s_add_u32 s28, s28, {TAB}", f"v_lshl_add_u32 {t0}, {t16}, 2, s28", f"v_lshl_add_u32 {t1}, {g4}, 4, s28",
         f"s_lshl_b32 s28, {WN}, 7", f"s_add_u32 s28, s28, {TAB + 1024}", f"v_lshl_add_u32 {t2}, {t16}, 2, s28", f"v_lshl_add_u32 {t3}, {g4}, 4, s28"]
    side[30] += q
    q = []
    for k in range(4):
        q += [f"ds_read_b128 {cq[4*k:4*k+4]}, {t3} offset:{(k//2)*256 + (k%2)*64}"]
    for mt in range(4):
        q += [f"ds_read_b32 {la[mt]}, {t0} offset:{64*mt}", f"ds_read_b32 {lb[mt]}, {t0} offset:{512 + 64*mt}"]
    for mt in range(4):
        q += [f"ds_read_b128 {sx[4*mt:4*mt+4]}, {t1} offset:{64*mt}", f"ds_read_b128 {sacc[4*mt:4*mt+4]}, {t1} offset:{512 + 64*mt}"]
    q += [f"ds_read_b32 {cv[0]}, {t2} offset:512", f"ds_read_b32 {cv[1]}, {t2} offset:576"]
    side[31] += q
    for sig in range(32):
        i, s = divmod(sig, 2)
        if sig % 8 == 0:
            a.it("p1")
        if DBG == "p0" and sig < 8:
            stamp(a, 22 + sig)
        if sig % 2 == 0 and DBG == "p1":
            stamp(a, 16 + sig // 2)
        cur = sig % 2
        if s == 1 and i < 15:
            extra = "&rst" if sig == RS else ""
            a(f"s_waitcnt vmcnt(@w{2*i+3}&x{i+1}{extra}) lgkmcnt(0)\ns_barrier")
        else:
            a("s_waitcnt lgkmcnt(0)")
        m = []
        for sg in range(3):
            for dt in range(2):
                for mt in range(4):
                    c = 0 if sig == 0 else None
                    if sg < 2:
                        m.append(mf16(acc[mt][sg][dt], Wf[cur][sg][dt], Xf[cur][mt], c))
                    else:
                        m.append(mf16(acc[mt][sg][dt], Xf[cur][mt], Wf[cur][sg][dt], c))
        fl = xreads(sig + 1) + wreads(sig + 1) if sig < 31 else []
        a.ext(sched(m, fl, dmas(sig) + side[sig]))
        if sig % 8 == 7:
            a.endit()
    stamp(a, 2)
    a("s_waitcnt lgkmcnt(0)")
    CQS = (32 ** -0.5) * math.log2(math.e)
    a(f"s_lshl_b32 s28, {WN}, 17\ns_lshl_b32 s29, {MI}, 13\ns_add_u32 s28, s28, s29\ns_lshl_b32 s29, {WM}, 12\ns_add_u32 s46, s28, s29")
    a(f"v_lshlrev_b32 {t0}, 9, {g4}\nv_lshl_add_u32 {t0}, {t16}, 4, {t0}")
    a(f"v_and_b32 {t1}, 1, {g4}\nv_lshlrev_b32 {t1}, 9, {t1}\nv_lshl_add_u32 {t1}, {hh}, 8, {t1}\nv_lshl_add_u32 {t1}, {t16}, 4, {t1}")
    laq = R("v", vxd.b, 4)
    for mt in range(4):
        a(f"v_mul_f32 {laq[mt]}, {f32(CQS)}, {la[mt]}")
    def sel(r):
        base = r.b & ~1
        return R("v", base, 2), r.b & 1
    def qk(sg):
        if sg == 1:
            a(f"s_lshl_b32 s28, s{60+sg}, 18\ns_add_u32 s28, s28, s46\ns_add_u32 s28, s28, {sg*4*MB}")
        else:
            a(f"s_lshl_b32 s28, {WN}, 13\ns_lshl_b32 s29, {WM}, 12\ns_add_u32 s28, s28, s29\ns_add_u32 s28, s28, {QL}\nv_add_u32 {t0}, s28, {t0}")
        for mt in range(4):
            bp, bo = sel(lb[mt]); ap, ao = sel(laq[mt] if sg == 0 else la[mt])
            A = [acc[mt][sg][0], acc[mt][sg][1]]
            for dt in range(2):
                for p in range(2):
                    a(f"v_pk_fma_f32 {A[dt][2*p:2*p+2]}, {cq[8*sg+4*dt+2*p:8*sg+4*dt+2*p+2]}, {bp}, {A[dt][2*p:2*p+2]} op_sel:[0,{bo},0] op_sel_hi:[1,{bo},1]")
            for dt in range(2):
                for p in range(2):
                    a(f"v_pk_mul_f32 {A[dt][2*p:2*p+2]}, {A[dt][2*p:2*p+2]}, {ap} op_sel:[0,{ao}] op_sel_hi:[1,{ao}]")
            a(f"v_cvt_pk_bf16_f32 {A[0][0]}, {A[0][0]}, {A[0][1]}\nv_cvt_pk_bf16_f32 {A[0][1]}, {A[0][2]}, {A[0][3]}")
            a(f"v_cvt_pk_bf16_f32 {A[0][2]}, {A[1][0]}, {A[1][1]}\nv_cvt_pk_bf16_f32 {A[0][3]}, {A[1][2]}, {A[1][3]}")
            if sg == 1:
                a(f"buffer_store_dwordx4 {A[0]}, {t0}, {WS}, s28 offen offset:{(mt>>1)*2048 + (mt&1)*256} {SC}")
            else:
                a(f"ds_write_b128 {t0}, {A[0]} offset:{(mt>>1)*2048 + (mt&1)*256}")
                if DUMPQ:
                    a(f"s_lshl_b32 s28, s60, 18\ns_add_u32 s28, s28, s46\nv_lshlrev_b32 {t2}, 9, {g4}\nv_lshl_add_u32 {t2}, {t16}, 4, {t2}")
                    a(f"buffer_store_dwordx4 {A[0]}, {t2}, {WS}, s28 offen offset:{(mt>>1)*2048 + (mt&1)*256} {SC}")
    qk(1)
    a(f"s_lshl_b32 s28, s62, 18\ns_add_u32 s28, s28, s46\ns_add_u32 s28, s28, {8*MB}")
    a(f"s_lshl_b32 s47, {NJ}, 7\ns_lshl_b32 s29, {MI}, 2\ns_add_u32 s47, s47, s29\ns_add_u32 s47, s47, {F1}")
    for mt in range(4):
        A = [acc[mt][2][0], acc[mt][2][1]]
        for dt in range(2):
            for p in range(2):
                a(f"v_pk_fma_f32 {A[dt][2*p:2*p+2]}, {sacc[4*mt+2*p:4*mt+2*p+2]}, {cv}, {A[dt][2*p:2*p+2]} op_sel:[0,{dt},0] op_sel_hi:[1,{dt},1]")
        for dt in range(2):
            for p in range(2):
                a(f"v_pk_mul_f32 {A[dt][2*p:2*p+2]}, {A[dt][2*p:2*p+2]}, {sx[4*mt+2*p:4*mt+2*p+2]}")
        a(f"v_cvt_pk_bf16_f32 {A[0][0]}, {A[0][0]}, {A[0][1]}\nv_cvt_pk_bf16_f32 {A[0][1]}, {A[0][2]}, {A[0][3]}")
        a(f"v_cvt_pk_bf16_f32 {A[0][2]}, {A[1][0]}, {A[1][1]}\nv_cvt_pk_bf16_f32 {A[0][3]}, {A[1][2]}, {A[1][3]}\ns_nop 1")
        a(f"v_permlane32_swap_b32 {A[0][0]}, {A[0][2]}\nv_permlane32_swap_b32 {A[0][1]}, {A[0][3]}")
        a(f"buffer_store_dwordx4 {A[0]}, {t1}, {WS}, s28 offen offset:{mt*1024} {SC} ;@p1st")
    qk(0)
    a("s_waitcnt lgkmcnt(0)")

EXO = 131072
EXL = 122880
def w64_dma_voff(a, vw, t0, t1, nj):
    a(f"v_lshrrev_b32 {t0}, 3, {lane}\nv_and_b32 {t1}, 6, {t0}\ns_lshl_b32 s29, {S_W}, 4\nv_add_u32 {t0}, s29, {t0}\nv_lshlrev_b32 {t0}, 11, {t0}")
    a(f"v_and_b32 {vw[0]}, 7, {lane}\nv_xor_b32 {t1}, {t1}, {vw[0]}\nv_lshl_add_u32 {t0}, {t1}, 4, {t0}")
    a(f"s_lshl_b32 s29, {nj}, 7\nv_add_u32 {vw[0]}, s29, {t0}\nv_add_u32 {vw[1]}, {8*2048-1024}, {vw[0]}")
def mn35(a, MI, NJ):
    a(f"s_and_b32 {MI}, {S_XCD}, 3\ns_lshl_b32 {MI}, {MI}, 2\ns_and_b32 s29, {S_IDX}, 3\ns_add_u32 {MI}, {MI}, s29")
    a(f"s_lshr_b32 {NJ}, {S_XCD}, 2\ns_lshl_b32 {NJ}, {NJ}, 3\ns_lshr_b32 s29, {S_IDX}, 2")
    if SWAP37:
        a(f"s_and_b32 s28, s29, 3\ns_cmp_eq_u32 s28, 3\ns_cselect_b32 s28, 4, 0\ns_xor_b32 s29, s29, s28")
    a(f"s_add_u32 {NJ}, {NJ}, s29")
MI3, NJ3 = "s50", "s51"
VW3 = R("v", 250, 2)

def phase2(a):
    va = Alloc("v", V0, 250); aa = Alloc("a", 0, 256)
    vl2 = va(); vcs = va()
    t0, t1, t2, t3 = va(), va(), va(), va()
    As = va(4, 4)
    O = [va(16, 4) for sl in range(4)]
    L = [va(4, 4) for sl in range(4)]
    S = [va(16, 4) for b in range(2)]
    P = va(8, 4)
    cacc = va(16, 4)
    Q = [[aa(4, 4) for m in range(2)] for sl in range(4)]
    NB = 8
    cw = [aa(4, 4) for k in range(4)]
    Kf = [[aa(4, 4) for m in range(2)] for b in range(NB)]
    ident = aa(4, 4); assert ident.b == 112
    Vf = [[aa(4, 4) for m in range(2)] for b in range(NB)]
    vk = [vl, va(), va(), va()]
    MI, NJ, HD, KH = "s32", "s33", "s34", "s35"
    sK, sV, sKe, sVe, sHB, sQT, sSX, sWo, sMo, sCS = "s36", "s37", "s38", "s39", "s40", "s41", "s42", "s43", "s44", "s45"
    a(f"s_and_b32 s31, {S_W}, 1\ns_lshl_b32 {HD}, {NJ}, 1\ns_add_u32 {HD}, {HD}, s31\ns_lshr_b32 {KH}, {S_W}, 1")
    a(f"s_lshl_b32 {sHB}, {HD}, 17\ns_lshl_b32 {sQT}, {MI}, 2")
    a(f"s_lshl_b32 s28, {KH}, 16\ns_add_u32 s28, s28, {sHB}\ns_add_u32 {sK}, s28, {KF}\ns_add_u32 {sV}, s28, {VF}")
    a(f"s_add_u32 {sKe}, {sK}, 65536\ns_add_u32 {sVe}, {sV}, 65536\ns_xor_b32 {sSX}, {KH}, 1\ns_lshl_b32 {sSX}, {sSX}, 1")
    pa = S[0][0]
    a(f"v_and_b32 {pa}, 1, {g4}\nv_add_u32 {pa}, 1, {pa}\nv_mul_u32_u24 {pa}, {ROT}, {pa}\nv_sub_u32 {pa}, {NJ}, {pa}\nv_and_b32 {pa}, 3, {pa}\ns_and_b32 s28, {NJ}, 12\nv_or_b32 {pa}, s28, {pa}")
    a(f"v_lshlrev_b32 {pa}, 7, {pa}\nv_lshl_add_u32 {pa}, {t16}, 2, {pa}\nv_add_u32 {pa}, {F1}, {pa}")
    publish(a, ["s47"], "p1st", S[1][0:2])
    stamp(a, 3)
    a(f"s_lshl_b32 s28, s31, 13\ns_add_u32 s28, s28, {QL}\ns_lshl_b32 s29, {sSX}, 11\ns_add_u32 s30, s28, s29\nv_add_u32 {t0}, s30, {vl}\nv_xor_b32 {t1}, 4096, {t0}")
    for sl in range(4):
        for m in range(2):
            a(f"ds_read_b128 {Q[sl][m]}, {t0 if sl < 2 else t1} offset:{(sl%2)*2048 + 1024*m}")
    for k in range(1, 4):
        a(f"v_add_u32 {vk[k]}, {4096*k}, {vl}")
    a(f"v_lshrrev_b32 {t1}, 2, {lane}\nv_xor_b32 {t0}, {g4}, {t1}\nv_and_b32 {t0}, 1, {t0}")
    a(f"v_cmp_eq_u32 vcc, 0, {t0}\nv_mov_b32 {t1}, 0x3f803f80\ns_nop 0\nv_cndmask_b32 {As[0]}, 0, {t1}, vcc")
    a(f"v_mov_b32 {As[1]}, {As[0]}\nv_mov_b32 {As[2]}, {As[0]}\nv_mov_b32 {As[3]}, {As[0]}")
    for sl in range(4):
        for r in range(16):
            a(f"v_mov_b32 {O[sl][r]}, 0")
        for r in range(4):
            a(f"v_mov_b32 {L[sl][r]}, 0")
    for r in range(8):
        a(f"v_mov_b32 {P[r]}, 0")
    for r in range(4):
        a(f"v_accvgpr_write_b32 {Vf[NB-1][1][r]}, 0")
        for k in range(4):
            a(f"v_accvgpr_write_b32 {cw[k][r]}, 0")
    for r in range(16):
        a(f"v_mov_b32 {cacc[r]}, 0")
    mn35(a, MI3, NJ3)
    w64_dma_voff(a, VW3, t0, t1, NJ3)
    srd(a, 12, P_WO, 0 if 'wo' in EXP else 1024 * 2048)
    a(f"s_cmp_ge_u32 {S_WG}, 112\ns_cselect_b32 s16, s{P_WU}, s{P_WG}\ns_cselect_b32 s17, s{P_WU+1}, s{P_WG+1}\ns_cselect_b32 s29, 112, 0\ns_cselect_b32 s62, {3584*4}, 0")
    a(f"s_mov_b32 s18, {1024*7168}\ns_mov_b32 s19, 0x20000\ns_sub_u32 s28, {S_WG}, s29\ns_mul_i32 s60, s28, 147\ns_lshr_b32 s60, s60, 10\ns_mul_i32 s29, s60, 7\ns_sub_u32 s61, s28, s29")
    a(f"s_lshl_b32 s28, s60, 2\ns_add_u32 s28, s28, {S_W}\ns_mul_i32 s28, s28, {16*7168}\ns_lshl_b32 s29, s61, 10\ns_add_u32 {sCS}, s28, s29")
    a(f"s_cmp_ge_u32 {S_WG}, 224\ns_cselect_b32 {sCS}, {OOB}, {sCS}")
    a(f"s_lshl_b32 s28, {S_WG}, 2\ns_add_u32 s28, s28, {S_W}\ns_lshl_b32 s63, s28, 11\nv_lshlrev_b32 {vcs}, 7, {t16}")
    a(f"s_mov_b32 {sWo}, 0\ns_lshl_b32 {sMo}, {S_W}, 11\ns_mov_b32 s48, {OOB}")
    srd(a, 20, P_WD, 0 if 'wd' in EXP else 3584 * 2048)
    a(f"s_lshl_b32 s28, {S_WG}, 2\ns_add_u32 s28, s28, {S_W}\ns_mul_i32 s47, s28, {56*128}\nv_min_u32 {t2}, 13, {lane}\nv_lshlrev_b32 {t2}, 7, {t2}")
    a("s_waitcnt lgkmcnt(0)")
    poll(a, "p2", pa, S[1][0])
    stamp(a, 4)
    def kload(kt):
        k = kt % NB
        return [f"buffer_load_dwordx4 {Kf[k][m]}, {vk[k//2]}, {WS}, {sK} offen offset:{(k%2)*2048 + 1024*m} {SC} ;@k{kt}" for m in range(2)]
    def vload(kt):
        k = kt % NB
        return [f"buffer_load_dwordx4 {Vf[k][m]}, {vk[k//2]}, {WS}, {sV} offen offset:{(k%2)*2048 + 1024*m} {SC} ;@v{kt}" for m in range(2)]
    kbump = [f"s_add_u32 {sK}, {sK}, 16384", f"s_cmp_ge_u32 {sK}, {sKe}\ns_cselect_b32 {sK}, {OOB}, {sK}"]
    vbump = [f"s_add_u32 {sV}, {sV}, 16384", f"s_cmp_ge_u32 {sV}, {sVe}\ns_cselect_b32 {sV}, {OOB}, {sV}"]
    a.ext(kload(0))
    for kt in range(2):
        a.ext(vload(kt) + kload(kt + 1))
    catch = []
    for kt in range(2, NB - 1):
        catch += vload(kt) + kload(kt + 1)
    catch += vload(NB - 1)
    a("s_waitcnt vmcnt(@k0)")
    a(mf32(S[0], Kf[0][0], Q[0][0], 0))
    a(mf32(S[0], Kf[0][1], Q[0][1]))
    a("s_waitcnt vmcnt(@v0)\ns_nop 7\ns_nop 3")
    def unit(u):
        kt, sl = divmod(u, 4)
        b = u % 2
        kn, sn = divmod(u + 1, 4)
        kp, sp = divmod(u - 1, 4)
        Sb = S[b]
        x = {}
        k8 = kt % NB
        if sl == 3:
            ld = kload(kt + NB); x[0] = [ld[0]]; x[8] = [ld[1]]
            if k8 == NB - 1: x[12] = kbump
        if sl == 1 and u != 1:
            ld = vload(kt + NB - 1); x[0] = [ld[0]]; x[8] = [ld[1]]
            if k8 == 0: x[12] = vbump
        if kt >= NB and sl == 2 and k8 in (0, 2, 4, 6, 7):
            x[0] = [f"s_mov_b32 m0, {sMo}", f"s_add_u32 {sMo}, {sMo}, 8192"]
            x[4] = [f"buffer_load_dwordx4 {VW3[0]}, {SA}, {sWo} offen lds ;@wo"]
            x[8] = [f"buffer_load_dwordx4 {VW3[1]}, {SA}, {sWo} offen offset:1024 lds ;@wo"]
            x[12] = [f"s_add_u32 {sWo}, {sWo}, {64*2048}"]
        if kt < NB and sl == 2 and k8 in (0, 2, 4, 6, 7):
            x.setdefault(4, []).append(f"buffer_load_dword a{240 + k8}, {vl}, {WS}, s48 offen")
            x.setdefault(8, []).append(f"buffer_load_dword a{248 + k8}, {vl}, {WS}, s48 offen")
        if u == 6:
            x[0] = [f"buffer_load_dword {t3}, {vcs}, {SA}, s63 offen"]
        if sl == 0 and k8 % 2 == 1 and k8 < 7 or sl == 0 and k8 == 4:
            c = cw[{1: 0, 3: 1, 4: 2, 5: 3}[k8]]
            x[0] = [mf32(cacc, ident, c)]
            x[8] = [f"buffer_load_dwordx4 {c}, {vl}, {SB}, {sCS} offen", f"s_add_u32 {sCS}, {sCS}, 7168"]
        if u < 3:
            for p in (1, 3, 5, 7, 9, 11, 13, 14):
                if catch:
                    x.setdefault(p, []).append(catch.pop(0))
            if u == 2:
                assert not catch
                x.setdefault(15, []).extend(kbump + vbump)
        if sl == 0 and k8 == 2:
            x[0] = [f"buffer_load_dword {t1}, {t2}, {SCc}, s47 offen", f"s_add_u32 s47, s47, {14*128}"]
        e = [[f"v_exp_f32 {Sb[i]}, {Sb[i]}"] + x.get(i, []) for i in range(16)]
        c = [[f"v_cvt_pk_bf16_f32 {P[i]}, {Sb[2*i]}, {Sb[2*i+1]}"] for i in range(8)]
        seq = []
        if sl == 3:
            seq.append([f"s_waitcnt vmcnt(@k{kn}&v{kn})"])
        seq += [[mf32(S[1 - b], Kf[kn % NB][0], Q[sn][0], 0)], e[0], e[1], e[2], e[3],
                [mf32(S[1 - b], Kf[kn % NB][1], Q[sn][1])], e[4], e[5], e[6], c[0], c[1],
                [mf32(O[sp], Vf[kp % NB][1], P[4:8])], e[7], e[8], e[9], c[2], c[3],
                [mf16(L[sp], As, P[4:8])], e[10], e[11],
                [mf32(O[sl], Vf[kt % NB][0], P[0:4])], e[12], e[13], e[14], c[4], c[5],
                [mf16(L[sl], As, P[0:4])], e[15], c[6], c[7]]
        return [y for z in seq for y in z]
    for it in range(4):
        a.it("p2")
        for u in range(32 * it, 32 * it + 32):
            if DBG == "p2" and it == 0 and u % 2 == 0:
                stamp(a, 16 + u // 2)
            a.ext(unit(u))
        a.endit()
    a("s_waitcnt vmcnt(0)")
    a(mf32(O[3], Vf[NB-1][1], P[4:8]))
    a(mf16(L[3], As, P[4:8]))
    for k in range(4):
        a(mf32(cacc, ident, cw[k]))
    stamp(a, 5)
    a(f"s_lshl_b32 s28, {S_W}, 13\ns_add_u32 s28, s28, {EXO}\nv_add_u32 {t0}, s28, {vl}\ns_xor_b32 s46, s28, 0x4000\nv_add_u32 {t1}, s46, {vl}")
    a(f"s_lshl_b32 s28, {S_W}, 9\ns_add_u32 s28, s28, {EXL}\nv_lshlrev_b32 {t3}, 2, {lane}\nv_add_u32 {t3}, s28, {t3}\nv_xor_b32 {t2}, 0x400, {t3}")
    for sl in range(2):
        for j in range(4):
            a(f"ds_write_b128 {t0}, {O[sl][4*j:4*j+4]} offset:{sl*4096 + j*1024}")
        a(f"ds_write_b32 {t2}, {L[sl][0]} offset:{sl*256}")
    a(f"s_cmp_eq_u32 {S_W}, 0\ns_cbranch_scc1 L_p2_nocw\ns_lshl_b32 s28, {S_W}, 11\ns_add_u32 s28, s28, {EXL}\nv_add_u32 {t0}, s28, {vl}")
    a(f"ds_write_b128 {t0}, {cacc[0:4]}\nds_write_b128 {t0}, {cacc[4:8]} offset:1024")
    a.label("L_p2_nocw")
    if DBG == "e2": stamp(a, 16)
    a("s_waitcnt lgkmcnt(0)\ns_barrier")
    if DBG == "e2": stamp(a, 17)
    for sl in range(2):
        for j in range(4):
            a(f"ds_read_b128 {S[sl][4*j:4*j+4]}, {t1} offset:{sl*4096 + j*1024}")
        a(f"ds_read_b32 {L[sl][1]}, {t3} offset:{sl*256}")
    a(f"s_cmp_lg_u32 {S_W}, 0\ns_cbranch_scc1 L_p2_nocs\nv_add_u32 {t0}, {EXL + 2048}, {vl}")
    cb_ = [cacc[8:16], O[0][0:8], O[0][8:16]]
    for k in range(3):
        a(f"ds_read_b128 {cb_[k][0:4]}, {t0} offset:{2048*k}\nds_read_b128 {cb_[k][4:8]}, {t0} offset:{2048*k + 1024}")
    a(f"s_mul_i32 s28, s60, {7168*4}\ns_lshl_b32 s29, s61, 11\ns_add_u32 s28, s28, s29\ns_add_u32 s28, s28, s62\ns_add_u32 s28, s28, {CS}")
    a(f"s_cmp_ge_u32 {S_WG}, 224\ns_cselect_b32 s28, {OOB}, s28\nv_lshlrev_b32 {t0}, 5, {r32}\nv_lshl_add_u32 {t0}, {hh}, 4, {t0}\ns_waitcnt lgkmcnt(0)")
    for p in range(4):
        a(f"v_pk_add_f32 {cacc[2*p:2*p+2]}, {cacc[2*p:2*p+2]}, {cb_[0][2*p:2*p+2]}\nv_pk_add_f32 {cb_[1][2*p:2*p+2]}, {cb_[1][2*p:2*p+2]}, {cb_[2][2*p:2*p+2]}")
    for p in range(4):
        a(f"v_pk_add_f32 {cacc[2*p:2*p+2]}, {cacc[2*p:2*p+2]}, {cb_[1][2*p:2*p+2]}")
    a(f"buffer_store_dwordx4 {cacc[0:4]}, {t0}, {WS}, s28 offen {SC} ;@skip\nbuffer_store_dwordx4 {cacc[4:8]}, {t0}, {WS}, s28 offen offset:1024 {SC} ;@skip")
    a.label("L_p2_nocs")
    a("s_waitcnt lgkmcnt(0)")
    for sl in range(2):
        a(f"v_add_f32 {L[2+sl][0]}, {L[2+sl][0]}, {L[sl][1]}")
        for p in range(8):
            a(f"v_pk_add_f32 {O[2+sl][2*p:2*p+2]}, {O[2+sl][2*p:2*p+2]}, {S[sl][2*p:2*p+2]}")
    a(f"s_mov_b32 s28, {f32(2.0**-60)}\ns_mov_b32 s29, {f32(2.0**60)}")
    a(f"v_cmp_nge_f32 vcc, {L[2][0]}, s28\nv_cmp_nle_f32 s[52:53], {L[2][0]}, s29\nv_cmp_nge_f32 s[54:55], {L[3][0]}, s28\nv_cmp_nle_f32 s[56:57], {L[3][0]}, s29")
    a(f"v_lshrrev_b32 {t0}, 4, {r32}\nv_lshlrev_b32 {t0}, 15, {t0}\nv_lshl_add_u32 {t0}, {hh}, 8, {t0}\nv_lshl_add_u32 {vl2}, {t16}, 4, {t0}")
    a("s_or_b64 s[52:53], s[52:53], vcc\ns_or_b64 s[54:55], s[54:55], s[56:57]\ns_or_b64 s[52:53], s[52:53], s[54:55]")
    if FORCE_SLOW:
        a("s_cmp_eq_u32 s2, s2")
    a(f"s_cbranch_scc1 L_p2_slow")
    a.label("L_p2_fin")
    if DBG == "e2": stamp(a, 18)
    a(f"s_lshl_b32 s47, {MI}, 7\ns_lshl_b32 s29, {NJ}, 2\ns_add_u32 s47, s47, s29\ns_add_u32 s47, s47, {F2}\ns_lshl_b32 s48, {S_WG}, 2\ns_add_u32 s48, s48, {FC}")
    for sl in range(2, 4):
        a(f"v_rcp_f32 {L[sl][2]}, {L[sl][0]}")
        a(f"s_xor_b32 s28, {sSX}, {sl}\ns_add_u32 s28, s28, {sQT}\ns_lshl_b32 s28, s28, 16\ns_lshl_b32 s29, {HD}, 10\ns_add_u32 s28, s28, s29\ns_add_u32 s28, s28, {OF}")
        for p in range(8):
            a(f"v_pk_mul_f32 {O[sl][2*p:2*p+2]}, {O[sl][2*p:2*p+2]}, {L[sl][2:4]} op_sel_hi:[1,0]")
        for p in range(8):
            a(f"v_cvt_pk_bf16_f32 {O[sl][p]}, {O[sl][2*p]}, {O[sl][2*p+1]}")
        a(f"buffer_store_dwordx4 {O[sl][0:4]}, {vl2}, {WS}, s28 offen {SC}")
        a(f"buffer_store_dwordx4 {O[sl][4:8]}, {vl2}, {WS}, s28 offen offset:512 {SC} ;@p2st")
    if DBG == "e2":
        stamp(a, 19)
        a("s_waitcnt vmcnt(0)")
        stamp(a, 20)
    s = Asm()
    s.label("L_p2_slow")
    mx, mn, al, tt = t0, t1, t2, t3
    for sl in range(2, 4):
        s(f"v_mov_b32 {mx}, 0xff800000\nv_mov_b32 {L[sl][0]}, 0")
        for r in range(16):
            s(f"v_mov_b32 {O[sl][r]}, 0")
        s(f"s_add_u32 {sK}, {sHB}, {KF}\ns_add_u32 {sV}, {sHB}, {VF}\ns_mov_b32 s24, 64")
        s.label(f"L_p2_slow{sl}")
        s.lines.append(";LOOP")
        for m in range(2):
            s(f"buffer_load_dwordx4 {Kf[0][m]}, {vl}, {WS}, {sK} offen offset:{1024*m} {SC}")
            s(f"buffer_load_dwordx4 {Vf[0][m]}, {vl}, {WS}, {sV} offen offset:{1024*m} {SC}")
        s(f"s_add_u32 {sK}, {sK}, 2048\ns_add_u32 {sV}, {sV}, 2048\ns_waitcnt vmcnt(0)")
        s(mf32(S[0], Kf[0][0], Q[sl][0], 0))
        s(mf32(S[0], Kf[0][1], Q[sl][1]))
        s("s_nop 7\ns_nop 7")
        s(f"v_max_f32 {mn}, {S[0][0]}, {S[0][1]}")
        for p in range(1, 8):
            s(f"v_max3_f32 {mn}, {mn}, {S[0][2*p]}, {S[0][2*p+1]}")
        s(f"v_mov_b32 {tt}, {mn}\ns_nop 1\nv_permlane32_swap_b32 {mn}, {tt}\nv_max3_f32 {mn}, {mn}, {tt}, {mx}")
        s(f"v_sub_f32 {al}, {mx}, {mn}\nv_exp_f32 {al}, {al}\nv_mov_b32 {mx}, {mn}")
        for i in range(16):
            s(f"v_sub_f32 {S[0][i]}, {S[0][i]}, {mn}")
        for i in range(16):
            s(f"v_exp_f32 {S[0][i]}, {S[0][i]}")
        s(f"v_mul_f32 {L[sl][0]}, {L[sl][0]}, {al}")
        for i in range(16):
            s(f"v_mul_f32 {O[sl][i]}, {O[sl][i]}, {al}")
        for i in range(8):
            s(f"v_cvt_pk_bf16_f32 {P[i]}, {S[0][2*i]}, {S[0][2*i+1]}")
        for i in range(8):
            s(f"v_lshlrev_b32 {tt}, 16, {P[i]}\nv_add_f32 {L[sl][0]}, {L[sl][0]}, {tt}\nv_and_b32 {tt}, 0xffff0000, {P[i]}\nv_add_f32 {L[sl][0]}, {L[sl][0]}, {tt}")
        s(mf32(O[sl], Vf[0][0], P[0:4]))
        s(mf32(O[sl], Vf[0][1], P[4:8]))
        s("s_nop 7\ns_nop 7")
        s(f"s_sub_u32 s24, s24, 1\ns_cmp_lg_u32 s24, 0\ns_cbranch_scc1 L_p2_slow{sl}")
        s.lines.append(";ENDLOOP")
        s(f"v_mov_b32 {tt}, {L[sl][0]}\ns_nop 1\nv_permlane32_swap_b32 {L[sl][0]}, {tt}\nv_add_f32 {L[sl][0]}, {L[sl][0]}, {tt}")
    s("s_branch L_p2_fin")
    tails.append(s)
    return "s46"

def wa35(a, wa, t0, t1, base):
    a(f"v_lshrrev_b32 {t0}, 2, {lane}\nv_and_b32 {t0}, 3, {t0}\nv_and_b32 {t1}, 1, {g4}\nv_lshl_add_u32 {wa[1]}, {t1}, 2, {t0}\nv_lshl_add_u32 {wa[1]}, {hh}, 4, {wa[1]}")
    a(f"v_lshlrev_b32 {wa[1]}, 7, {wa[1]}\nv_lshrrev_b32 {t0}, 1, {t0}\nv_lshl_add_u32 {t0}, {t1}, 1, {t0}\nv_lshl_add_u32 {wa[1]}, {t0}, 5, {wa[1]}")
    a(f"v_and_b32 {t0}, 3, {lane}\nv_lshl_add_u32 {wa[0]}, {t0}, 3, {wa[1]}")
    if base:
        a(f"v_add_u32 {wa[0]}, {base}, {wa[0]}")
    for t in range(1, 4):
        a(f"v_xor_b32 {wa[t]}, {32*t}, {wa[0]}")
def rowmajor_voff(a, ve, vo, t0, t1, row0, nj):
    a(f"v_lshrrev_b32 {t0}, 3, {lane}\nv_add_u32 {t1}, {row0}, {t0}\nv_lshlrev_b32 {t1}, 11, {t1}\ns_lshl_b32 s29, {nj}, 7\nv_add_u32 {t1}, s29, {t1}")
    a(f"v_and_b32 {ve}, 7, {lane}\nv_xor_b32 {ve}, {ve}, {g4}\nv_xor_b32 {vo}, 4, {ve}\nv_lshl_add_u32 {ve}, {ve}, 4, {t1}\nv_lshl_add_u32 {vo}, {vo}, 4, {t1}")
def dlayout_addr(a, ad, t0, base):
    a(f"v_lshrrev_b32 {t0}, 1, {t16}\nv_xor_b32 {t0}, {t0}, {hh}\nv_lshlrev_b32 {t0}, 4, {t0}")
    a(f"v_and_b32 {ad}, 1, {g4}\nv_lshlrev_b32 {ad}, 3, {ad}\nv_lshl_add_u32 {ad}, {t16}, 7, {ad}\nv_add_u32 {ad}, {base}, {ad}")

MI4, FJ4 = "s52", "s53"
def phase3(a, sXR):
    va = Alloc("v", V0, 250)
    vx = va(2); wa = va(4)
    t0, t1, t2, t3 = va(), va(), va(), va()
    acc = [[va(4, 4) for t in range(4)] for mt in range(2)]
    Wf = [[va(4, 4) for t in range(4)] for b in range(2)]
    NB = 8
    Xf = [[va(4, 4) for mt in range(2)] for b in range(NB)]
    res = va(16, 4); tmp = va(16, 4); pk = va(16, 4)
    TT, sX, sXe = "s32", "s33", "s34"
    a(f"s_lshl_b32 {TT}, {MI3}, 3\ns_lshl_b32 s28, {S_W}, 1\ns_add_u32 {TT}, {TT}, s28\ns_lshl_b32 s30, {TT}, 4")
    srd(a, 16, P_X, 2048 * 2048)
    rowmajor_voff(a, t2, t3, t0, t1, "s30", NJ3)
    pa = res[0]
    a(f"s_and_b32 {MI4}, {S_IDX}, 7\ns_lshr_b32 s29, {S_IDX}, 3\ns_lshl_b32 {FJ4}, {S_XCD}, 2\ns_add_u32 {FJ4}, {FJ4}, s29")
    a(f"s_lshl_b32 s28, {MI3}, 7\ns_add_u32 s28, s28, {F2}\nv_lshlrev_b32 {pa}, 2, {t16}\nv_add_u32 {pa}, s28, {pa}")
    publish(a, ["s47", "s48"], "p2st", tmp[0:2])
    stamp(a, 6)
    codepf(a, "L_P3", "L_P5", tmp[2])
    a(f"s_lshl_b32 s28, {S_W}, 11\ns_add_u32 m0, s28, {EXL}\ns_mov_b32 s28, {15*64*2048}")
    a(f"buffer_load_dwordx4 {VW3[0]}, {SA}, s28 offen lds\nbuffer_load_dwordx4 {VW3[1]}, {SA}, s28 offen offset:1024 lds")
    a(f"s_mov_b32 m0, {sXR}")
    for i in range(4):
        a(f"s_mov_b32 s29, {i*15360}\nbuffer_load_dwordx4 {t2 if i%2==0 else t3}, {SB}, s29 offen offset:{i*1024} lds")
    wa35(a, wa, t0, t1, 0)
    a(f"s_lshl_b32 {sX}, {TT}, 15\ns_add_u32 {sX}, {sX}, {OF}\ns_add_u32 {sXe}, {sX}, 32768\nv_mov_b32 {vx[0]}, {vl}\nv_add_u32 {vx[1]}, 32768, {vl}")
    for mt in range(2):
        for t in range(4):
            for r in range(4):
                a(f"v_mov_b32 {acc[mt][t][r]}, 0")
    a.ext([f"ds_read_b64_tr_b16 {Wf[0][t][2*j:2*j+2]}, {wa[t]} offset:{1024*j} ;@r3_0_{t}" for t in range(4) for j in range(2)])
    poll(a, "p3", pa, tmp[0])
    stamp(a, 7)
    def xload(sig):
        o = []
        if sig % 4 == 0 and sig > 0:
            o += [f"s_add_u32 {sX}, {sX}, 4096", f"s_cmp_ge_u32 {sX}, {sXe}\ns_cselect_b32 {sX}, {OOB}, {sX}"]
        o += [f"buffer_load_dwordx4 {Xf[sig%NB][mt]}, {vx[mt]}, {WS}, {sX} offen offset:{(sig%4)*1024} {SC} ;@p3x{sig}" for mt in range(2)]
        return o
    def wreads(sig):
        return [f"ds_read_b64_tr_b16 {Wf[sig%2][t][2*j:2*j+2]}, {wa[t]} offset:{(sig%8)*4096 + 1024*j} ;@r3_{sig}_{t}" for t in range(4) for j in range(2)]
    for sig in range(7):
        a.ext(xload(sig))
    for sig in range(32):
        if sig % 8 == 0:
            a.it("p3")
        a(f"s_waitcnt vmcnt(@p3x{sig}) lgkmcnt(@r3_{sig}_1)")
        if sig % 8 == 4:
            a("s_barrier")
        m = [mf16(acc[mt][t], Wf[sig % 2][t], Xf[sig % NB][mt]) for t in range(4) for mt in range(2)]
        rd = wreads(sig + 1); xl = xload(sig + 7)
        light = [x for x in xl if not is_mem(x)]; mem = [x for x in xl if is_mem(x)]
        for g in range(8):
            if g == 4:
                a(f"s_waitcnt lgkmcnt(@r3_{sig}_3)")
            a(m[g])
            if sig % 8 == 7 and g % 2 == 0:
                a(f"v_add_u32 {wa[g//2]}, 0x8000, {wa[g//2]}")
            a(rd[g])
            if g == 1: a.ext(light)
            if g in (2, 6): a(mem.pop(0))
        if sig % 8 == 7:
            a.endit()
    stamp(a, 8)
    a("s_waitcnt vmcnt(0) lgkmcnt(0)")
    dlayout_addr(a, t1, t0, sXR)
    for t in range(4):
        a(f"v_xor_b32 {t2}, {32*t}, {t0}\nv_add_u32 {t2}, {t2}, {t1}")
        for mt in range(2):
            a(f"ds_read_b64 {res[8*mt+2*t:8*mt+2*t+2]}, {t2} offset:{2048*mt}")
    a(f"s_lshl_b32 s28, {TT}, 15\ns_lshl_b32 s29, {NJ3}, 11\ns_add_u32 s28, s28, s29\ns_add_u32 s28, s28, {HF}\ns_waitcnt lgkmcnt(0)")
    for mt in range(2):
        for k in range(8):
            a(f"v_lshlrev_b32 {tmp[2*k]}, 16, {res[8*mt+k]}\nv_and_b32 {tmp[2*k+1]}, 0xffff0000, {res[8*mt+k]}")
        for k in range(8):
            a(f"v_pk_add_f32 {tmp[2*k:2*k+2]}, {tmp[2*k:2*k+2]}, {acc[mt][k//2][2*(k%2):2*(k%2)+2]}")
        for k in range(8):
            a(f"v_cvt_pk_bf16_f32 {pk[8*mt+k]}, {tmp[2*k]}, {tmp[2*k+1]}")
        for p in range(2):
            a(f"buffer_store_dwordx4 {pk[8*mt+4*p:8*mt+4*p+4]}, {vx[mt]}, {WS}, s28 offen offset:{1024*p} {SC}")
    a(f"v_mov_b32 {t1}, 0x3f803f80")
    for k in range(4):
        a(f"v_mov_b32 {tmp[k]}, 0")
    for k in range(8):
        for mt in range(2):
            a(f"v_dot2c_f32_bf16 {tmp[2*mt]}, {pk[8*mt+k]}, {t1}\nv_dot2c_f32_bf16 {tmp[2*mt+1]}, {pk[8*mt+k]}, {pk[8*mt+k]}")
    a("s_nop 2")
    for sw_ in ("16", "32"):
        for k in range(4):
            a(f"v_mov_b32 {tmp[4+k]}, {tmp[k]}")
        a("s_nop 0")
        for k in range(4):
            a(f"v_permlane{sw_}_swap_b32 {tmp[k]}, {tmp[4+k]}")
        for k in range(4):
            a(f"v_add_f32 {tmp[k]}, {tmp[k]}, {tmp[4+k]}")
    a(f"v_and_b32 {t0}, 1, {g4}\nv_cmp_eq_u32 vcc, 1, {t0}\nv_lshlrev_b32 {t0}, 3, {r32}")
    a(f"s_lshl_b32 s28, {NJ3}, 14\ns_lshl_b32 s29, {TT}, 7\ns_add_u32 s28, s28, s29\ns_add_u32 s28, s28, {ST}")
    a(f"v_cndmask_b32 {tmp[0]}, {tmp[0]}, {tmp[2]}, vcc\nv_cndmask_b32 {tmp[1]}, {tmp[1]}, {tmp[3]}, vcc")
    a(f"buffer_store_dwordx2 {tmp[0:2]}, {t0}, {WS}, s28 offen {SC} ;@p3st")
    a(f"s_lshr_b32 s47, {MI3}, 1\ns_lshl_b32 s47, s47, 7\ns_and_b32 s29, {MI3}, 1\ns_lshl_b32 s29, s29, 6\ns_add_u32 s47, s47, s29\ns_lshl_b32 s29, {NJ3}, 2\ns_add_u32 s47, s47, s29\ns_add_u32 s47, s47, {F3}")

R5 = 32768
KA, KB = 24, 8
MI5, NB5 = "s54", "s55"
def lane_consts(a):
    a(f"v_and_b32 {lane}, 63, v0\nv_and_b32 {r32}, 31, v0\nv_lshlrev_b32 {vl}, 4, {lane}\nv_and_b32 {t16}, 15, {lane}\nv_lshrrev_b32 {g4}, 4, {lane}\nv_lshrrev_b32 {hh}, 5, {lane}")
VW5 = R("v", 1, 4)
s5W, s5M = "s40", "s41"
def w5a(j, rel=None):
    base, c = (s5M, ((j + 5) % 8) * 16384) if rel is None else rel
    o = [f"s_add_u32 m0, {base}, {c}", "s_nop 0" if False else f"s_add_u32 {s5W}, {s5W}, {64*2048}"]
    o += [f"buffer_load_dwordx4 {VW5x[i]}, {SB}, {s5W} offen offset:{1024*i} lds ;@p5w{j}" for i in range(4)]
    return o
VW5x = None
def phase4(a):
    global VW5x
    SLAB, GU, RING = 28672, 14336, 4
    CST = SLAB
    va = Alloc("v", V0, 256); aa = Alloc("a", 0, 256)
    vx = va(4); wa = va(); ca = va()
    mq = va(4, 2)
    acc = [[va(4, 4) for n in range(14)] for mt in range(4)]
    vw = [va() for i in range(7)]
    ct = R("v", 252, 4)
    assert va.cur <= 252, va.cur
    t0, t1, t2, t3 = ct[0], ct[1], ct[2], ct[3]
    VW5x = [mq[0], mq[1], mq[2], mq[3]]
    Wf = [[aa(4, 4) for n in range(14)] for b in range(2)]
    NB = 4
    Xf = [[aa(4, 4) for mt in range(4)] for b in range(NB)]
    stt = aa(16, 4)
    TT, sX, sW, sD, sWP, sM2, sR = "s32", "s33", "s35", "s36", "s37", "s38", "s39"
    a(f"s_and_b32 s29, {S_W}, 1\ns_mul_i32 s29, s29, 448\nv_add_u32 {t0}, s29, {lane}")
    a(f"s_mov_b32 s28, {(1<<32)//14 + 1}\ns_mul_i32 s30, {FJ4}, 224\ns_movk_i32 s31, {7168 - 14*16}")
    for i in range(7):
        a(f"v_add_u32 {t1}, {64*i}, {t0}\nv_mul_hi_u32 {t2}, {t1}, s28\nv_mul_lo_u32 {t2}, {t2}, s31\nv_lshl_add_u32 {t2}, {t1}, 4, {t2}")
        a(f"s_sub_u32 s29, s30, {1024*(i%4)}\nv_add_u32 {vw[i]}, s29, {t2}")
    a(f"s_cmp_lt_u32 {S_W}, 2\ns_cselect_b32 s12, s{P_WG}, s{P_WU}\ns_cselect_b32 s13, s{P_WG+1}, s{P_WU+1}\ns_mov_b32 s14, {1024*7168}\ns_mov_b32 s15, 0x20000")
    a(f"s_mul_i32 {sWP}, {S_W}, 7168\ns_mov_b32 {sW}, 0\ns_mov_b32 {sD}, 0\ns_mov_b32 {sR}, 0")
    def wdma(slab, part):
        if part == 0:
            o = [f"s_add_u32 m0, {sD}, {sWP}", f"s_add_u32 {sM2}, {sD}, {sWP}"]
            rng = range(0, 4)
        else:
            o = [f"s_add_u32 m0, {sM2}, 4096", f"s_add_u32 {sD}, {sD}, {SLAB}"]
            rng = range(4, 7)
        o += [f"buffer_load_dwordx4 {vw[i]}, {SA}, {sW} offen offset:{(i%4)*1024} lds ;@p4w{slab}" for i in rng]
        if part == 1:
            o += [f"s_cmp_ge_u32 {sD}, {RING*SLAB}\ns_cselect_b32 {sD}, 0, {sD}", f"s_add_u32 {sW}, {sW}, {64*7168}"]
        return o
    def dmas(sig):
        i, s = divmod(sig, 2)
        slab = i + 4 if s == 1 else i + 3
        return wdma(slab, 0 if s == 1 else 1) if 0 <= slab < 16 else []
    pa = acc[2][0][0]
    a(f"s_lshl_b32 s28, {MI4}, 7\ns_add_u32 s28, s28, {F3}\nv_lshlrev_b32 {pa}, 2, {r32}\nv_add_u32 {pa}, s28, {pa}")
    pb = acc[2][0][1]
    a(f"s_mul_i32 s28, {FJ4}, 112\ns_add_u32 s29, s28, 111\ns_lshr_b32 s28, s28, 9\ns_lshr_b32 s29, s29, 9\ns_sub_u32 s29, s29, s28")
    a(f"v_mul_u32_u24 {pb}, 7, {t16}\nv_and_b32 {t0}, 1, {g4}\nv_mul_u32_u24 {t0}, 112, {t0}\nv_mul_u32_u24 {t1}, s29, {hh}\nv_add3_u32 {pb}, {pb}, {t0}, {t1}\nv_add_u32 {pb}, s28, {pb}")
    a(f"v_lshlrev_b32 {pb}, 2, {pb}\nv_add_u32 {pb}, {FC}, {pb}")
    publish(a, ["s47"], "p3st", acc[2][1][0:2])
    stamp(a, 9)
    a.ext(wdma(0, 0) + wdma(0, 1) + wdma(1, 0) + wdma(1, 1) + wdma(2, 0) + wdma(2, 1))
    a(f"s_lshl_b32 {TT}, {MI4}, 4\ns_lshl_b32 s28, {S_W}, 2\ns_add_u32 {TT}, {TT}, s28")
    a(f"s_lshl_b32 {sX}, {TT}, 15\ns_add_u32 {sX}, {sX}, {HF}\nv_mov_b32 {vx[0]}, {vl}")
    for mt in range(1, 4):
        a(f"v_add_u32 {vx[mt]}, {32768*mt}, {vl}")
    a(f"v_lshrrev_b32 {t0}, 2, {lane}\nv_and_b32 {t0}, 3, {t0}\nv_lshl_add_u32 {t0}, {g4}, 2, {t0}\nv_mul_u32_u24 {t0}, 224, {t0}\nv_and_b32 {t1}, 3, {lane}\nv_lshl_add_u32 {wa}, {t1}, 3, {t0}")
    for mt in range(4):
        for n in range(14):
            if (mt, n) not in ((2, 0), (2, 1)):
                for e in range(4):
                    a(f"v_mov_b32 {acc[mt][n][e]}, 0")
    a("s_waitcnt vmcnt(@p4w0)")
    poll(a, "p4", [pa, pb], [acc[2][1][0], acc[2][1][1]])
    stamp(a, 10)
    def xload(sig):
        o = []
        if sig % 4 == 0 and sig > 0:
            o += [f"s_add_u32 {sX}, {sX}, 4096"]
        o += [f"buffer_load_dwordx4 {Xf[sig%NB][mt]}, {vx[mt]}, {WS}, {sX} offen offset:{(sig%4)*1024} {SC} ;@p4x{sig}" for mt in range(4)]
        return o
    def wreads(sig):
        s = sig % 2
        return [f"ds_read_b64_tr_b16 {Wf[sig%2][n][2*j:2*j+2]}, {wa} offset:{(32*s + 16*j)*224 + (n//7)*GU + 32*(n%7)}" for n in range(14) for j in range(2)]
    def wbump():
        return [f"s_add_u32 s44, {sR}, {SLAB}", f"s_cmp_ge_u32 s44, {RING*SLAB}\ns_cselect_b32 s44, 0, s44", f"s_sub_u32 s45, s44, {sR}",
                f"s_mov_b32 {sR}, s44", f"v_add_u32 {wa}, s45, {wa}"]
    a.ext(xload(0) + wdma(3, 0) + xload(1) + wdma(3, 1)[:0])
    a.ext(wreads(0))
    a.ext(xload(2))
    for n in range(2):
        for e in range(4):
            a(f"v_mov_b32 {acc[2][n][e]}, 0")
    side = {k: [] for k in range(32)}
    csp = aa(16, 4)
    side[24] = [f"v_lshrrev_b32 {t0}, 2, {lane}", f"v_min_u32 {t0}, 13, {t0}", f"v_lshlrev_b32 {t0}, 4, {t0}", f"v_and_b32 {t1}, 3, {lane}", f"v_mul_u32_u24 {t1}, {7168*4}, {t1}",
                f"v_add_u32 {ca}, {t0}, {t1}", f"s_mul_i32 s29, {S_W}, 224", f"s_add_u32 s29, s29, {CST}", f"v_add_u32 {t3}, s29, {t0}",
                f"s_and_b32 s29, {S_W}, 1", "s_mul_i32 s29, s29, 224", f"s_lshr_b32 s28, {S_W}, 1", f"s_mul_i32 s28, s28, {3584*4}", "s_add_u32 s28, s28, s29",
                f"s_mul_i32 s31, {FJ4}, 448", "s_add_u32 s31, s31, s28", f"s_add_u32 s31, s31, {CS}"]
    for k in range(4):
        side[25] += [f"buffer_load_dwordx4 {csp[4*k:4*k+4]}, {ca}, {WS}, s31 offen {SC} ;@p4cs", f"s_add_u32 s31, s31, {4*7168*4}"]
    q = ["s_waitcnt vmcnt(@p4cs)"] + [f"v_accvgpr_read_b32 {mq[e]}, {csp[e]}" for e in range(4)]
    for k in range(1, 4):
        for e in range(4):
            q += [f"v_accvgpr_read_b32 {t0 if e % 2 else t2}, {csp[4*k+e]}", f"v_add_f32 {mq[e]}, {mq[e]}, {t0 if e % 2 else t2}"]
    for m_ in ("quad_perm:[1,0,3,2]", "quad_perm:[2,3,0,1]"):
        q += [f"v_add_f32_dpp {mq[e]}, {mq[e]}, {mq[e]} {m_} row_mask:0xf bank_mask:0xf" for e in range(4)]
    assert mq.b % 2 == 0
    q += [f"ds_write_b128 {t3}, {mq}"]
    side[27] = q
    q = [f"v_lshlrev_b32 {t1}, 3, {t16}", f"v_lshl_add_u32 {t1}, {g4}, 16, {t1}", f"s_lshl_b32 s30, {TT}, 7", f"s_add_u32 s30, s30, {ST}"]
    for k in range(4):
        q += [f"buffer_load_dword {stt[4*mt+k]}, {t1}, {WS}, s30 offen offset:{128*mt} {SC} ;@p4st" for mt in range(4)] + ["s_add_u32 s30, s30, 16384"]
    side[26] = q[:14]; side[28] = q[14:]
    q = ["s_waitcnt vmcnt(@p4st)"]
    mq5 = mq; mq = vx
    for mt in range(4):
        q += [f"v_accvgpr_read_b32 {mq[mt]}, {stt[4*mt]}", f"v_accvgpr_read_b32 {t0}, {stt[4*mt+1]}", f"v_accvgpr_read_b32 {t1}, {stt[4*mt+2]}", f"v_accvgpr_read_b32 {t2}, {stt[4*mt+3]}",
              f"v_add_f32 {mq[mt]}, {mq[mt]}, {t0}", f"v_add_f32 {t1}, {t1}, {t2}", f"v_add_f32 {mq[mt]}, {mq[mt]}, {t1}"]
    for sw_ in ("16", "32"):
        q += [f"v_mov_b32 {ct[k]}, {mq[k]}" for k in range(4)] + ["s_nop 0"]
        q += [f"v_permlane{sw_}_swap_b32 {mq[k]}, {ct[k]}" for k in range(4)]
        q += [f"v_add_f32 {mq[k]}, {mq[k]}, {ct[k]}" for k in range(4)]
    q += [f"v_mul_f32 {mq[k]}, {f32(-1/1024)}, {mq[k]}" for k in range(4)]
    side[30] = q; mean = mq; mq = mq5
    q = [f"s_and_b32 s28, {S_XCD}, 2", "s_lshl_b32 s28, s28, 2", f"s_and_b32 s29, {S_IDX}, 7", f"s_add_u32 {MI5}, s28, s29",
         f"s_lshr_b32 s28, {S_XCD}, 2", "s_lshl_b32 s28, s28, 2", f"s_lshr_b32 s29, {S_IDX}, 3", f"s_add_u32 {NB5}, s28, s29",
         f"s_lshl_b32 s28, {S_W}, 4", f"v_add_u32 {t0}, s28, {g4}", f"v_lshlrev_b32 {t0}, 11, {t0}", f"s_lshl_b32 s28, {NB5}, 8", f"v_add_u32 {t0}, s28, {t0}",
         f"v_lshlrev_b32 {t1}, 1, {g4}", f"v_xor_b32 {t1}, {t1}, {t16}", f"v_xor_b32 {t2}, 8, {t1}",
         f"v_lshl_add_u32 {VW5x[0]}, {t1}, 4, {t0}", f"v_lshl_add_u32 {t2}, {t2}, 4, {t0}",
         f"v_add_u32 {VW5x[1]}, {4*2048-1024}, {t2}", f"v_add_u32 {VW5x[2]}, {2*(4*2048-1024)}, {VW5x[0]}", f"v_add_u32 {VW5x[3]}, {3*(4*2048-1024)}, {t2}",
         f"s_mov_b32 s16, s{P_WD}", f"s_mov_b32 s17, s{P_WD+1}", f"s_mov_b32 s18, {3584*2048}", "s_mov_b32 s19, 0x20000",
         f"s_and_b32 s28, {S_XCD}, 1", f"s_mul_i32 {s5W}, s28, {KA*64*2048}", f"s_sub_u32 {s5W}, {s5W}, {64*2048}", f"s_lshl_b32 {s5M}, {S_W}, 12", f"s_add_u32 {s5M}, {s5M}, {R5}"]
    side[28] = side[28] + q
    if CODEPF:
        t = Asm(); codepf(t, "L_P5", "L_end", ca)
        side[26] += ["\n".join(t.lines[:2])] + t.lines[2:]
    for k in range(3):
        side[29 + k] = w5a(k) + side[29 + k]
    for sig in range(32):
        i, s = divmod(sig, 2)
        if sig % 4 == 0:
            a.it("p4")
        if DBG == "p4" and (sig < 8 or sig >= 24):
            stamp(a, 16 + (sig if sig < 8 else sig - 16))
        a(f"s_waitcnt vmcnt(@p4x{sig}" + (f"&p4w{i+1}" if s == 1 and i < 15 else "") + ") lgkmcnt(0)")
        if s == 1 and i < 15:
            a("s_barrier")
        m = [mf16(acc[mt][n], Wf[sig % 2][n], Xf[sig % NB][mt]) for n in range(14) for mt in range(4)]
        rd = wreads(sig + 1) if sig < 31 else []
        ex = (xload(sig + 3) if sig + 3 < 32 else []) + dmas(sig) + side[sig]
        if False:
            pass
        elif s == 0:
            body = sched(m[:50], rd, ex, lds_end=48) + spread(m[50:], wbump())
        else:
            body = sched(m, rd, ex, lds_end=48)
        a.ext(body)
        if sig % 4 == 3:
            a.endit()
    stamp(a, 11)
    cbuf = [ct, R("v", vw[0].b, 4)]
    assert vw[0].b % 2 == 0
    so = wa
    a(f"v_lshlrev_b32 {ca}, 4, {g4}\nv_add_u32 {ca}, {CST}, {ca}")
    a(f"ds_read_b128 {cbuf[0]}, {ca}\nds_read_b128 {cbuf[1]}, {ca} offset:448")
    a(f"v_mul_u32_u24 {so}, {224*512}, {hh}\nv_lshl_add_u32 {so}, {r32}, 4, {so}")
    a(f"s_mul_i32 s28, {TT}, {224*512}\ns_mul_i32 s29, {FJ4}, {7*512}\ns_add_u32 s28, s28, s29\ns_add_u32 s28, s28, {AF}\ns_add_u32 s29, s28, {2*224*512}")
    for t in range(7):
        for gu in range(2):
            a(f"s_waitcnt lgkmcnt({1 if (gu == 0 or t < 6) else 0})")
            for mt in range(4):
                A = acc[mt][7 * gu + t]
                for p in range(2):
                    a(f"v_pk_fma_f32 {A[2*p:2*p+2]}, {cbuf[gu][2*p:2*p+2]}, {mean[(mt//2)*2:(mt//2)*2+2]}, {A[2*p:2*p+2]} op_sel:[0,{mt%2},0] op_sel_hi:[1,{mt%2},1]")
            if t < 6:
                a(f"ds_read_b128 {cbuf[gu]}, {ca} offset:{gu*448 + 64*(t+1)}")
        for mp in range(2):
            G = [acc[2*mp][t], acc[2*mp+1][t]]; U = [acc[2*mp][7+t], acc[2*mp+1][7+t]]
            for k in range(2):
                for e in range(4):
                    a(f"v_max_f32 {G[k][e]}, 0, {G[k][e]}")
            for k in range(2):
                for p in range(2):
                    a(f"v_pk_mul_f32 {G[k][2*p:2*p+2]}, {G[k][2*p:2*p+2]}, {U[k][2*p:2*p+2]}")
            D = U[0]
            a(f"v_cvt_pk_bf16_f32 {D[0]}, {G[0][0]}, {G[0][1]}\nv_cvt_pk_bf16_f32 {D[1]}, {G[0][2]}, {G[0][3]}")
            a(f"v_cvt_pk_bf16_f32 {D[2]}, {G[1][0]}, {G[1][1]}\nv_cvt_pk_bf16_f32 {D[3]}, {G[1][2]}, {G[1][3]}\ns_nop 1")
            a(f"v_permlane32_swap_b32 {D[0]}, {D[2]}\nv_permlane32_swap_b32 {D[1]}, {D[3]}")
            a(f"buffer_store_dwordx4 {D}, {so}, {WS}, s{28+mp} offen offset:{512*t} {SC} ;@p4out")
    a(f"s_lshl_b32 s47, {MI4}, 7\ns_lshl_b32 s29, {FJ4}, 2\ns_add_u32 s47, s47, s29\ns_add_u32 s47, s47, {F4}")

def phase5(a):
    va = Alloc("v", VW5x[3].b + 1, 256)
    vx = va(2); wa = va(8); wb = va(4); vwb = va(2); vpf = va(); fl = va(); fa = va()
    t0, t1, t2, t3 = va(), va(), va(), va()
    acc = [[va(4, 4) for t in range(8)] for mt in range(2)]
    Wf = [[va(4, 4) for t in range(8)] for b in range(2)]
    NB = 8
    Xf = [[va(4, 4) for mt in range(2)] for b in range(NB)]
    part = [[acc[mt][4 + t] for t in range(4)] for mt in range(2)]
    res = R("v", Wf[0][4].b, 16); stt = R("v", Wf[1][4].b, 16); r2 = wa[0:2]; u = wa[2:8]
    TT, sX, KH5, NJ5, sR, sPF = "s32", "s33", "s34", "s35", "s36", "s37"
    NA, NT = 2 * KA, 2 * (KA + KB)
    pa = Xf[7][1][0]
    a(f"s_lshr_b32 s28, {MI5}, 1\ns_lshl_b32 s28, s28, 7\ns_add_u32 s28, s28, {F4}\nv_lshlrev_b32 {pa}, 2, {r32}\nv_add_u32 {pa}, s28, {pa}")
    publish(a, ["s47"], "p4out", Xf[7][0][0:2])
    stamp(a, 12)
    for j in range(3, WLA):
        a.ext(w5a(j))
    a(f"s_and_b32 {KH5}, {S_XCD}, 1\ns_lshl_b32 {NJ5}, {NB5}, 1\ns_add_u32 {NJ5}, {NJ5}, {KH5}")
    a(f"s_lshl_b32 {TT}, {MI5}, 3\ns_lshl_b32 s28, {S_W}, 1\ns_add_u32 {TT}, {TT}, s28")
    a(f"v_lshrrev_b32 {t0}, 2, {lane}\nv_and_b32 {t0}, 3, {t0}\nv_and_b32 {t1}, 1, {g4}\nv_lshl_add_u32 {t0}, {t1}, 2, {t0}\nv_lshl_add_u32 {t1}, {hh}, 4, {t0}\nv_lshlrev_b32 {t1}, 8, {t1}")
    a(f"s_lshl_b32 s28, {KH5}, 2\nv_xor_b32 {t0}, s28, {t0}\nv_lshl_add_u32 {t1}, {t0}, 5, {t1}\nv_and_b32 {t0}, 3, {lane}\nv_lshl_add_u32 {t1}, {t0}, 3, {t1}\nv_add_u32 {wa[0]}, {R5 + 4*16384}, {t1}")
    for t in range(1, 8):
        a(f"v_xor_b32 {wa[t]}, {32*t}, {wa[0]}")
    wa35(a, wb, t0, t1, R5 + ((KA + 5) % 8) * 16384)
    w64_dma_voff(a, vwb, t0, t1, NJ5)
    a(f"s_add_u32 {sR}, {s5M}, 65536")
    a(f"s_mul_i32 {sX}, {TT}, {224*512}\ns_mul_i32 s28, {KH5}, {NA*1024}\ns_add_u32 {sX}, {sX}, s28\ns_add_u32 {sX}, {sX}, {AF}\nv_mov_b32 {vx[0]}, {vl}\nv_add_u32 {vx[1]}, {224*512}, {vl}")
    a(f"s_lshl_b32 s28, {S_IDX}, 3\ns_lshl_b32 s29, {S_W}, 1\ns_add_u32 s28, s28, s29\nv_and_b32 {vpf}, 1, {lane}\nv_add_u32 {vpf}, s28, {vpf}\nv_lshlrev_b32 {vpf}, 11, {vpf}")
    a(f"s_lshr_b32 s28, {S_XCD}, 2\ns_lshl_b32 s28, s28, 10\ns_add_u32 s28, s28, 384\ns_mul_i32 {sPF}, {KH5}, {KA*64*2048}\ns_add_u32 {sPF}, {sPF}, s28\ns_add_u32 {sPF}, {sPF}, {4*64*2048}")
    a(f"buffer_load_dword {fl}, {vpf}, {SB}, {sPF} offen\ns_add_u32 {sPF}, {sPF}, {4*64*2048}")
    srd(a, 12, P_OUT, 2048 * 2048)
    def wreads(sig):
        s = sig % 2
        if sig < NA:
            return [f"ds_read_b64_tr_b16 {Wf[sig%2][t][2*j:2*j+2]}, {wa[t]} offset:{(((sig//2)+5)%4)*16384 + s*8192 + 2048*j} ;@r5_{sig}_{t}" for t in range(8) for j in range(2)]
        i = sig // 2 - KA
        sl = (KA + i + 5) % 8; b0 = (KA + 5) % 8
        grp = 0 if sl >= b0 and i < 8 - b0 else None
        return [f"ds_read_b64_tr_b16 {Wf[sig%2][t][2*j:2*j+2]}, {wb[t]} offset:{boff(i)*16384 + s*4096 + 1024*j} ;@r5_{sig}_{t}" for t in range(4) for j in range(2)]
    bbase = {}
    cur = (KA + 5) % 8
    for i in range(KB):
        sl = (KA + i + 5) % 8
        if not (0 <= sl - cur < 4):
            cur = sl
        bbase[i] = cur
    boff = lambda i: (KA + i + 5) % 8 - bbase[i]
    a.ext(wreads(0))
    poll(a, "p5", pa, Xf[7][0][0])
    stamp(a, 13)
    def xload(sig):
        o = []
        if sig == NA:
            o += [f"s_mul_i32 {sX}, {TT}, {224*512}", f"s_add_u32 {sX}, {sX}, {AF + 2*NA*1024}"]
        elif sig % 4 == 0 and sig > 0:
            o += [f"s_add_u32 {sX}, {sX}, 4096"]
        o += [f"buffer_load_dwordx4 {Xf[sig%NB][mt]}, {vx[mt]}, {WS}, {sX} offen offset:{(sig%4)*1024} {SC} ;@p5x{sig}" for mt in range(2)]
        return o
    def w5b(j):
        o = []
        if j == KA:
            o += [f"s_mov_b32 {s5W}, {(2*KA-1)*64*2048}", f"s_lshl_b32 s28, {S_W}, 11", f"s_sub_u32 {s5M}, {s5M}, s28"]
        o += [f"s_add_u32 m0, {s5M}, {((j+5)%8)*16384}", f"s_add_u32 {s5W}, {s5W}, {64*2048}"]
        o += [f"buffer_load_dwordx4 {vwb[i]}, {SB}, {s5W} offen offset:{1024*i} lds ;@p5w{j}" for i in range(2)]
        return o
    for sig in range(XLA):
        a.ext(xload(sig))
    side = {k: [] for k in range(NT)}
    side[NA - 1] += [f"s_xor_b32 s28, {S_WG}, 1", "s_lshl_b32 s28, s28, 14", f"s_lshl_b32 s29, {S_W}, 12", "s_add_u32 s28, s28, s29", f"s_add_u32 s30, s28, {XP}"]
    for mt in range(2):
        for p in range(2):
            A, B = acc[mt][4 + 2 * p], acc[mt][5 + 2 * p]
            side[NA + mt] += [f"v_cvt_pk_bf16_f32 {A[0]}, {A[0]}, {A[1]}", f"v_cvt_pk_bf16_f32 {A[1]}, {A[2]}, {A[3]}", f"v_cvt_pk_bf16_f32 {A[2]}, {B[0]}, {B[1]}", f"v_cvt_pk_bf16_f32 {A[3]}, {B[2]}, {B[3]}",
                              f"buffer_store_dwordx4 {A}, {vl}, {WS}, s30 offen offset:{1024*(2*mt+p)} {SC}"]
    pl = [f"buffer_load_dwordx4 {part[k//2][2*(k%2)]}, {vl}, {WS}, s30 offen offset:{1024*k} {SC}" for k in range(4)]
    side[NT - CHK5] += ["s_xor_b32 s30, s30, 16384"] + pl
    side[NA + 4] += [f"s_lshl_b32 s28, {TT}, 15", f"s_lshl_b32 s29, {NJ5}, 11", "s_add_u32 s28, s28, s29", f"s_add_u32 s28, s28, {HF}", f"v_add_u32 {t0}, 32768, {vl}"]
    side[NA + 4] += [f"buffer_load_dwordx4 {res[8*mt+4*p:8*mt+4*p+4]}, {vl if mt == 0 else t0}, {WS}, s28 offen offset:{1024*p} {SC}" for mt in range(2) for p in range(2)]
    q = [f"v_lshlrev_b32 {t1}, 3, {t16}", f"v_lshl_add_u32 {t1}, {g4}, 16, {t1}", f"s_lshl_b32 s28, {TT}, 7", f"s_add_u32 s28, s28, {ST}"]
    for k in range(4):
        q += [f"buffer_load_dwordx2 {stt[8*mt+2*k:8*mt+2*k+2]}, {t1}, {WS}, s28 offen offset:{128*mt} {SC} ;@p5st" for mt in range(2)] + ["s_add_u32 s28, s28, 16384"]
    side[NA + 5] += q[:10]; side[NA + 6] += q[10:]
    q = ["s_waitcnt vmcnt(@p5st)"]
    for mt in range(2):
        T = stt[8 * mt:8 * mt + 8]
        q += [f"v_add_f32 {T[e]}, {T[e]}, {T[2+e]}" for e in range(2)] + [f"v_add_f32 {T[4+e]}, {T[4+e]}, {T[6+e]}" for e in range(2)]
    for mt in range(2):
        q += [f"v_add_f32 {stt[8*mt+e]}, {stt[8*mt+e]}, {stt[8*mt+4+e]}" for e in range(2)]
    vals = [stt[0], stt[1], stt[8], stt[9]]; tm = [stt[2], stt[3], stt[10], stt[11]]
    for sw_ in ("16", "32"):
        q += [f"v_mov_b32 {tm[k]}, {vals[k]}" for k in range(4)] + ["s_nop 0"]
        q += [f"v_permlane{sw_}_swap_b32 {vals[k]}, {tm[k]}" for k in range(4)]
        q += [f"v_add_f32 {vals[k]}, {vals[k]}, {tm[k]}" for k in range(4)]
    for mt in range(2):
        m_, q_ = stt[8 * mt], stt[8 * mt + 1]
        q += [f"v_mul_f32 {m_}, {f32(1/1024)}, {m_}", f"v_mul_f32 {q_}, {f32(1/1024)}, {q_}", f"v_fma_f32 {q_}, -{m_}, {m_}, {q_}", f"v_max_f32 {q_}, 0, {q_}",
              f"v_add_f32 {q_}, {f32(EPS)}, {q_}", f"v_rcp_f32 {r2[mt]}, {q_}"]
    h_ = (len(q) + 2) // 3
    for k in range(3):
        side[NT - 4 + k] += q[k * h_:(k + 1) * h_]
    assert WLA == 4
    for sig in range(NT):
        i, s = divmod(sig, 2)
        inloop = 6 <= sig < 6 + 8 * ((NA - 6) // 8)
        if inloop and sig % 8 == 6:
            a.it("p5")
        if DBG == "p5" and (sig < 6 and sig % 2 == 0 or sig == 6 + 8 * ((NA - 6) // 8) or sig >= NA and sig % 2 == 0):
            stamp(a, 16 + (sig // 2 if sig < 6 else 3 if sig < NA else 4 + (sig - NA) // 2))
        last = i == KA + KB - 1
        nt = 8 if sig < NA else 4
        a(f"s_waitcnt vmcnt(@p5x{sig}" + (f"&p5w{i+1}" if s == 1 and not last else "") + f") lgkmcnt(@r5_{sig}_{nt//2-1})")
        if s == 1 and not last:
            a("s_barrier")
        m = [mf16(acc[mt][t], Wf[sig % 2][t], Xf[sig % NB][mt], 0 if sig == 0 else None) for t in range(nt) for mt in range(2)]
        rd = wreads(sig + 1) if sig < NT - 1 else []
        ex = xload(sig + XLA) if sig + XLA < NT else []
        j = i + WLA
        if j < KA:
            w_ = w5a(j, (sR, ((i + 5) % 4) * 16384) if inloop else None)
            ex += w_[:4] if s == 0 else w_[4:]
        elif j < KA + KB and s == 0:
            ex += w5b(j)
        if sig % 8 == 1 and 6 <= sig < NA - 8 and PF3:
            ex += [f"buffer_load_dword {fl}, {vpf}, {SB}, {sPF} offen", f"s_add_u32 {sPF}, {sPF}, {4*64*2048}"]
        ex += side[sig]
        upd = {}
        if s == 0 and sig < NA - 2 and (i + 5) % 4 == 3:
            upd = {2 * t + 1: f"v_xor_b32 {wa[t]}, {(R5 + 65536) ^ R5}, {wa[t]}" for t in range(8)}
        if s == 1 and inloop and (i + 5) % 4 == 3:
            ex += [f"s_xor_b32 {sR}, {sR}, {(R5 + 65536) ^ R5}"]
        if sig >= NA and s == 0 and not last and bbase[i - KA + 1] != bbase[i - KA]:
            d = (bbase[i - KA + 1] - bbase[i - KA]) * 16384
            upd = {2 * t + 1: (f"v_add_u32 {wb[t]}, {d}, {wb[t]}" if d > 0 else f"v_subrev_u32 {wb[t]}, {-d}, {wb[t]}") for t in range(4)}
        rd2 = [x + ("\n" + upd[k] if k in upd else "") for k, x in enumerate(rd)]
        ng = len(m)
        rper = -(-len(rd2) // ng) if rd2 else 0
        for g in range(ng):
            if g == ng // 2:
                a(f"s_waitcnt lgkmcnt(@r5_{sig}_{nt-1})")
            a(m[g])
            a.ext(rd2[g * rper:(g + 1) * rper])
            lo = (g * len(ex)) // ng; hi = ((g + 1) * len(ex)) // ng
            a.ext(ex[lo:hi])
        if inloop and sig % 8 == 5:
            a.endit()
    stamp(a, 14)
    tmp = R("v", Xf[0][0].b, 32); pk = R("v", Xf[4][0].b, 16)
    a(f"s_lshl_b32 s30, {S_W}, 12")
    dlayout_addr(a, t1, t0, "s30")
    for k in range(16):
        a(f"v_lshlrev_b32 {tmp[2*k]}, 16, {res[k]}\nv_and_b32 {tmp[2*k+1]}, 0xffff0000, {res[k]}")
    for mt in range(2):
        for k in range(8):
            a(f"v_pk_fma_f32 {tmp[16*mt+2*k:16*mt+2*k+2]}, {acc[mt][k//2][2*(k%2):2*(k%2)+2]}, {r2}, {tmp[16*mt+2*k:16*mt+2*k+2]} op_sel:[0,{mt},0] op_sel_hi:[1,{mt},1]")
    def pchk(o):
        P4 = [part[k // 2][2 * (k % 2)] for k in range(4)]
        o(f"s_waitcnt vmcnt(0)\nv_max3_u32 {fl}, {P4[0][0]}, {P4[0][1]}, {P4[0][2]}\nv_max3_u32 {fa}, {P4[2][0]}, {P4[2][1]}, {P4[2][2]}")
        o(f"v_max3_u32 {fl}, {fl}, {P4[0][3]}, {P4[1][0]}\nv_max3_u32 {fa}, {fa}, {P4[2][3]}, {P4[3][0]}\nv_max3_u32 {fl}, {fl}, {P4[1][1]}, {P4[1][2]}\nv_max3_u32 {fa}, {fa}, {P4[3][1]}, {P4[3][2]}")
        o(f"v_max3_u32 {fl}, {fl}, {P4[1][3]}, {P4[3][3]}\nv_max_u32 {fl}, {fl}, {fa}\nv_cmp_eq_u32 vcc, -1, {fl}\ns_nop 1\ns_cmp_lg_u64 vcc, 0")
    pchk(a)
    a("s_cbranch_scc1 L_p5x_spin\nL_p5x_back:")
    t = Asm()
    t(f"L_p5x_spin:\ns_mov_b32 s26, {SPIN_MAX}\nv_lshlrev_b32 {vpf}, 4, {lane}\nL_p5x_spin2:\ns_sleep 2")
    t(f"s_xor_b32 s27, {S_WG}, 0\ns_lshl_b32 s27, s27, 14\ns_lshl_b32 s28, {S_W}, 12\ns_add_u32 s27, s27, s28\ns_add_u32 s27, s27, {XP}")
    t.ext([x.replace("s30", "s27") for x in pl])
    pchk(t)
    t("s_cbranch_scc0 L_p5x_back\ns_sub_u32 s26, s26, 1\ns_cbranch_scc0 L_p5x_spin2\ns_branch L_p5x_back")
    tails.append(t)
    for mt in range(2):
        if True:
            for p in range(2):
                A, B = part[mt][2 * p], part[mt][2 * p + 1]
                a(f"v_lshlrev_b32 {B[0]}, 16, {A[2]}\nv_and_b32 {B[1]}, 0xffff0000, {A[2]}\nv_lshlrev_b32 {B[2]}, 16, {A[3]}\nv_and_b32 {B[3]}, 0xffff0000, {A[3]}")
                a(f"v_lshlrev_b32 {A[2]}, 16, {A[1]}\nv_and_b32 {A[3]}, 0xffff0000, {A[1]}\nv_and_b32 {A[1]}, 0xffff0000, {A[0]}\nv_lshlrev_b32 {A[0]}, 16, {A[0]}")
        for k in range(8):
            a(f"v_pk_fma_f32 {tmp[16*mt+2*k:16*mt+2*k+2]}, {part[mt][k//2][2*(k%2):2*(k%2)+2]}, {r2}, {tmp[16*mt+2*k:16*mt+2*k+2]} op_sel:[0,{mt},0] op_sel_hi:[1,{mt},1]")
        for k in range(8):
            a(f"v_cvt_pk_bf16_f32 {pk[8*mt+k]}, {tmp[16*mt+2*k]}, {tmp[16*mt+2*k+1]}")
    for t in range(4):
        a(f"v_xor_b32 {t2}, {32*t}, {t0}\nv_add_u32 {t2}, {t2}, {t1}")
        for mt in range(2):
            a(f"ds_write_b64 {t2}, {pk[8*mt+2*t:8*mt+2*t+2]} offset:{2048*mt}")
    a(f"v_add_u32 {t2}, s30, {vl}\ns_waitcnt lgkmcnt(0)")
    for i in range(4):
        a(f"ds_read_b128 {tmp[4*i:4*i+4]}, {t2} offset:{i*1024}")
    a(f"s_lshl_b32 s30, {TT}, 4")
    rowmajor_voff(a, t2, t3, t0, t1, "s30", NJ5)
    for i in range(4):
        a(f"s_mov_b32 s29, {i*8*2048}\ns_waitcnt lgkmcnt({3-i})")
        a(f"buffer_store_dwordx4 {tmp[4*i:4*i+4]}, {t2 if i%2==0 else t3}, {SA}, s29 offen {SC}")
    if DIAG:
        a("s_waitcnt vmcnt(0)\ns_memrealtime s[96:97]\ns_memtime s[98:99]\ns_waitcnt lgkmcnt(0)")
        srd(a, 20, P_DBG, 256)
        a(f"s_not_b32 s92, s92\ns_sub_u32 s98, s98, s94\nv_mov_b32 {t0}, s96\nv_mov_b32 {t1}, s92\nv_mov_b32 {t2}, s98\nv_mov_b32 {t3}, 0\ns_mov_b64 exec, 1")
        a(f"buffer_atomic_umax {t0}, {t3}, {SCc}, 0 offen offset:4\nbuffer_atomic_umax {t1}, {t3}, {SCc}, 0 offen offset:8\nbuffer_atomic_umax {t2}, {t3}, {SCc}, 0 offen offset:12\ns_mov_b64 exec, -1")
    if STAMPS:
        a("s_waitcnt vmcnt(0)")
        stamp(a, 15)
        a(f"s_add_u32 s88, s{P_WS}, {STAMP}\ns_addc_u32 s89, s{P_WS+1}, 0\ns_lshl_b32 s87, {S_WG}, 10\ns_lshl_b32 s86, {S_W}, 8\ns_add_u32 s87, s87, s86")
        a(f"v_lshlrev_b32 {t0}, 2, {lane}\nv_add_u32 {t0}, s87, {t0}\nglobal_store_dword {t0}, {vst}, s[88:89]")
CHK5, PF3, XLA, WLA = 3, True, 6, 4
CORR = 'fmac'

KN = "sequential_preLN__mha_block__glu_gated_reglu__prompt_kernel"
def build(path):
    hdr = open("sequential_preLN__mha_block__glu_gated_reglu__prompt.s.ref").read().split("\n")
    hdr = [l for l in hdr if l.startswith(";") and "@launch" not in l]
    a = Prog()
    a(f"s_cmp_ge_u32 s2, 256\ns_cbranch_scc1 L_end")
    entry(a)
    a.label("L_P1")
    phase1(a)
    a.label("L_P2")
    sxr = phase2(a)
    a.label("L_P3")
    phase3(a, sxr)
    a.label("L_P4")
    phase4(a)
    a.label("L_P5")
    phase5(a)
    a.resolve()
    a.fold()
    errs = check(a.lines, "main")
    a.label("L_end")
    a("s_endpgm")
    for t in tails:
        errs += check(t.lines, "tail")
        a.lines += t.lines
    for e in errs:
        print(e)
    out = list(hdr)
    out.append("; @launch grid=(256,1,1) block=(256,1,1) lds=163840")
    out.append('.amdgcn_target "amdgcn-amd-amdhsa--gfx950"\n.text')
    out.append(f".globl {KN}\n.p2align 8\n.type {KN},@function\n{KN}:")
    out.append(a.text())
    out.append(f""".section .rodata,"a"
.p2align 6
.amdhsa_kernel {KN}
  .amdhsa_next_free_vgpr 512
  .amdhsa_next_free_sgpr 102
  .amdhsa_accum_offset 256
  .amdhsa_group_segment_fixed_size 0
  .amdhsa_kernarg_size 80
  .amdhsa_user_sgpr_count 2
  .amdhsa_user_sgpr_kernarg_segment_ptr 1
  .amdhsa_system_sgpr_workgroup_id_x 1
.end_amdhsa_kernel""")
    open(path, "w").write("\n".join(out) + "\n")
    print(f"wrote {path}: {len(errs)} checker errors")

if __name__ == "__main__":
    import argparse
    ap = argparse.ArgumentParser()
    ap.add_argument("-o", default="v2.s")
    ap.add_argument("--stamps", action="store_true")
    ap.add_argument("--slow", action="store_true")
    ap.add_argument("--spin", type=int, default=None)
    ap.add_argument("--dbg", default=None)
    ap.add_argument("--set", action="append", default=[])
    args = ap.parse_args()
    DBG = args.dbg
    for kv in args.set:
        k, v = kv.split("=")
        globals()[k] = eval(v)
    STAMPS = args.stamps; FORCE_SLOW = args.slow
    if args.spin: SPIN_MAX = args.spin
    build(args.o)
```

```python
import sys, math, re, struct
from asmlib import *

MB = 1 << 20
QF = 0 * MB; KF = 4 * MB; VF = 8 * MB
OF = 12 * MB
AF = 16 * MB
HF = 32 * MB
ST = 36 * MB
CS = 39 * MB
RA = 37 * MB + 65536
CQ = RA + 16384
FLG = 38 * MB
FSM, FSN, F1, F2, FC, F3, F4 = [FLG + 128 * k for k in (0, 16, 32, 48, 64, 72, 80)]
QL = 16384
FLG_BYTES = 128 * 128
XP = 40 * MB
WSZ = 48 * MB
STAMP = 200 * MB
OOB = 0x7ff00000
EPS = 1e-5
SC = "sc1"
STAMPS = False
FORCE_SLOW = False
DBG = None
SPIN_MAX = 1 << 22
def f32(x):
    return "0x%08x" % struct.unpack("<I", struct.pack("<f", x))[0]
def mf32(d, a, b, c=None):
    return f"v_mfma_f32_32x32x16_bf16 {d}, {a}, {b}, {c if c is not None else d}"
def mf16(d, a, b, c=None):
    return f"v_mfma_f32_16x16x32_bf16 {d}, {a}, {b}, {c if c is not None else d}"

S_WG, S_XCD, S_IDX, S_W = "s2", "s3", "s4", "s5"
WS = "s[8:11]"; SA = "s[12:15]"; SB = "s[16:19]"; SCc = "s[20:23]"
P_X, P_WQKV, P_WO, P_BX, P_WG, P_WU, P_WD, P_OUT, P_DBG, P_WS = 64, 66, 68, 70, 72, 74, 76, 78, 80, 82
lane, vl, t16, g4, r32, hh, vst = (R("v", i) for i in range(1, 8))
V0 = 8

class Prog(Asm):
    def it(self, name):
        self.lines.append(f";ITER {name}")
    def endit(self):
        self.lines.append(";ENDITER")
    def resolve(self):
        ops = []
        dso = []
        out = []
        for l in self.lines:
            m = re.search(r"lgkmcnt\(@([^)]*)\)", l)
            if m:
                idx = [i for i, t in enumerate(dso) if t == m.group(1)]
                assert idx, f"ds tag {m.group(1)} not issued"
                l = l.replace(m.group(0), f"lgkmcnt({min(len(dso) - 1 - idx[-1], 15)})")
            if l.startswith("ds_"):
                m = re.search(r";@(\S+)", l)
                dso.append(m.group(1) if m else None)
                l = l.split(";@")[0].strip()
            m = re.search(r"vmcnt\(@([^)]*)\)", l)
            if m:
                tags = m.group(1).split("&")
                n = 10 ** 9
                for tg in tags:
                    idx = [i for i, t in enumerate(ops) if t == tg]
                    assert idx, f"tag {tg} not issued before wait"
                    n = min(n, len(ops) - 1 - idx[-1])
                l = l.replace(m.group(0), f"vmcnt({min(n, 63)})")
            if re.match(r"(buffer_|global_)", l):
                m = re.search(r";@(\S+)", l)
                if not (m and m.group(1) == "skip"):
                    ops.append(m.group(1) if m else None)
                l = l.split(";@")[0].strip()
            out.append(l)
        self.lines = out
    def fold(self, counter="s24"):
        blocks = []
        cur = None
        for l in self.lines:
            if l.startswith(";ITER"):
                cur = (l.split()[1], [])
            elif l.startswith(";ENDITER"):
                blocks.append(("it", cur[0], cur[1])); cur = None
            elif cur is not None:
                cur[1].append(l)
            else:
                blocks.append(("line", l))
        strip = lambda L: [re.sub(r"vmcnt\(\d+\)", "vmcnt()", x) for x in L]
        nums = lambda L: [int(m) for x in L for m in re.findall(r"vmcnt\((\d+)\)", x)]
        for i in range(len(blocks) - 2, -1, -1):
            b, c = blocks[i], blocks[i + 1]
            if b[0] == "it" and c[0] == "it" and b[1] == c[1] and b[2] != c[2] and strip(b[2]) == strip(c[2]):
                if all(y <= x for x, y in zip(nums(b[2]), nums(c[2]))):
                    blocks[i] = ("it", b[1], list(c[2]))
                else:
                    print("   cannot unify", b[1], nums(b[2]), nums(c[2]))
        out = []
        i = 0; k = 0
        while i < len(blocks):
            b = blocks[i]
            if b[0] == "line":
                out.append(b[1]); i += 1; continue
            j = i
            while j + 1 < len(blocks) and blocks[j + 1][0] == "it" and blocks[j + 1][1] == b[1] and blocks[j + 1][2] == b[2]:
                j += 1
            n = j - i + 1
            if n == 1:
                out += b[2]
                print(f"  iter {b[1]}: single ({len(b[2])} instrs)")
            else:
                k += 1
                print(f"  iter {b[1]}: loop x{n} ({len(b[2])} instrs)")
                out += [f"s_mov_b32 {counter}, {n}", ".p2align 4", f"L_{b[1]}_{k}:", ";LOOP"] + b[2] + \
                       [f"s_sub_u32 {counter}, {counter}, 1", f"s_cmp_lg_u32 {counter}, 0", f"s_cbranch_scc1 L_{b[1]}_{k}", ";ENDLOOP"]
            i = j + 1
        self.lines = out

def srd(a, s, ptr, nbytes):
    a(f"s_mov_b32 s{s}, s{ptr}\ns_mov_b32 s{s+1}, s{ptr+1}\ns_mov_b32 s{s+2}, {nbytes}\ns_mov_b32 s{s+3}, 0x20000")

def stamp(a, k):
    if not STAMPS:
        return
    a(f"s_memrealtime s[90:91]\ns_memtime s[88:89]\ns_waitcnt lgkmcnt(0)")
    a(f"v_writelane_b32 {vst}, s90, {k}\nv_writelane_b32 {vst}, s88, {32+k}")

def spread(spine, fillers, maxper=None, start=0, end=None):
    n = len(spine); end = n if end is None else end
    g = end - start
    cnt = [0] * n
    for i in range(len(fillers)):
        cnt[start + (i * g) // len(fillers)] += 1
    return interleave(spine, fillers, per_gap=cnt)

tails = []
def is_mem(x):
    return any(l.startswith(("buffer_", "global_", "ds_")) for l in x.split("\n"))
def is_vm(x):
    return any(l.startswith(("buffer_", "global_")) for l in x.split("\n"))
def sched2(spine, lds, other, lds_end, mode):
    n = len(spine)
    nv = sum(is_vm(x) for x in other)
    L = list(lds); O = list(other)
    seq = []; cnt = []; done = 0; skip = False
    for g in range(n):
        c = 0
        if skip:
            skip = False
        elif O and is_vm(O[0]) and done * lds_end <= g * nv:
            seq.append(O.pop(0)); c = 1; done += 1; skip = mode == 2
        else:
            if L:
                seq.append(L.pop(0)); c += 1
            if O and not is_vm(O[0]):
                seq.append(O.pop(0)); c += 1
        cnt.append(c)
    if L or O:
        return None
    return interleave(spine, seq, per_gap=cnt)
def sched(spine, lds, other, lds_end=None, first=0):
    n = len(spine)
    lds_end = n - 4 if lds_end is None else lds_end
    nm = sum(is_mem(x) for x in other)
    for lcap in range(1, 40):
        for mcap in (1, 2, 3):
            L = list(lds); O = list(other)
            seq = []; cnt = []; done_m = 0
            for g in range(n):
                c = 0; light = 0; mem = 0
                if g >= first:
                    while True:
                        must_l = L and (len(L) > (lds_end - g - 1) * mcap + (mcap - mem - 1))
                        if O and not is_mem(O[0]) and light < lcap:
                            x = O.pop(0); seq.append(x); c += 1; light += x.count("\n") + 1
                        elif mem < mcap and O and is_mem(O[0]) and not must_l and (done_m * (n - first) <= (g - first) * nm or not L):
                            seq.append(O.pop(0)); c += 1; mem += 1; done_m += 1
                        elif mem < mcap and L:
                            seq.append(L.pop(0)); c += 1; mem += 1
                        else:
                            break
                cnt.append(c)
            if not L and not O:
                return interleave(spine, seq, per_gap=cnt)
    raise RuntimeError("sched failed")

pfn = [0]
def codepf(a, l0, l1, vt, dist=True):
    if not CODEPF:
        return
    a(f"s_add_u32 s56, s58, {l0}-L_base\ns_addc_u32 s57, s59, 0")
    a(f"v_and_b32 {vt}, 7, v0\nv_lshl_add_u32 {vt}, {vt}, 5, {S_IDX}\nv_lshlrev_b32 {vt}, 7, {vt}\nv_min_u32 {vt}, {l1}-{l0}-4, {vt}\nglobal_load_dword {vt}, {vt}, s[56:57]")
CODEPF = True
P1MODE = 2
NTS = 6
ROT = 1
EARLY4 = 0
POLL1 = False
XFIRST = True
VG4 = 2
VG1 = 0
CSH = 0
TAILPK = False
T2 = 1
SH2 = 6
TAIL4 = True
DIAG = False
EXP = ''
SWAP37 = True
PF1 = 0
DUMPQ = False
WOT = False
EARLY2 = False
def w0sel(a, dst, val):
    a(f"s_cmp_eq_u32 {S_W}, 0\ns_cselect_b32 {dst}, {val}, {OOB}")
def publish(a, offs, tag, tmp):
    a(f"v_mov_b32 {tmp[0]}, 1\nv_mov_b32 {tmp[1]}, 0")
    for o in offs:
        w0sel(a, o, o)
    a(f"s_waitcnt vmcnt(@{tag})\ns_barrier")
    for o in offs:
        a(f"buffer_store_dword {tmp[0]}, {tmp[1]}, {WS}, {o} offen {SC}")
def poll(a, name, vaddr, t, pw=0):
    va_ = vaddr if isinstance(vaddr, list) else [vaddr]
    ts = t if isinstance(t, list) else [t]
    a(f"s_cmp_lg_u32 {S_W}, {pw}\ns_cbranch_scc1 L_{name}_ok\ns_mov_b32 s26, {SPIN_MAX}")
    a.label(f"L_{name}_poll")
    for v, x in zip(va_, ts):
        a(f"buffer_load_dword {x}, {v}, {WS}, 0 offen {SC} ;@skip")
    a(f"s_waitcnt vmcnt(0)")
    if len(ts) == 2:
        a(f"v_min_u32 {ts[0]}, {ts[0]}, {ts[1]}")
    a(f"v_cmp_eq_u32 vcc, 0, {ts[0]}\ns_sub_u32 s26, s26, 1\ns_cselect_b32 s27, 0, vcc_lo\ns_cselect_b32 s28, 0, vcc_hi")
    a(f"s_or_b32 s27, s27, s28\ns_cbranch_scc0 L_{name}_ok\ns_sleep 1\ns_branch L_{name}_poll")
    a.label(f"L_{name}_ok")
    a("s_barrier")
def lazy_check(name, reg, vaddr, srdn, restore):
    t = Asm()
    t.label(f"L_{name}_spin")
    t(f"s_mov_b32 s26, {SPIN_MAX}")
    t.ext(restore)
    t.label(f"L_{name}_spin2")
    t(f"s_sleep 2\nbuffer_load_dword {reg}, {vaddr}, {srdn}, 0 offen {SC}\ns_waitcnt vmcnt(0)\nv_cmp_eq_u32 vcc, 0, {reg}")
    t(f"s_sub_u32 s26, s26, 1\ns_cbranch_scc1 L_{name}_back\ns_cmp_lg_u64 vcc, 0\ns_cbranch_scc1 L_{name}_spin2\ns_branch L_{name}_back")
    tails.append(t)
    return f"v_cmp_eq_u32 vcc, 0, {reg}\ns_nop 1\ns_cmp_lg_u64 vcc, 0\ns_cbranch_scc1 L_{name}_spin\nL_{name}_back:"

def xsum16_32(a, x, y):
    a(f"v_mov_b32 {y}, {x}\ns_nop 1\nv_permlane16_swap_b32 {x}, {y}\nv_add_f32 {x}, {x}, {y}")
    a(f"v_mov_b32 {y}, {x}\ns_nop 1\nv_permlane32_swap_b32 {x}, {y}\nv_add_f32 {x}, {x}, {y}")

def entry(a):
    a("s_getpc_b64 s[58:59]\nL_base:")
    if DIAG:
        a("s_memrealtime s[92:93]\ns_memtime s[94:95]")
    a(f"s_load_dwordx16 s[64:79], s[0:1], 0\ns_load_dwordx4 s[80:83], s[0:1], 64")
    a(f"v_lshrrev_b32 {lane}, 6, v0\nv_and_b32 {r32}, 31, v0\nv_readfirstlane_b32 {S_W}, {lane}\nv_and_b32 {lane}, 63, v0")
    a(f"v_lshlrev_b32 {vl}, 4, {lane}\nv_and_b32 {t16}, 15, {lane}\nv_lshrrev_b32 {g4}, 4, {lane}\nv_lshrrev_b32 {hh}, 5, {lane}")
    a(f"s_and_b32 {S_XCD}, {S_WG}, 7\ns_lshr_b32 {S_IDX}, {S_WG}, 3")
    if STAMPS:
        a(f"v_mov_b32 {vst}, 0")

def phase1(a):
    XS, HS, WB, NW = 16384, 12288, 65536, 7
    TAB = WB + NW * HS
    va = Alloc("v", V0, 256); aa = Alloc("a", 0, 256)
    vxd = va(4); vwd = va(3); xa = va(2); wa = [va(2), va(2)]
    t0, t1, t2, t3 = va(), va(), va(), va()
    acc = [[[va(4, 4) for dt in range(2)] for sg in range(3)] for mt in range(4)]
    Xf = [[aa(4, 4) for mt in range(4)] for b in range(2)]
    Wf = [[[aa(4, 4) for dt in range(2)] for sg in range(3)] for b in range(2)]
    sx = va(16, 4)
    sacc = va(16, 4)
    sw = aa(32, 4); ident = aa(4, 4)
    u = va(8, 4)
    cq = va(16, 4); cv = va(2); dbg = va()
    MI, NJ, WM, WN = "s32", "s33", "s34", "s35"
    sX, sW, sDW, sRW, mX, mW = "s36", "s37", "s38", "s39", "s40", "s41"
    stamp(a, 0)
    a(f"s_and_b32 {MI}, {S_XCD}, 1\ns_lshl_b32 {MI}, {MI}, 3\ns_and_b32 s29, {S_IDX}, 7\ns_add_u32 {MI}, {MI}, s29")
    a(f"s_lshr_b32 {NJ}, {S_XCD}, 1\ns_lshl_b32 {NJ}, {NJ}, 2\ns_lshr_b32 s29, {S_IDX}, 3\ns_add_u32 {NJ}, {NJ}, s29")
    a(f"s_and_b32 {WM}, {S_W}, 1\ns_lshr_b32 {WN}, {S_W}, 1")
    a(f"v_lshrrev_b32 {t0}, 3, {lane}\ns_lshl_b32 s29, {MI}, 7\ns_lshl_b32 s28, {S_W}, 5\ns_add_u32 s29, s29, s28")
    a(f"v_add_u32 {t1}, s29, {t0}\nv_lshlrev_b32 {t1}, 11, {t1}")
    a(f"v_and_b32 {t2}, 7, {lane}\nv_xor_b32 {t2}, {t2}, {g4}\nv_xor_b32 {t3}, 4, {t2}")
    a(f"v_lshl_add_u32 {vxd[0]}, {t2}, 4, {t1}\nv_lshl_add_u32 {t3}, {t3}, 4, {t1}")
    a(f"v_add_u32 {vxd[1]}, {15360}, {t3}\nv_add_u32 {vxd[2]}, {2*15360}, {vxd[0]}\nv_add_u32 {vxd[3]}, {3*15360}, {t3}")
    a(f"v_mul_u32_u24 {t0}, 6144, {t0}\nv_and_b32 {t1}, 1, {g4}\nv_lshlrev_b32 {t1}, 1, {t1}\nv_and_b32 {t2}, 7, {lane}\nv_xor_b32 {t1}, {t1}, {t2}")
    a(f"s_mul_i32 s31, {S_W}, 3\ns_and_b32 s30, {NJ}, 12")
    for i in range(3):
        a(f"s_add_u32 s28, s31, {i}\ns_lshr_b32 s29, s28, 2\ns_mul_i32 s27, s29, {ROT}\ns_add_u32 s27, s27, {NJ}\ns_and_b32 s27, s27, 3\ns_or_b32 s27, s27, s30")
        a(f"s_lshl_b32 s29, s29, 4\ns_add_u32 s29, s29, s27\ns_lshl_b32 s29, s29, 7\ns_and_b32 s28, s28, 3")
        a(f"s_and_b32 s27, s28, 1\ns_lshl_b32 s27, s27, 2\ns_mul_i32 s28, s28, {8*6144}\ns_add_u32 s28, s28, s29\ns_sub_u32 s28, s28, {1024*i}")
        a(f"v_xor_b32 {t2}, s27, {t1}\nv_lshl_add_u32 {t2}, {t2}, 4, {t0}\nv_add_u32 {vwd[i]}, s28, {t2}")
    for sg in range(3):
        a(f"s_add_u32 s27, {NJ}, {ROT*sg}\ns_and_b32 s27, s27, 3\ns_or_b32 s{60+sg}, s27, s30")
    a("s_waitcnt lgkmcnt(0)")
    srd(a, 12, P_X, 2048 * 2048)
    srd(a, 16, P_WQKV, 1024 * 6144)
    a(f"s_mov_b32 {sX}, 0\ns_mov_b32 {sW}, 0")
    a(f"s_lshl_b32 {mX}, {S_W}, 12\ns_mul_i32 {mW}, {S_W}, 3072\ns_add_u32 {mW}, {mW}, {WB}")
    def xdma(slab, rng=range(4)):
        o = [f"s_add_u32 m0, {mX}, {(slab%4)*XS}", f"s_mov_b32 {sX}, {128*slab}"]
        o += [f"buffer_load_dwordx4 {vxd[i]}, {SA}, {sX} offen offset:{i*1024} lds ;@x{slab}" for i in rng]
        return o
    def wdma(hs):
        o = [f"s_add_u32 m0, {mW}, {(hs%NW)*HS}", f"s_mov_b32 {sW}, {32*6144*hs}"]
        o += [f"buffer_load_dwordx4 {vwd[i]}, {SB}, {sW} offen offset:{i*1024} lds ;@w{hs}" for i in range(3)]
        return o
    def dmas(sig):
        i, s = divmod(sig, 2)
        o = []
        if P1MODE == 0:
            if sig == 0:
                return xdma(2) + wdma(4) + wdma(5)
            if sig == 1:
                return wdma(6) + wdma(7) + xdma(3)
            if sig == 2:
                return wdma(8) + xdma(4)
        elif P1MODE == 1:
            if sig == 0:
                return wdma(6) + xdma(3)
        else:
            if sig == 0:
                return xdma(2) + wdma(4) + wdma(5)
            if sig == 1:
                return wdma(6) + wdma(7) + xdma(3)
            if sig == 2:
                return wdma(8) + xdma(4)
        if s == 1:
            if 2 * i + 7 < 32: o += wdma(2 * i + 7)
            if i + 4 < 16: o += xdma(i + 4, range(2))
        else:
            if 2 * i + 6 < 32: o += wdma(2 * i + 6)
            if i + 3 < 16: o += xdma(i + 3, range(2, 4))
        return o
    ss, sq, lo, hi = u[0], u[1], u[2], u[3]
    dpp = lambda x, m: f"v_add_f32_dpp {x}, {x}, {x} {m} row_mask:0xf bank_mask:0xf"
    rowq = [f"v_mov_b32 {ss}, 0", f"v_mov_b32 {sq}, 0"]
    if XFIRST:
        rowq += [f"v_mov_b32 {lo}, 0x3f803f80"]
        for r in range(16):
            rowq += [f"v_dot2c_f32_bf16 {ss}, {sx[r]}, {lo}", f"v_dot2c_f32_bf16 {sq}, {sx[r]}, {sx[r]}"]
        rowq += ["s_nop 2"]
    else:
        for r in range(16):
            rowq += [f"v_lshlrev_b32 {lo}, 16, {sx[r]}", f"v_and_b32 {hi}, 0xffff0000, {sx[r]}", f"v_add_f32 {ss}, {ss}, {lo}", f"v_fmac_f32 {sq}, {lo}, {lo}",
                     f"v_add_f32 {ss}, {ss}, {hi}", f"v_fmac_f32 {sq}, {hi}, {hi}"]
    for m_ in ("quad_perm:[1,0,3,2]", "quad_perm:[2,3,0,1]", "row_half_mirror", "row_mirror"):
        rowq += ["s_nop 0", dpp(ss, m_), dpp(sq, m_)]
    rowq += [f"v_mov_b32 {lo}, {ss}", f"v_mov_b32 {hi}, {sq}", "s_nop 0", f"v_permlane16_swap_b32 {ss}, {lo}", f"v_permlane16_swap_b32 {sq}, {hi}"]
    rowq += [f"v_add_f32 {ss}, {ss}, {lo}", f"v_add_f32 {sq}, {sq}, {hi}", f"v_mul_f32 {ss}, {f32(-1/1024)}, {ss}", f"v_mul_f32 {sq}, {f32(1/1024)}, {sq}",
             f"v_fma_f32 {sq}, -{ss}, {ss}, {sq}", f"v_max_f32 {sq}, 0, {sq}", f"v_add_f32 {sq}, {f32(EPS)}, {sq}", f"v_rsq_f32 {sq}, {sq}",
             f"v_lshlrev_b32 {u[4]}, 2, {hh}", f"s_lshl_b32 s48, s42, 2", f"s_add_u32 s48, s48, {RA}",
             f"buffer_store_dword {sq}, {u[4]}, {WS}, s48 offen {SC}", f"s_add_u32 s48, s48, 8192", f"buffer_store_dword {ss}, {u[4]}, {WS}, s48 offen {SC}"]
    def touch(f, n, d0, d1):
        if not XFIRST:
            a(f"v_min_u32 {t0}, {2*n-1}, {lane}\nv_lshrrev_b32 {t1}, 1, {t0}\nv_and_b32 {t0}, 1, {t0}\ns_lshl_b32 s28, {S_WG}, 3\ns_lshl_b32 s29, {S_W}, 1\ns_add_u32 s28, s28, s29")
            a(f"v_add_u32 {t0}, s28, {t0}\nv_lshlrev_b32 {t0}, 11, {t0}\nv_lshl_add_u32 {t0}, {t1}, 7, {t0}")
            a(f"buffer_load_dword {d0}, {t0}, {SA}, 0 offen offset:{128*f}")
        a(f"v_min_u32 {t0}, {3*n-1}, {lane}\nv_mul_u32_u24 {t1}, 43, {t0}\nv_lshrrev_b32 {t1}, 7, {t1}\nv_mul_u32_u24 {t2}, 3, {t1}\nv_sub_u32 {t0}, {t0}, {t2}")
        a(f"s_mul_i32 s28, {S_WG}, 12\ns_mul_i32 s29, {S_W}, 3\ns_add_u32 s28, s28, s29\nv_add_u32 {t0}, s28, {t0}")
        a(f"s_mov_b32 s28, {(1<<32)//48 + 1}\nv_mul_hi_u32 {t2}, {t0}, s28\nv_lshl_add_u32 {t1}, {t1}, 6, {t2}\nv_mul_u32_u24 {t2}, 48, {t2}\nv_sub_u32 {t0}, {t0}, {t2}")
        a(f"v_mul_u32_u24 {t1}, 6144, {t1}\nv_lshl_add_u32 {t0}, {t0}, 7, {t1}\ns_mov_b32 s28, {64*6144*f}")
        a(f"buffer_load_dword {d1}, {t0}, {SB}, s28 offen")
    def side_x():
        a(f"s_lshl_b32 s42, {MI}, 7\ns_lshl_b32 s28, {NJ}, 3\ns_add_u32 s42, s42, s28\ns_lshl_b32 s28, {S_W}, 1\ns_add_u32 s42, s42, s28")
        a(f"v_lshlrev_b32 {t0}, 11, {hh}\nv_lshl_add_u32 {t0}, {r32}, 4, {t0}\ns_lshl_b32 s28, s42, 11")
        for i in range(4):
            a(f"buffer_load_dwordx4 {sx[4*i:4*i+4]}, {t0}, {SA}, s28 offen offset:{512*i} ;@sx")
    def side_w():
        a(f"v_lshrrev_b32 {t0}, 2, {r32}\nv_mul_u32_u24 {t0}, 6144, {t0}\nv_and_b32 {t1}, 3, {lane}\nv_lshl_add_u32 {t0}, {t1}, 5, {t0}\nv_lshl_add_u32 {t0}, {hh}, 4, {t0}")
        a(f"s_and_b32 s28, {MI}, 3\ns_lshl_b32 s28, s28, 2\ns_add_u32 s28, s28, {S_W}\ns_mul_i32 s28, s28, {64*6144}")
        a(f"s_lshr_b32 s43, {MI}, 2\ns_mul_i32 s63, s43, {ROT}\ns_add_u32 s63, s63, {NJ}\ns_and_b32 s63, s63, 3\ns_or_b32 s63, s63, s30\ns_lshl_b32 s29, s43, 11\ns_add_u32 s28, s28, s29\ns_lshl_b32 s29, s63, 7\ns_add_u32 s28, s28, s29\ns_cmp_eq_u32 s43, 3\ns_cselect_b32 s28, {OOB}, s28")
        for i in range(8):
            a(f"buffer_load_dwordx4 {sw[4*i:4*i+4]}, {t0}, {SB}, s28 offen ;@sw\ns_add_u32 s28, s28, {8*6144}")
    def side_loads():
        if not XFIRST: side_x()
        side_w()
    def resets():
        srd(a, 8, P_WS, WSZ)
        srd(a, 20, P_DBG, 256)
        a(f"s_lshl_b32 s48, {S_W}, 12\ns_add_u32 s48, s48, {FLG}\ns_cmp_eq_u32 {S_WG}, 0\ns_cselect_b32 s48, s48, {OOB}")
        for r in range(4):
            a(f"v_mov_b32 {cq[r]}, 0\nv_mov_b32 {cq[4+r]}, -1")
        for i in range(4):
            a(f"buffer_store_dwordx4 {cq[0:4]}, {vl}, {WS}, s48 offen offset:{1024*i} {SC} ;@rst")
    if P1MODE == 0:
        if DBG == "p0": stamp(a, 16)
        a.ext(xdma(0) + wdma(0) + wdma(1))
        if DBG == "p0": stamp(a, 17)
        codepf(a, "L_P1", "L_P2", dbg)
        resets()
        if DBG == "p0": stamp(a, 18)
        a.ext(xdma(1) + wdma(2) + wdma(3))
        if DBG == "p0": stamp(a, 19)
        side_loads()
        if DBG == "p0": stamp(a, 20)
    elif P1MODE == 2:
        if DBG == "p0": stamp(a, 16)
        if XFIRST: side_x()
        a.ext(xdma(0) + wdma(0) + wdma(1))
        if DBG == "p0": stamp(a, 17)
        touch(1, NTS, cv[0], cv[1])
        codepf(a, "L_P1", "L_P2", dbg)
        if DBG == "p0": stamp(a, 18)
        a.ext(xdma(1) + wdma(2) + wdma(3))
        if DBG == "p0": stamp(a, 19); stamp(a, 20)
        srd(a, 8, P_WS, WSZ)
        srd(a, 20, P_DBG, 256)
    else:
        side_loads()
        codepf(a, "L_P1", "L_P2", dbg)
        a.ext(xdma(0) + wdma(0) + wdma(1))
        resets()
        a.ext(xdma(1) + wdma(2) + wdma(3) + xdma(2) + wdma(4) + wdma(5))
    a(f"v_lshrrev_b32 {t0}, 1, {t16}\nv_xor_b32 {t0}, {t0}, {g4}\ns_lshl_b32 s28, {WM}, 13\nv_lshlrev_b32 {t1}, 7, {t16}\nv_add_u32 {t1}, s28, {t1}")
    a(f"v_lshl_add_u32 {xa[0]}, {t0}, 4, {t1}\nv_xor_b32 {xa[1]}, 64, {xa[0]}")
    a(f"v_lshrrev_b32 {t0}, 2, {lane}\nv_and_b32 {t0}, 3, {t0}\nv_lshl_add_u32 {t1}, {g4}, 3, {t0}\nv_lshlrev_b32 {t1}, 7, {t1}")
    a(f"v_lshrrev_b32 {t0}, 1, {t0}\nv_and_b32 {t2}, 1, {g4}\nv_lshl_add_u32 {t0}, {t2}, 1, {t0}\ns_lshl_b32 s28, {WN}, 1\nv_xor_b32 {t0}, s28, {t0}")
    a(f"v_lshl_add_u32 {t1}, {t0}, 5, {t1}\nv_and_b32 {t0}, 3, {lane}\nv_lshl_add_u32 {t1}, {t0}, 3, {t1}\nv_add_u32 {wa[0][0]}, {WB}, {t1}\nv_xor_b32 {wa[0][1]}, 32, {wa[0][0]}")
    a(f"v_add_u32 {wa[1][0]}, {4*HS}, {wa[0][0]}\nv_add_u32 {wa[1][1]}, {4*HS}, {wa[0][1]}")
    a(f"v_lshrrev_b32 {t0}, 3, {r32}\nv_and_b32 {t1}, 7, {r32}\nv_and_b32 {t2}, 1, {t1}\nv_lshlrev_b32 {t2}, 4, {t2}\nv_mov_b32 {t3}, 0x3f80\nv_lshlrev_b32 {t3}, {t2}, {t3}")
    a(f"v_cmp_eq_u32 vcc, {t0}, {hh}\nv_lshrrev_b32 {t1}, 1, {t1}\ns_nop 0\nv_cndmask_b32 {t3}, 0, {t3}, vcc")
    for r in range(4):
        a(f"v_cmp_eq_u32 vcc, {r}, {t1}\ns_nop 1\nv_cndmask_b32 {t2}, 0, {t3}, vcc\nv_accvgpr_write_b32 {ident[r]}, {t2}")
    def xreads(sig):
        i, s = divmod(sig, 2)
        return [f"ds_read_b128 {Xf[sig%2][mt]}, {xa[s]} offset:{(i%4)*XS + mt*2048}" for mt in range(4)]
    def wreads(sig):
        sl = sig % NW
        return [f"ds_read_b64_tr_b16 {Wf[sig%2][sg][dt][2*j:2*j+2]}, {wa[sl//4][dt]} offset:{(sl%4)*HS + sg*4096 + 512*j}" for sg in range(3) for dt in range(2) for j in range(2)]
    if XFIRST:
        a("s_waitcnt vmcnt(@sx)")
        a.ext(rowq)
    stamp(a, 1)
    a("s_waitcnt vmcnt(@w1&x0)")
    if DBG == "p0": stamp(a, 21)
    a("s_barrier")
    a.ext(xreads(0) + wreads(0))
    side = {k: [] for k in range(32)}
    SH = SH2 if P1MODE == 2 else 0
    if P1MODE == 2:
        real = a
        a = Asm(); side_loads(); L_ = a.lines
        grp = []
        for l in L_:
            if l.startswith("s_cselect"): grp[-1] += "\n" + l
            else: grp.append(l)
        h_ = (len(grp) + 2) // 3
        for k in range(3): side[SH + (2 if XFIRST else -1) + k - (1 if XFIRST else 0)] += grp[k * h_:(k + 1) * h_]
        if T2 is not None:
            a = Asm(); touch(1 + NTS, 15 - NTS, cq[12], cq[13]); side[T2] += a.lines
        a = Asm(); resets(); L_ = a.lines[8:]
        grp = []
        for l in L_:
            if l.startswith("s_cselect"): grp[-1] += "\n" + l
            else: grp.append(l)
        side[5] += grp
        a = real
    q = ["s_waitcnt vmcnt(@sw)"]
    q += [mf32(sacc, sw[0:4], ident, 0)] + [mf32(sacc, sw[4*i:4*i+4], ident) for i in range(1, 8)]
    if not XFIRST:
        q += rowq
    else:
        q += ["s_nop 0"] * 6
    for cb in range(4):
        q += [f"v_add_f32 {sacc[cb]}, {sacc[cb]}, {sacc[4+cb]}", f"v_add_f32 {sacc[8+cb]}, {sacc[8+cb]}, {sacc[12+cb]}"]
    for cb in range(4):
        q += [f"v_add_f32 {sacc[cb]}, {sacc[cb]}, {sacc[8+cb]}"]
    for cb in range(4):
        q += [f"v_mov_b32 {sacc[4+cb]}, {sacc[cb]}"]
    q += [f"s_lshl_b32 s28, {S_W}, 8", f"s_add_u32 s28, s28, {TAB}", f"v_lshl_add_u32 {t0}, {t16}, 4, s28"]
    q += [f"v_permlane32_swap_b32 {sacc[cb]}, {sacc[4+cb]}" for cb in range(4)]
    q += [f"v_and_b32 {t1}, 16, {lane}", f"v_lshl_add_u32 {t0}, {t1}, 6, {t0}"]
    q += [f"v_add_f32 {sacc[cb]}, {sacc[cb]}, {sacc[4+cb]}" for cb in range(4)]
    q += [f"ds_write_b128 {t0}, {sacc[0:4]}"]
    s0 = {0: 3, 1: 0, 2: SH + 3}[P1MODE] + (3 if XFIRST else 0); s1 = 9 + SH
    per = -(-len(q) // (s1 - s0))
    for k in range(s1 - s0):
        side[s0 + k] += q[k * per:(k + 1) * per]
    q = [f"v_lshlrev_b32 {t0}, 4, {t16}", f"v_lshl_add_u32 {t0}, {g4}, 2, {t0}", f"v_add_u32 {t0}, {TAB}, {t0}"]
    q += [f"ds_read_b32 {u[4+k]}, {t0} offset:{256*k}" for k in range(4)]
    q += [f"s_and_b32 s28, {MI}, 3", f"s_mul_i32 s28, s28, {3072*4}", "s_lshl_b32 s29, s43, 12", "s_add_u32 s28, s28, s29", f"s_lshl_b32 s29, s63, 8",
          "s_add_u32 s28, s28, s29", f"s_add_u32 s28, s28, {CQ}", f"s_lshl_b32 s29, {S_W}, 2", "s_or_b32 s29, s29, s43", f"s_cmp_lt_u32 s29, 3\ns_cselect_b32 s28, s28, {OOB}",
          f"v_lshlrev_b32 {t0}, 2, {lane}", "s_waitcnt lgkmcnt(0)",
          f"v_add_f32 {u[4]}, {u[4]}, {u[5]}", f"v_add_f32 {u[6]}, {u[6]}, {u[7]}", f"v_add_f32 {u[4]}, {u[4]}, {u[6]}",
          f"buffer_store_dword {u[4]}, {t0}, {WS}, s28 offen {SC} ;@sdone"]
    side[9 + SH] += q
    RS = 1 if P1MODE != 2 else 9
    side[RS] = [f"v_mov_b32 {t2}, 1", f"v_mov_b32 {t3}, 0", f"s_or_b32 s48, {S_WG}, {S_W}", f"s_cmp_eq_u32 s48, 0\ns_cselect_b32 s48, 0, {OOB}",
                f"buffer_store_dword {t2}, {t3}, {SCc}, s48 offen {SC}"] + side[RS]
    side[8 + SH] = [f"v_mov_b32 {t3}, 0", f"v_mov_b32 {dbg}, 1", f"s_cmp_lg_u32 {S_W}, 0\ns_cbranch_scc1 L_p1_nd\nbuffer_load_dword {dbg}, {t3}, {SCc}, 0 offen {SC} ;@skip\nL_p1_nd:"] + side[8 + SH]
    side[10 + SH] += ["s_waitcnt vmcnt(@sdone)", lazy_check("p1d", dbg, t3, SCc, [])]
    side[11 + SH] += [f"v_mov_b32 {t0}, 1", f"v_mov_b32 {t1}, 0", f"s_lshl_b32 s28, {MI}, 7", f"s_lshl_b32 s29, {NJ}, 2", "s_add_u32 s28, s28, s29", f"s_add_u32 s28, s28, {FSM}",
                 f"s_cmp_eq_u32 {S_W}, 0\ns_cselect_b32 s28, s28, {OOB}", f"buffer_store_dword {t0}, {t1}, {WS}, s28 offen {SC}",
                 f"s_lshl_b32 s28, {NJ}, 7", f"s_lshl_b32 s29, {MI}, 2", "s_add_u32 s28, s28, s29", f"s_add_u32 s28, s28, {FSN}",
                 f"s_cmp_eq_u32 {S_W}, 0\ns_cselect_b32 s28, s28, {OOB}", f"buffer_store_dword {t0}, {t1}, {WS}, s28 offen {SC}"]
    if CODEPF:
        t = Asm(); codepf(t, "L_P2", "L_P4", dbg)
        side[29] += ["\n".join(t.lines[:2])] + t.lines[2:]
    if WOT:
        side[21] += [f"s_mov_b32 s20, s{P_WO}", f"s_mov_b32 s21, s{P_WO+1}", f"s_mov_b32 s22, {1024*2048}", f"s_lshl_b32 s28, {S_WG}, 2", f"s_add_u32 s28, s28, {S_W}", "s_lshl_b32 s28, s28, 11",
                     f"v_lshlrev_b32 {t0}, 7, {t16}", f"buffer_load_dword {cv[1]}, {t0}, {SCc}, s28 offen"]
    if PF1:
        pfv = cq[10]
        side[0] = [f"v_min_u32 {pfv}, 2, {lane}", f"v_lshlrev_b32 {pfv}, 11, {pfv}", f"s_lshl_b32 s28, {S_IDX}, 2", f"s_add_u32 s28, s28, {S_W}", "s_mul_i32 s28, s28, 6144",
                   f"s_or_b32 s29, {NJ}, 3", "s_lshl_b32 s27, s29, 7", "s_add_u32 s28, s28, s27", f"s_add_u32 s28, s28, {PF1*64*6144}", "s_and_b32 s29, s29, 7",
                   f"s_cmp_eq_u32 s29, 3\ns_cselect_b32 s49, s28, {OOB}"] + side[0]
        for j in range((16 - PF1) // 2):
            side[1 + 4 * j if j else 1] += [f"buffer_load_dword {cq[11 + j % 2]}, {pfv}, {SB}, s49 offen", f"s_add_u32 s49, s49, {128*6144}"]
    side[22 + CSH] += [f"s_lshl_b32 s28, {MI}, 7", f"s_add_u32 s28, s28, {FSM}", f"s_lshl_b32 s29, {NJ}, 7", f"s_add_u32 s29, s29, {FSN}", f"v_and_b32 {t2}, 1, {g4}",
                 f"v_mov_b32 {t3}, s28", f"v_mov_b32 {dbg}, s29", f"v_cmp_eq_u32 vcc, 0, {t2}\ns_nop 1\nv_cndmask_b32 {t3}, {dbg}, {t3}, vcc", f"v_lshl_add_u32 {t3}, {t16}, 2, {t3}",
                 f"v_mov_b32 {dbg}, 1", f"s_cmp_lg_u32 {S_W}, 0\ns_cbranch_scc1 L_p1_nf\nbuffer_load_dword {dbg}, {t3}, {WS}, 0 offen {SC} ;@skip\nL_p1_nf:"]
    if CSH:
        side[25] += [f"buffer_load_dword {cq[14]}, {vl}, {WS}, s48 offen ;@dmy"]
        side[24] = [f"s_mov_b32 s48, {OOB}"] + side[24]
    side[24 + CSH] += ["s_waitcnt vmcnt(@dmy)" if CSH else "s_waitcnt vmcnt(@w29)", lazy_check("p1f", dbg, t3, WS, [])]
    la, lb = u[0:4], u[4:8]
    q = [f"v_and_b32 {t0}, 127, v0", f"v_lshlrev_b32 {t0}, 2, {t0}", f"v_lshrrev_b32 {t1}, 7, v0", f"v_lshl_add_u32 {t0}, {t1}, 13, {t0}", f"s_lshl_b32 s28, {MI}, 9", f"s_add_u32 s28, s28, {RA}",
         f"buffer_load_dword {cq[0]}, {t0}, {WS}, s28 offen {SC}",
         f"v_lshlrev_b32 {t0}, 2, {lane}", f"s_min_u32 s29, {S_W}, 2", f"s_mul_i32 s28, s29, {ROT}", f"s_add_u32 s28, s28, {NJ}", "s_and_b32 s28, s28, 3", "s_or_b32 s28, s28, s30", "s_lshl_b32 s28, s28, 8", "s_lshl_b32 s29, s29, 12", "s_add_u32 s28, s28, s29", f"s_add_u32 s28, s28, {CQ}"]
    for k in range(4):
        q += [f"buffer_load_dword {cq[1+k]}, {t0}, {WS}, s28 offen {SC} ;@cons", f"s_add_u32 s28, s28, {3072*4}"]
    side[25 + CSH] += q
    side[28] += ["s_nop 0"] * (16 if CSH else 0) + ["s_waitcnt vmcnt(@cons)", f"v_add_f32 {cq[1]}, {cq[1]}, {cq[2]}", f"v_add_f32 {cq[3]}, {cq[3]}, {cq[4]}", f"v_lshlrev_b32 {t0}, 2, v0", f"v_add_u32 {t0}, {TAB}, {t0}",
                 f"v_add_f32 {cq[1]}, {cq[1]}, {cq[3]}", f"ds_write_b32 {t0}, {cq[0]}", f"ds_write_b32 {t0}, {cq[1]} offset:1024"]
    q = [f"s_lshl_b32 s28, {WM}, 8", f"s_add_u32 s28, s28, {TAB}", f"v_lshl_add_u32 {t0}, {t16}, 2, s28", f"v_lshl_add_u32 {t1}, {g4}, 4, s28",
         f"s_lshl_b32 s28, {WN}, 7", f"s_add_u32 s28, s28, {TAB + 1024}", f"v_lshl_add_u32 {t2}, {t16}, 2, s28", f"v_lshl_add_u32 {t3}, {g4}, 4, s28"]
    side[30] += q
    q = []
    for k in range(4):
        q += [f"ds_read_b128 {cq[4*k:4*k+4]}, {t3} offset:{(k//2)*256 + (k%2)*64}"]
    for mt in range(4):
        q += [f"ds_read_b32 {la[mt]}, {t0} offset:{64*mt}", f"ds_read_b32 {lb[mt]}, {t0} offset:{512 + 64*mt}"]
    for mt in range(4):
        q += [f"ds_read_b128 {sx[4*mt:4*mt+4]}, {t1} offset:{64*mt}", f"ds_read_b128 {sacc[4*mt:4*mt+4]}, {t1} offset:{512 + 64*mt}"]
    q += [f"ds_read_b32 {cv[0]}, {t2} offset:512", f"ds_read_b32 {cv[1]}, {t2} offset:576"]
    side[31] += q
    for sig in range(32):
        i, s = divmod(sig, 2)
        if sig % 8 == 0:
            a.it("p1")
        if DBG == "p0" and sig < 8:
            stamp(a, 22 + sig)
        if sig % 2 == 0 and DBG == "p1":
            stamp(a, 16 + sig // 2)
        cur = sig % 2
        if s == 1 and i < 15:
            extra = "&rst" if sig == RS else ""
            a(f"s_waitcnt vmcnt(@w{2*i+3}&x{i+1}{extra}) lgkmcnt(0)\ns_barrier")
        else:
            a("s_waitcnt lgkmcnt(0)")
        m = []
        for sg in range(3):
            for dt in range(2):
                for mt in range(4):
                    c = 0 if sig == 0 else None
                    if sg < 2:
                        m.append(mf16(acc[mt][sg][dt], Wf[cur][sg][dt], Xf[cur][mt], c))
                    else:
                        m.append(mf16(acc[mt][sg][dt], Xf[cur][mt], Wf[cur][sg][dt], c))
        fl = xreads(sig + 1) + wreads(sig + 1) if sig < 31 else []
        b2 = sched2(m, fl, dmas(sig) + side[sig], 20, VG1) if VG1 else None
        a.ext(b2 if b2 is not None else sched(m, fl, dmas(sig) + side[sig]))
        if sig % 8 == 7:
            a.endit()
    stamp(a, 2)
    a("s_waitcnt lgkmcnt(0)")
    CQS = (32 ** -0.5) * math.log2(math.e)
    a(f"s_lshl_b32 s28, {WN}, 17\ns_lshl_b32 s29, {MI}, 13\ns_add_u32 s28, s28, s29\ns_lshl_b32 s29, {WM}, 12\ns_add_u32 s46, s28, s29")
    a(f"v_lshlrev_b32 {t0}, 9, {g4}\nv_lshl_add_u32 {t0}, {t16}, 4, {t0}")
    a(f"v_and_b32 {t1}, 1, {g4}\nv_lshlrev_b32 {t1}, 9, {t1}\nv_lshl_add_u32 {t1}, {hh}, 8, {t1}\nv_lshl_add_u32 {t1}, {t16}, 4, {t1}")
    laq = R("v", vxd.b, 4)
    for mt in range(4):
        a(f"v_mul_f32 {laq[mt]}, {f32(CQS)}, {la[mt]}")
    def sel(r):
        base = r.b & ~1
        return R("v", base, 2), r.b & 1
    def qk(sg):
        if sg == 1:
            a(f"s_lshl_b32 s28, s{60+sg}, 18\ns_add_u32 s28, s28, s46\ns_add_u32 s28, s28, {sg*4*MB}")
        else:
            a(f"s_lshl_b32 s28, {WN}, 13\ns_lshl_b32 s29, {WM}, 12\ns_add_u32 s28, s28, s29\ns_add_u32 s28, s28, {QL}\nv_add_u32 {t0}, s28, {t0}")
        for mt in range(4):
            bp, bo = sel(lb[mt]); ap, ao = sel(laq[mt] if sg == 0 else la[mt])
            A = [acc[mt][sg][0], acc[mt][sg][1]]
            for dt in range(2):
                for p in range(2):
                    a(f"v_pk_fma_f32 {A[dt][2*p:2*p+2]}, {cq[8*sg+4*dt+2*p:8*sg+4*dt+2*p+2]}, {bp}, {A[dt][2*p:2*p+2]} op_sel:[0,{bo},0] op_sel_hi:[1,{bo},1]")
            for dt in range(2):
                for p in range(2):
                    a(f"v_pk_mul_f32 {A[dt][2*p:2*p+2]}, {A[dt][2*p:2*p+2]}, {ap} op_sel:[0,{ao}] op_sel_hi:[1,{ao}]")
            a(f"v_cvt_pk_bf16_f32 {A[0][0]}, {A[0][0]}, {A[0][1]}\nv_cvt_pk_bf16_f32 {A[0][1]}, {A[0][2]}, {A[0][3]}")
            a(f"v_cvt_pk_bf16_f32 {A[0][2]}, {A[1][0]}, {A[1][1]}\nv_cvt_pk_bf16_f32 {A[0][3]}, {A[1][2]}, {A[1][3]}")
            if sg == 1:
                a(f"buffer_store_dwordx4 {A[0]}, {t0}, {WS}, s28 offen offset:{(mt>>1)*2048 + (mt&1)*256} {SC}")
            else:
                a(f"ds_write_b128 {t0}, {A[0]} offset:{(mt>>1)*2048 + (mt&1)*256}")
                if DUMPQ:
                    a(f"s_lshl_b32 s28, s60, 18\ns_add_u32 s28, s28, s46\nv_lshlrev_b32 {t2}, 9, {g4}\nv_lshl_add_u32 {t2}, {t16}, 4, {t2}")
                    a(f"buffer_store_dwordx4 {A[0]}, {t2}, {WS}, s28 offen offset:{(mt>>1)*2048 + (mt&1)*256} {SC}")
    qk(1)
    a(f"s_lshl_b32 s28, s62, 18\ns_add_u32 s28, s28, s46\ns_add_u32 s28, s28, {8*MB}")
    a(f"s_lshl_b32 s47, {NJ}, 7\ns_lshl_b32 s29, {MI}, 2\ns_add_u32 s47, s47, s29\ns_add_u32 s47, s47, {F1}")
    for mt in range(4):
        A = [acc[mt][2][0], acc[mt][2][1]]
        for dt in range(2):
            for p in range(2):
                a(f"v_pk_fma_f32 {A[dt][2*p:2*p+2]}, {sacc[4*mt+2*p:4*mt+2*p+2]}, {cv}, {A[dt][2*p:2*p+2]} op_sel:[0,{dt},0] op_sel_hi:[1,{dt},1]")
        for dt in range(2):
            for p in range(2):
                a(f"v_pk_mul_f32 {A[dt][2*p:2*p+2]}, {A[dt][2*p:2*p+2]}, {sx[4*mt+2*p:4*mt+2*p+2]}")
        a(f"v_cvt_pk_bf16_f32 {A[0][0]}, {A[0][0]}, {A[0][1]}\nv_cvt_pk_bf16_f32 {A[0][1]}, {A[0][2]}, {A[0][3]}")
        a(f"v_cvt_pk_bf16_f32 {A[0][2]}, {A[1][0]}, {A[1][1]}\nv_cvt_pk_bf16_f32 {A[0][3]}, {A[1][2]}, {A[1][3]}\ns_nop 1")
        a(f"v_permlane32_swap_b32 {A[0][0]}, {A[0][2]}\nv_permlane32_swap_b32 {A[0][1]}, {A[0][3]}")
        a(f"buffer_store_dwordx4 {A[0]}, {t1}, {WS}, s28 offen offset:{mt*1024} {SC} ;@p1st")
    qk(0)
    a("s_waitcnt lgkmcnt(0)")

EXO = 131072
EXL = 122880
def w64_dma_voff(a, vw, t0, t1, nj):
    a(f"v_lshrrev_b32 {t0}, 3, {lane}\nv_and_b32 {t1}, 6, {t0}\ns_lshl_b32 s29, {S_W}, 4\nv_add_u32 {t0}, s29, {t0}\nv_lshlrev_b32 {t0}, 11, {t0}")
    a(f"v_and_b32 {vw[0]}, 7, {lane}\nv_xor_b32 {t1}, {t1}, {vw[0]}\nv_lshl_add_u32 {t0}, {t1}, 4, {t0}")
    a(f"s_lshl_b32 s29, {nj}, 7\nv_add_u32 {vw[0]}, s29, {t0}\nv_add_u32 {vw[1]}, {8*2048-1024}, {vw[0]}")
def mn35(a, MI, NJ):
    a(f"s_and_b32 {MI}, {S_XCD}, 3\ns_lshl_b32 {MI}, {MI}, 2\ns_and_b32 s29, {S_IDX}, 3\ns_add_u32 {MI}, {MI}, s29")
    a(f"s_lshr_b32 {NJ}, {S_XCD}, 2\ns_lshl_b32 {NJ}, {NJ}, 3\ns_lshr_b32 s29, {S_IDX}, 2")
    if SWAP37:
        a(f"s_and_b32 s28, s29, 3\ns_cmp_eq_u32 s28, 3\ns_cselect_b32 s28, 4, 0\ns_xor_b32 s29, s29, s28")
    a(f"s_add_u32 {NJ}, {NJ}, s29")
MI3, NJ3 = "s50", "s51"
VW3 = R("v", 250, 2)

def phase2(a):
    va = Alloc("v", V0, 250); aa = Alloc("a", 0, 256)
    vl2 = va(); vcs = va()
    t0, t1, t2, t3 = va(), va(), va(), va()
    As = va(4, 4)
    O = [va(16, 4) for sl in range(4)]
    L = [va(4, 4) for sl in range(4)]
    S = [va(16, 4) for b in range(2)]
    P = va(8, 4)
    cacc = va(16, 4)
    Q = [[aa(4, 4) for m in range(2)] for sl in range(4)]
    NB = 8
    cw = [aa(4, 4) for k in range(4)]
    Kf = [[aa(4, 4) for m in range(2)] for b in range(NB)]
    ident = aa(4, 4); assert ident.b == 112
    Vf = [[aa(4, 4) for m in range(2)] for b in range(NB)]
    vk = [vl, va(), va(), va()]
    MI, NJ, HD, KH = "s32", "s33", "s34", "s35"
    sK, sV, sKe, sVe, sHB, sQT, sSX, sWo, sMo, sCS = "s36", "s37", "s38", "s39", "s40", "s41", "s42", "s43", "s44", "s45"
    a(f"s_and_b32 s31, {S_W}, 1\ns_lshl_b32 {HD}, {NJ}, 1\ns_add_u32 {HD}, {HD}, s31\ns_lshr_b32 {KH}, {S_W}, 1")
    a(f"s_lshl_b32 {sHB}, {HD}, 17\ns_lshl_b32 {sQT}, {MI}, 2")
    a(f"s_lshl_b32 s28, {KH}, 16\ns_add_u32 s28, s28, {sHB}\ns_add_u32 {sK}, s28, {KF}\ns_add_u32 {sV}, s28, {VF}")
    a(f"s_add_u32 {sKe}, {sK}, 65536\ns_add_u32 {sVe}, {sV}, 65536\ns_xor_b32 {sSX}, {KH}, 1\ns_lshl_b32 {sSX}, {sSX}, 1")
    pa = S[0][0]
    a(f"v_and_b32 {pa}, 1, {g4}\nv_add_u32 {pa}, 1, {pa}\nv_mul_u32_u24 {pa}, {ROT}, {pa}\nv_sub_u32 {pa}, {NJ}, {pa}\nv_and_b32 {pa}, 3, {pa}\ns_and_b32 s28, {NJ}, 12\nv_or_b32 {pa}, s28, {pa}")
    a(f"v_lshlrev_b32 {pa}, 7, {pa}\nv_lshl_add_u32 {pa}, {t16}, 2, {pa}\nv_add_u32 {pa}, {F1}, {pa}")
    publish(a, ["s47"], "p1st", S[1][0:2])
    stamp(a, 3)
    a(f"s_lshl_b32 s28, s31, 13\ns_add_u32 s28, s28, {QL}\ns_lshl_b32 s29, {sSX}, 11\ns_add_u32 s30, s28, s29\nv_add_u32 {t0}, s30, {vl}\nv_xor_b32 {t1}, 4096, {t0}")
    for sl in range(4):
        for m in range(2):
            a(f"ds_read_b128 {Q[sl][m]}, {t0 if sl < 2 else t1} offset:{(sl%2)*2048 + 1024*m}")
    for k in range(1, 4):
        a(f"v_add_u32 {vk[k]}, {4096*k}, {vl}")
    a(f"v_lshrrev_b32 {t1}, 2, {lane}\nv_xor_b32 {t0}, {g4}, {t1}\nv_and_b32 {t0}, 1, {t0}")
    a(f"v_cmp_eq_u32 vcc, 0, {t0}\nv_mov_b32 {t1}, 0x3f803f80\ns_nop 0\nv_cndmask_b32 {As[0]}, 0, {t1}, vcc")
    a(f"v_mov_b32 {As[1]}, {As[0]}\nv_mov_b32 {As[2]}, {As[0]}\nv_mov_b32 {As[3]}, {As[0]}")
    for sl in range(4):
        for r in range(16):
            a(f"v_mov_b32 {O[sl][r]}, 0")
        for r in range(4):
            a(f"v_mov_b32 {L[sl][r]}, 0")
    for r in range(8):
        a(f"v_mov_b32 {P[r]}, 0")
    for r in range(4):
        a(f"v_accvgpr_write_b32 {Vf[NB-1][1][r]}, 0")
        for k in range(4):
            a(f"v_accvgpr_write_b32 {cw[k][r]}, 0")
    for r in range(16):
        a(f"v_mov_b32 {cacc[r]}, 0")
    mn35(a, MI3, NJ3)
    w64_dma_voff(a, VW3, t0, t1, NJ3)
    srd(a, 12, P_WO, 0 if 'wo' in EXP else 1024 * 2048)
    a(f"s_cmp_ge_u32 {S_WG}, 112\ns_cselect_b32 s16, s{P_WU}, s{P_WG}\ns_cselect_b32 s17, s{P_WU+1}, s{P_WG+1}\ns_cselect_b32 s29, 112, 0\ns_cselect_b32 s62, {3584*4}, 0")
    a(f"s_mov_b32 s18, {1024*7168}\ns_mov_b32 s19, 0x20000\ns_sub_u32 s28, {S_WG}, s29\ns_mul_i32 s60, s28, 147\ns_lshr_b32 s60, s60, 10\ns_mul_i32 s29, s60, 7\ns_sub_u32 s61, s28, s29")
    a(f"s_lshl_b32 s28, s60, 2\ns_add_u32 s28, s28, {S_W}\ns_mul_i32 s28, s28, {16*7168}\ns_lshl_b32 s29, s61, 10\ns_add_u32 {sCS}, s28, s29")
    a(f"s_cmp_ge_u32 {S_WG}, 224\ns_cselect_b32 {sCS}, {OOB}, {sCS}")
    a(f"s_lshl_b32 s28, {S_WG}, 2\ns_add_u32 s28, s28, {S_W}\ns_lshl_b32 s63, s28, 11\nv_lshlrev_b32 {vcs}, 7, {t16}")
    a(f"s_mov_b32 {sWo}, 0\ns_lshl_b32 {sMo}, {S_W}, 11\ns_mov_b32 s48, {OOB}")
    srd(a, 20, P_WD, 0 if 'wd' in EXP else 3584 * 2048)
    a(f"s_lshl_b32 s28, {S_WG}, 2\ns_add_u32 s28, s28, {S_W}\ns_mul_i32 s47, s28, {56*128}\nv_min_u32 {t2}, 13, {lane}\nv_lshlrev_b32 {t2}, 7, {t2}")
    a("s_waitcnt lgkmcnt(0)")
    poll(a, "p2", pa, S[1][0])
    stamp(a, 4)
    def kload(kt):
        k = kt % NB
        return [f"buffer_load_dwordx4 {Kf[k][m]}, {vk[k//2]}, {WS}, {sK} offen offset:{(k%2)*2048 + 1024*m} {SC} ;@k{kt}" for m in range(2)]
    def vload(kt):
        k = kt % NB
        return [f"buffer_load_dwordx4 {Vf[k][m]}, {vk[k//2]}, {WS}, {sV} offen offset:{(k%2)*2048 + 1024*m} {SC} ;@v{kt}" for m in range(2)]
    kbump = [f"s_add_u32 {sK}, {sK}, 16384", f"s_cmp_ge_u32 {sK}, {sKe}\ns_cselect_b32 {sK}, {OOB}, {sK}"]
    vbump = [f"s_add_u32 {sV}, {sV}, 16384", f"s_cmp_ge_u32 {sV}, {sVe}\ns_cselect_b32 {sV}, {OOB}, {sV}"]
    a.ext(kload(0))
    for kt in range(2):
        a.ext(vload(kt) + kload(kt + 1))
    catch = []
    for kt in range(2, NB - 1):
        catch += vload(kt) + kload(kt + 1)
    catch += vload(NB - 1)
    a("s_waitcnt vmcnt(@k0)")
    a(mf32(S[0], Kf[0][0], Q[0][0], 0))
    a(mf32(S[0], Kf[0][1], Q[0][1]))
    a("s_waitcnt vmcnt(@v0)\ns_nop 7\ns_nop 3")
    def unit(u):
        kt, sl = divmod(u, 4)
        b = u % 2
        kn, sn = divmod(u + 1, 4)
        kp, sp = divmod(u - 1, 4)
        Sb = S[b]
        x = {}
        k8 = kt % NB
        if sl == 3:
            ld = kload(kt + NB); x[0] = [ld[0]]; x[8] = [ld[1]]
            if k8 == NB - 1: x[12] = kbump
        if sl == 1 and u != 1:
            ld = vload(kt + NB - 1); x[0] = [ld[0]]; x[8] = [ld[1]]
            if k8 == 0: x[12] = vbump
        if kt >= NB and sl == 2 and k8 in (0, 2, 4, 6, 7):
            x[0] = [f"s_mov_b32 m0, {sMo}", f"s_add_u32 {sMo}, {sMo}, 8192"]
            x[4] = [f"buffer_load_dwordx4 {VW3[0]}, {SA}, {sWo} offen lds ;@wo"]
            x[8] = [f"buffer_load_dwordx4 {VW3[1]}, {SA}, {sWo} offen offset:1024 lds ;@wo"]
            x[12] = [f"s_add_u32 {sWo}, {sWo}, {64*2048}"]
        if kt < NB and sl == 2 and k8 in (0, 2, 4, 6, 7):
            x.setdefault(4, []).append(f"buffer_load_dword a{240 + k8}, {vl}, {WS}, s48 offen")
            x.setdefault(8, []).append(f"buffer_load_dword a{248 + k8}, {vl}, {WS}, s48 offen")
        if u == 6:
            x[0] = [f"buffer_load_dword {t3}, {vcs}, {SA}, s63 offen"]
        if sl == 0 and k8 % 2 == 1 and k8 < 7 or sl == 0 and k8 == 4:
            c = cw[{1: 0, 3: 1, 4: 2, 5: 3}[k8]]
            x[0] = [mf32(cacc, ident, c)]
            x[8] = [f"buffer_load_dwordx4 {c}, {vl}, {SB}, {sCS} offen", f"s_add_u32 {sCS}, {sCS}, 7168"]
        if u < 3:
            for p in (1, 3, 5, 7, 9, 11, 13, 14):
                if catch:
                    x.setdefault(p, []).append(catch.pop(0))
            if u == 2:
                assert not catch
                x.setdefault(15, []).extend(kbump + vbump)
        if sl == 0 and k8 == 2:
            x[0] = [f"buffer_load_dword {t1}, {t2}, {SCc}, s47 offen", f"s_add_u32 s47, s47, {14*128}"]
        e = [[f"v_exp_f32 {Sb[i]}, {Sb[i]}"] + x.get(i, []) for i in range(16)]
        c = [[f"v_cvt_pk_bf16_f32 {P[i]}, {Sb[2*i]}, {Sb[2*i+1]}"] for i in range(8)]
        seq = []
        if sl == 3:
            seq.append([f"s_waitcnt vmcnt(@k{kn}&v{kn})"])
        seq += [[mf32(S[1 - b], Kf[kn % NB][0], Q[sn][0], 0)], e[0], e[1], e[2], e[3],
                [mf32(S[1 - b], Kf[kn % NB][1], Q[sn][1])], e[4], e[5], e[6], c[0], c[1],
                [mf32(O[sp], Vf[kp % NB][1], P[4:8])], e[7], e[8], e[9], c[2], c[3],
                [mf16(L[sp], As, P[4:8])], e[10], e[11],
                [mf32(O[sl], Vf[kt % NB][0], P[0:4])], e[12], e[13], e[14], c[4], c[5],
                [mf16(L[sl], As, P[0:4])], e[15], c[6], c[7]]
        return [y for z in seq for y in z]
    for it in range(4):
        a.it("p2")
        for u in range(32 * it, 32 * it + 32):
            if DBG == "p2" and it == 0 and u % 2 == 0:
                stamp(a, 16 + u // 2)
            a.ext(unit(u))
        a.endit()
    a("s_waitcnt vmcnt(0)")
    a(mf32(O[3], Vf[NB-1][1], P[4:8]))
    a(mf16(L[3], As, P[4:8]))
    for k in range(4):
        a(mf32(cacc, ident, cw[k]))
    stamp(a, 5)
    a(f"s_lshl_b32 s28, {S_W}, 13\ns_add_u32 s28, s28, {EXO}\nv_add_u32 {t0}, s28, {vl}\ns_xor_b32 s46, s28, 0x4000\nv_add_u32 {t1}, s46, {vl}")
    a(f"s_lshl_b32 s28, {S_W}, 9\ns_add_u32 s28, s28, {EXL}\nv_lshlrev_b32 {t3}, 2, {lane}\nv_add_u32 {t3}, s28, {t3}\nv_xor_b32 {t2}, 0x400, {t3}")
    for sl in range(2):
        for j in range(4):
            a(f"ds_write_b128 {t0}, {O[sl][4*j:4*j+4]} offset:{sl*4096 + j*1024}")
        a(f"ds_write_b32 {t2}, {L[sl][0]} offset:{sl*256}")
    a(f"s_cmp_eq_u32 {S_W}, 0\ns_cbranch_scc1 L_p2_nocw\ns_lshl_b32 s28, {S_W}, 11\ns_add_u32 s28, s28, {EXL}\nv_add_u32 {t0}, s28, {vl}")
    a(f"ds_write_b128 {t0}, {cacc[0:4]}\nds_write_b128 {t0}, {cacc[4:8]} offset:1024")
    a.label("L_p2_nocw")
    if DBG == "e2": stamp(a, 16)
    a("s_waitcnt lgkmcnt(0)\ns_barrier")
    if DBG == "e2": stamp(a, 17)
    for sl in range(2):
        for j in range(4):
            a(f"ds_read_b128 {S[sl][4*j:4*j+4]}, {t1} offset:{sl*4096 + j*1024}")
        a(f"ds_read_b32 {L[sl][1]}, {t3} offset:{sl*256}")
    a(f"s_cmp_lg_u32 {S_W}, 0\ns_cbranch_scc1 L_p2_nocs\nv_add_u32 {t0}, {EXL + 2048}, {vl}")
    cb_ = [cacc[8:16], O[0][0:8], O[0][8:16]]
    for k in range(3):
        a(f"ds_read_b128 {cb_[k][0:4]}, {t0} offset:{2048*k}\nds_read_b128 {cb_[k][4:8]}, {t0} offset:{2048*k + 1024}")
    a(f"s_mul_i32 s28, s60, {7168*4}\ns_lshl_b32 s29, s61, 11\ns_add_u32 s28, s28, s29\ns_add_u32 s28, s28, s62\ns_add_u32 s28, s28, {CS}")
    a(f"s_cmp_ge_u32 {S_WG}, 224\ns_cselect_b32 s28, {OOB}, s28\nv_lshlrev_b32 {t0}, 5, {r32}\nv_lshl_add_u32 {t0}, {hh}, 4, {t0}\ns_waitcnt lgkmcnt(0)")
    for p in range(4):
        a(f"v_pk_add_f32 {cacc[2*p:2*p+2]}, {cacc[2*p:2*p+2]}, {cb_[0][2*p:2*p+2]}\nv_pk_add_f32 {cb_[1][2*p:2*p+2]}, {cb_[1][2*p:2*p+2]}, {cb_[2][2*p:2*p+2]}")
    for p in range(4):
        a(f"v_pk_add_f32 {cacc[2*p:2*p+2]}, {cacc[2*p:2*p+2]}, {cb_[1][2*p:2*p+2]}")
    a(f"buffer_store_dwordx4 {cacc[0:4]}, {t0}, {WS}, s28 offen {SC} ;@skip\nbuffer_store_dwordx4 {cacc[4:8]}, {t0}, {WS}, s28 offen offset:1024 {SC} ;@skip")
    a.label("L_p2_nocs")
    a("s_waitcnt lgkmcnt(0)")
    for sl in range(2):
        a(f"v_add_f32 {L[2+sl][0]}, {L[2+sl][0]}, {L[sl][1]}")
        for p in range(8):
            a(f"v_pk_add_f32 {O[2+sl][2*p:2*p+2]}, {O[2+sl][2*p:2*p+2]}, {S[sl][2*p:2*p+2]}")
    a(f"s_mov_b32 s28, {f32(2.0**-60)}\ns_mov_b32 s29, {f32(2.0**60)}")
    a(f"v_cmp_nge_f32 vcc, {L[2][0]}, s28\nv_cmp_nle_f32 s[52:53], {L[2][0]}, s29\nv_cmp_nge_f32 s[54:55], {L[3][0]}, s28\nv_cmp_nle_f32 s[56:57], {L[3][0]}, s29")
    a(f"v_lshrrev_b32 {t0}, 4, {r32}\nv_lshlrev_b32 {t0}, 15, {t0}\nv_lshl_add_u32 {t0}, {hh}, 8, {t0}\nv_lshl_add_u32 {vl2}, {t16}, 4, {t0}")
    a("s_or_b64 s[52:53], s[52:53], vcc\ns_or_b64 s[54:55], s[54:55], s[56:57]\ns_or_b64 s[52:53], s[52:53], s[54:55]")
    if FORCE_SLOW:
        a("s_cmp_eq_u32 s2, s2")
    a(f"s_cbranch_scc1 L_p2_slow")
    a.label("L_p2_fin")
    if DBG == "e2": stamp(a, 18)
    a(f"s_lshl_b32 s47, {MI}, 7\ns_lshl_b32 s29, {NJ}, 2\ns_add_u32 s47, s47, s29\ns_add_u32 s47, s47, {F2}\ns_lshl_b32 s48, {S_WG}, 2\ns_add_u32 s48, s48, {FC}")
    for sl in range(2, 4):
        a(f"v_rcp_f32 {L[sl][2]}, {L[sl][0]}")
        a(f"s_xor_b32 s28, {sSX}, {sl}\ns_add_u32 s28, s28, {sQT}\ns_lshl_b32 s28, s28, 16\ns_lshl_b32 s29, {HD}, 10\ns_add_u32 s28, s28, s29\ns_add_u32 s28, s28, {OF}")
        for p in range(8):
            a(f"v_pk_mul_f32 {O[sl][2*p:2*p+2]}, {O[sl][2*p:2*p+2]}, {L[sl][2:4]} op_sel_hi:[1,0]")
        for p in range(8):
            a(f"v_cvt_pk_bf16_f32 {O[sl][p]}, {O[sl][2*p]}, {O[sl][2*p+1]}")
        a(f"buffer_store_dwordx4 {O[sl][0:4]}, {vl2}, {WS}, s28 offen {SC}")
        a(f"buffer_store_dwordx4 {O[sl][4:8]}, {vl2}, {WS}, s28 offen offset:512 {SC} ;@p2st")
    if DBG == "e2":
        stamp(a, 19)
        a("s_waitcnt vmcnt(0)")
        stamp(a, 20)
    s = Asm()
    s.label("L_p2_slow")
    mx, mn, al, tt = t0, t1, t2, t3
    for sl in range(2, 4):
        s(f"v_mov_b32 {mx}, 0xff800000\nv_mov_b32 {L[sl][0]}, 0")
        for r in range(16):
            s(f"v_mov_b32 {O[sl][r]}, 0")
        s(f"s_add_u32 {sK}, {sHB}, {KF}\ns_add_u32 {sV}, {sHB}, {VF}\ns_mov_b32 s24, 64")
        s.label(f"L_p2_slow{sl}")
        s.lines.append(";LOOP")
        for m in range(2):
            s(f"buffer_load_dwordx4 {Kf[0][m]}, {vl}, {WS}, {sK} offen offset:{1024*m} {SC}")
            s(f"buffer_load_dwordx4 {Vf[0][m]}, {vl}, {WS}, {sV} offen offset:{1024*m} {SC}")
        s(f"s_add_u32 {sK}, {sK}, 2048\ns_add_u32 {sV}, {sV}, 2048\ns_waitcnt vmcnt(0)")
        s(mf32(S[0], Kf[0][0], Q[sl][0], 0))
        s(mf32(S[0], Kf[0][1], Q[sl][1]))
        s("s_nop 7\ns_nop 7")
        s(f"v_max_f32 {mn}, {S[0][0]}, {S[0][1]}")
        for p in range(1, 8):
            s(f"v_max3_f32 {mn}, {mn}, {S[0][2*p]}, {S[0][2*p+1]}")
        s(f"v_mov_b32 {tt}, {mn}\ns_nop 1\nv_permlane32_swap_b32 {mn}, {tt}\nv_max3_f32 {mn}, {mn}, {tt}, {mx}")
        s(f"v_sub_f32 {al}, {mx}, {mn}\nv_exp_f32 {al}, {al}\nv_mov_b32 {mx}, {mn}")
        for i in range(16):
            s(f"v_sub_f32 {S[0][i]}, {S[0][i]}, {mn}")
        for i in range(16):
            s(f"v_exp_f32 {S[0][i]}, {S[0][i]}")
        s(f"v_mul_f32 {L[sl][0]}, {L[sl][0]}, {al}")
        for i in range(16):
            s(f"v_mul_f32 {O[sl][i]}, {O[sl][i]}, {al}")
        for i in range(8):
            s(f"v_cvt_pk_bf16_f32 {P[i]}, {S[0][2*i]}, {S[0][2*i+1]}")
        for i in range(8):
            s(f"v_lshlrev_b32 {tt}, 16, {P[i]}\nv_add_f32 {L[sl][0]}, {L[sl][0]}, {tt}\nv_and_b32 {tt}, 0xffff0000, {P[i]}\nv_add_f32 {L[sl][0]}, {L[sl][0]}, {tt}")
        s(mf32(O[sl], Vf[0][0], P[0:4]))
        s(mf32(O[sl], Vf[0][1], P[4:8]))
        s("s_nop 7\ns_nop 7")
        s(f"s_sub_u32 s24, s24, 1\ns_cmp_lg_u32 s24, 0\ns_cbranch_scc1 L_p2_slow{sl}")
        s.lines.append(";ENDLOOP")
        s(f"v_mov_b32 {tt}, {L[sl][0]}\ns_nop 1\nv_permlane32_swap_b32 {L[sl][0]}, {tt}\nv_add_f32 {L[sl][0]}, {L[sl][0]}, {tt}")
    s("s_branch L_p2_fin")
    tails.append(s)
    return "s46"

def wa35(a, wa, t0, t1, base):
    a(f"v_lshrrev_b32 {t0}, 2, {lane}\nv_and_b32 {t0}, 3, {t0}\nv_and_b32 {t1}, 1, {g4}\nv_lshl_add_u32 {wa[1]}, {t1}, 2, {t0}\nv_lshl_add_u32 {wa[1]}, {hh}, 4, {wa[1]}")
    a(f"v_lshlrev_b32 {wa[1]}, 7, {wa[1]}\nv_lshrrev_b32 {t0}, 1, {t0}\nv_lshl_add_u32 {t0}, {t1}, 1, {t0}\nv_lshl_add_u32 {wa[1]}, {t0}, 5, {wa[1]}")
    a(f"v_and_b32 {t0}, 3, {lane}\nv_lshl_add_u32 {wa[0]}, {t0}, 3, {wa[1]}")
    if base:
        a(f"v_add_u32 {wa[0]}, {base}, {wa[0]}")
    for t in range(1, 4):
        a(f"v_xor_b32 {wa[t]}, {32*t}, {wa[0]}")
def rowmajor_voff(a, ve, vo, t0, t1, row0, nj):
    a(f"v_lshrrev_b32 {t0}, 3, {lane}\nv_add_u32 {t1}, {row0}, {t0}\nv_lshlrev_b32 {t1}, 11, {t1}\ns_lshl_b32 s29, {nj}, 7\nv_add_u32 {t1}, s29, {t1}")
    a(f"v_and_b32 {ve}, 7, {lane}\nv_xor_b32 {ve}, {ve}, {g4}\nv_xor_b32 {vo}, 4, {ve}\nv_lshl_add_u32 {ve}, {ve}, 4, {t1}\nv_lshl_add_u32 {vo}, {vo}, 4, {t1}")
def dlayout_addr(a, ad, t0, base):
    a(f"v_lshrrev_b32 {t0}, 1, {t16}\nv_xor_b32 {t0}, {t0}, {hh}\nv_lshlrev_b32 {t0}, 4, {t0}")
    a(f"v_and_b32 {ad}, 1, {g4}\nv_lshlrev_b32 {ad}, 3, {ad}\nv_lshl_add_u32 {ad}, {t16}, 7, {ad}\nv_add_u32 {ad}, {base}, {ad}")

VW4 = [R("v", 244 + i) for i in range(7)]
def p4_wsetup(a, t0, t1, t2):
    vw = VW4; sW, sD, sWP, sR = "s35", "s36", "s37", "s39"
    a(f"s_and_b32 s29, {S_W}, 1\ns_mul_i32 s29, s29, 448\nv_add_u32 {t0}, s29, {lane}")
    a(f"s_mov_b32 s28, {(1<<32)//14 + 1}\ns_mul_i32 s30, {FJ4}, 224\ns_movk_i32 s31, {7168 - 14*16}")
    for i in range(7):
        a(f"v_add_u32 {t1}, {64*i}, {t0}\nv_mul_hi_u32 {t2}, {t1}, s28\nv_mul_lo_u32 {t2}, {t2}, s31\nv_lshl_add_u32 {t2}, {t1}, 4, {t2}")
        a(f"s_sub_u32 s29, s30, {1024*(i%4)}\nv_add_u32 {vw[i]}, s29, {t2}")
    a(f"s_cmp_lt_u32 {S_W}, 2\ns_cselect_b32 s12, s{P_WG}, s{P_WU}\ns_cselect_b32 s13, s{P_WG+1}, s{P_WU+1}\ns_mov_b32 s14, {1024*7168}\ns_mov_b32 s15, 0x20000")
    a(f"s_mul_i32 {sWP}, {S_W}, 7168\ns_mov_b32 {sW}, 0\ns_mov_b32 {sD}, 0\ns_mov_b32 {sR}, 0")
def wdma4(slab, part):
    SLAB, RING = 28672, 4
    vw = VW4; sW, sD, sWP, sM2 = "s35", "s36", "s37", "s38"
    if part == 0:
        o = [f"s_add_u32 m0, {sD}, {sWP}", f"s_add_u32 {sM2}, {sD}, {sWP}"]
        rng = range(0, 4)
    else:
        o = [f"s_add_u32 m0, {sM2}, 4096", f"s_add_u32 {sD}, {sD}, {SLAB}"]
        rng = range(4, 7)
    o += [f"buffer_load_dwordx4 {vw[i]}, {SA}, {sW} offen offset:{(i%4)*1024} lds ;@p4w{slab}" for i in rng]
    if part == 1:
        o += [f"s_cmp_ge_u32 {sD}, {RING*SLAB}\ns_cselect_b32 {sD}, 0, {sD}", f"s_add_u32 {sW}, {sW}, {64*7168}"]
    return o
MI4, FJ4 = "s52", "s53"
def phase3(a, sXR):
    va = Alloc("v", V0, 244)
    vx = va(2); wa = va(4)
    t0, t1, t2, t3 = va(), va(), va(), va()
    acc = [[va(4, 4) for t in range(4)] for mt in range(2)]
    Wf = [[va(4, 4) for t in range(4)] for b in range(2)]
    NB = 8
    Xf = [[va(4, 4) for mt in range(2)] for b in range(NB)]
    res = va(16, 4); tmp = va(16, 4); pk = va(16, 4)
    TT, sX, sXe = "s32", "s33", "s34"
    a(f"s_lshl_b32 {TT}, {MI3}, 3\ns_lshl_b32 s28, {S_W}, 1\ns_add_u32 {TT}, {TT}, s28\ns_lshl_b32 s30, {TT}, 4")
    srd(a, 16, P_X, 2048 * 2048)
    rowmajor_voff(a, t2, t3, t0, t1, "s30", NJ3)
    pa = res[0]
    a(f"s_and_b32 {MI4}, {S_IDX}, 7\ns_lshr_b32 s29, {S_IDX}, 3\ns_lshl_b32 {FJ4}, {S_XCD}, 2\ns_add_u32 {FJ4}, {FJ4}, s29")
    a(f"s_lshl_b32 s28, {MI3}, 7\ns_add_u32 s28, s28, {F2}\nv_lshlrev_b32 {pa}, 2, {t16}\nv_add_u32 {pa}, s28, {pa}")
    publish(a, ["s47", "s48"], "p2st", tmp[0:2])
    stamp(a, 6)
    codepf(a, "L_P3", "L_P5", tmp[2])
    a(f"s_lshl_b32 s28, {S_W}, 11\ns_add_u32 m0, s28, {EXL}\ns_mov_b32 s28, {15*64*2048}")
    a(f"buffer_load_dwordx4 {VW3[0]}, {SA}, s28 offen lds\nbuffer_load_dwordx4 {VW3[1]}, {SA}, s28 offen offset:1024 lds")
    a(f"s_mov_b32 m0, {sXR}")
    for i in range(4):
        a(f"s_mov_b32 s29, {i*15360}\nbuffer_load_dwordx4 {t2 if i%2==0 else t3}, {SB}, s29 offen offset:{i*1024} lds")
    a(f"s_lshl_b32 s28, {S_WG}, 14\ns_lshl_b32 s29, {S_W}, 12\ns_add_u32 s28, s28, s29\ns_add_u32 s28, s28, {XP}")
    for r in range(4):
        a(f"v_mov_b32 {pk[r]}, -1")
    for i in range(4):
        a(f"buffer_store_dwordx4 {pk[0:4]}, {vl}, {WS}, s28 offen offset:{1024*i} {SC}")
    p4_wsetup(a, t0, t1, wa[0])
    wa35(a, wa, t0, t1, 0)
    a(f"s_lshl_b32 {sX}, {TT}, 15\ns_add_u32 {sX}, {sX}, {OF}\ns_add_u32 {sXe}, {sX}, 32768\nv_mov_b32 {vx[0]}, {vl}\nv_add_u32 {vx[1]}, 32768, {vl}")
    for mt in range(2):
        for t in range(4):
            for r in range(4):
                a(f"v_mov_b32 {acc[mt][t][r]}, 0")
    a.ext([f"ds_read_b64_tr_b16 {Wf[0][t][2*j:2*j+2]}, {wa[t]} offset:{1024*j} ;@r3_0_{t}" for t in range(4) for j in range(2)])
    poll(a, "p3", pa, tmp[0])
    stamp(a, 7)
    def xload(sig):
        o = []
        if sig % 4 == 0 and sig > 0:
            o += [f"s_add_u32 {sX}, {sX}, 4096", f"s_cmp_ge_u32 {sX}, {sXe}\ns_cselect_b32 {sX}, {OOB}, {sX}"]
        o += [f"buffer_load_dwordx4 {Xf[sig%NB][mt]}, {vx[mt]}, {WS}, {sX} offen offset:{(sig%4)*1024} {SC} ;@p3x{sig}" for mt in range(2)]
        return o
    def wreads(sig):
        return [f"ds_read_b64_tr_b16 {Wf[sig%2][t][2*j:2*j+2]}, {wa[t]} offset:{(sig%8)*4096 + 1024*j} ;@r3_{sig}_{t}" for t in range(4) for j in range(2)]
    for sig in range(7):
        a.ext(xload(sig))
    for sig in range(32):
        if sig % 8 == 0:
            a.it("p3")
        a(f"s_waitcnt vmcnt(@p3x{sig}) lgkmcnt(@r3_{sig}_1)")
        if sig % 8 == 4:
            a("s_barrier")
        m = [mf16(acc[mt][t], Wf[sig % 2][t], Xf[sig % NB][mt]) for t in range(4) for mt in range(2)]
        rd = wreads(sig + 1); xl = xload(sig + 7)
        light = [x for x in xl if not is_mem(x)]; mem = [x for x in xl if is_mem(x)]
        for g in range(8):
            if g == 4:
                a(f"s_waitcnt lgkmcnt(@r3_{sig}_3)")
            a(m[g])
            if sig % 8 == 7 and g % 2 == 0:
                a(f"v_add_u32 {wa[g//2]}, 0x8000, {wa[g//2]}")
            a(rd[g])
            if g == 1: a.ext(light)
            if g in (2, 6): a(mem.pop(0))
        if sig % 8 == 7:
            a.endit()
    stamp(a, 8)
    a("s_waitcnt vmcnt(0) lgkmcnt(0)")
    if EARLY4:
        a("s_barrier")
        for j in range(EARLY4):
            a.ext(wdma4(j, 0) + wdma4(j, 1))
    dlayout_addr(a, t1, t0, sXR)
    for t in range(4):
        a(f"v_xor_b32 {t2}, {32*t}, {t0}\nv_add_u32 {t2}, {t2}, {t1}")
        for mt in range(2):
            a(f"ds_read_b64 {res[8*mt+2*t:8*mt+2*t+2]}, {t2} offset:{2048*mt}")
    a(f"s_lshl_b32 s28, {TT}, 15\ns_lshl_b32 s29, {NJ3}, 11\ns_add_u32 s28, s28, s29\ns_add_u32 s28, s28, {HF}\ns_waitcnt lgkmcnt(0)")
    for mt in range(2):
        for k in range(8):
            a(f"v_lshlrev_b32 {tmp[2*k]}, 16, {res[8*mt+k]}\nv_and_b32 {tmp[2*k+1]}, 0xffff0000, {res[8*mt+k]}")
        for k in range(8):
            a(f"v_pk_add_f32 {tmp[2*k:2*k+2]}, {tmp[2*k:2*k+2]}, {acc[mt][k//2][2*(k%2):2*(k%2)+2]}")
        for k in range(8):
            a(f"v_cvt_pk_bf16_f32 {pk[8*mt+k]}, {tmp[2*k]}, {tmp[2*k+1]}")
        for p in range(2):
            a(f"buffer_store_dwordx4 {pk[8*mt+4*p:8*mt+4*p+4]}, {vx[mt]}, {WS}, s28 offen offset:{1024*p} {SC}")
    a(f"v_mov_b32 {t1}, 0x3f803f80")
    for k in range(4):
        a(f"v_mov_b32 {tmp[k]}, 0")
    for k in range(8):
        for mt in range(2):
            a(f"v_dot2c_f32_bf16 {tmp[2*mt]}, {pk[8*mt+k]}, {t1}\nv_dot2c_f32_bf16 {tmp[2*mt+1]}, {pk[8*mt+k]}, {pk[8*mt+k]}")
    a("s_nop 2")
    for sw_ in ("16", "32"):
        for k in range(4):
            a(f"v_mov_b32 {tmp[4+k]}, {tmp[k]}")
        a("s_nop 0")
        for k in range(4):
            a(f"v_permlane{sw_}_swap_b32 {tmp[k]}, {tmp[4+k]}")
        for k in range(4):
            a(f"v_add_f32 {tmp[k]}, {tmp[k]}, {tmp[4+k]}")
    a(f"v_and_b32 {t0}, 1, {g4}\nv_cmp_eq_u32 vcc, 1, {t0}\nv_lshlrev_b32 {t0}, 3, {r32}")
    a(f"s_lshl_b32 s28, {NJ3}, 14\ns_lshl_b32 s29, {TT}, 7\ns_add_u32 s28, s28, s29\ns_add_u32 s28, s28, {ST}")
    a(f"v_cndmask_b32 {tmp[0]}, {tmp[0]}, {tmp[2]}, vcc\nv_cndmask_b32 {tmp[1]}, {tmp[1]}, {tmp[3]}, vcc")
    a(f"buffer_store_dwordx2 {tmp[0:2]}, {t0}, {WS}, s28 offen {SC} ;@p3st")
    a(f"s_lshr_b32 s47, {MI3}, 1\ns_lshl_b32 s47, s47, 7\ns_and_b32 s29, {MI3}, 1\ns_lshl_b32 s29, s29, 6\ns_add_u32 s47, s47, s29\ns_lshl_b32 s29, {NJ3}, 2\ns_add_u32 s47, s47, s29\ns_add_u32 s47, s47, {F3}")

R5 = 32768
KA, KB = 24, 8
MI5, NB5 = "s54", "s55"
def lane_consts(a):
    a(f"v_and_b32 {lane}, 63, v0\nv_and_b32 {r32}, 31, v0\nv_lshlrev_b32 {vl}, 4, {lane}\nv_and_b32 {t16}, 15, {lane}\nv_lshrrev_b32 {g4}, 4, {lane}\nv_lshrrev_b32 {hh}, 5, {lane}")
VW5 = R("v", 1, 4)
s5W, s5M = "s40", "s41"
def w5a(j, rel=None):
    base, c = (s5M, ((j + 5) % 8) * 16384) if rel is None else rel
    o = [f"s_add_u32 m0, {base}, {c}", "s_nop 0" if False else f"s_add_u32 {s5W}, {s5W}, {64*2048}"]
    o += [f"buffer_load_dwordx4 {VW5x[i]}, {SB}, {s5W} offen offset:{1024*i} lds ;@p5w{j}" for i in range(4)]
    return o
VW5x = None
def phase4(a):
    global VW5x
    SLAB, GU, RING = 28672, 14336, 4
    CST = SLAB
    va = Alloc("v", V0, 256); aa = Alloc("a", 0, 256)
    vx = va(4); wa = va(); ca = va()
    mq = va(4, 2)
    acc = [[va(4, 4) for n in range(14)] for mt in range(4)]
    vw = [va() for i in range(7)]
    ct = R("v", 252, 4)
    assert va.cur <= 252, va.cur
    t0, t1, t2, t3 = ct[0], ct[1], ct[2], ct[3]
    VW5x = [mq[0], mq[1], mq[2], mq[3]]
    Wf = [[aa(4, 4) for n in range(14)] for b in range(2)]
    NB = 4
    Xf = [[aa(4, 4) for mt in range(4)] for b in range(NB)]
    stt = aa(16, 4)
    TT, sX, sW, sD, sWP, sM2, sR = "s32", "s33", "s35", "s36", "s37", "s38", "s39"
    assert [r.b for r in vw] == [r.b for r in VW4]
    wdma = wdma4
    def dmas(sig):
        i, s = divmod(sig, 2)
        slab = i + 4 if s == 1 else i + 3
        return wdma(slab, 0 if s == 1 else 1) if 0 <= slab < 16 else []
    pa = acc[2][0][0]
    a(f"s_lshl_b32 s28, {MI4}, 7\ns_add_u32 s28, s28, {F3}\nv_lshlrev_b32 {pa}, 2, {r32}\nv_add_u32 {pa}, s28, {pa}")
    pb = acc[2][0][1]
    a(f"s_mul_i32 s28, {FJ4}, 112\ns_add_u32 s29, s28, 111\ns_lshr_b32 s28, s28, 9\ns_lshr_b32 s29, s29, 9\ns_sub_u32 s29, s29, s28")
    a(f"v_mul_u32_u24 {pb}, 7, {t16}\nv_and_b32 {t0}, 1, {g4}\nv_mul_u32_u24 {t0}, 112, {t0}\nv_mul_u32_u24 {t1}, s29, {hh}\nv_add3_u32 {pb}, {pb}, {t0}, {t1}\nv_add_u32 {pb}, s28, {pb}")
    a(f"v_lshlrev_b32 {pb}, 2, {pb}\nv_add_u32 {pb}, {FC}, {pb}")
    publish(a, ["s47"], "p3st", acc[2][1][0:2])
    stamp(a, 9)
    if POLL1:
        a(f"s_cmp_eq_u32 {S_W}, 1\ns_cbranch_scc1 L_p4_nopre")
        for j in range(3):
            for rep in range(2):
                if rep == 1:
                    a(f"s_cmp_lg_u32 {S_W}, 0\ns_cbranch_scc1 L_p4_nx{j}")
                a(f"s_mov_b32 s28, {j*64*7168 + rep*32*7168}\ns_add_u32 m0, {sWP}, {j*SLAB + rep*7168}\ns_nop 0")
                for i in range(7):
                    if i == 4:
                        a(f"s_add_u32 m0, {sWP}, {j*SLAB + rep*7168 + 4096}\ns_nop 0")
                    a(f"buffer_load_dwordx4 {vw[i]}, {SA}, s28 offen offset:{(i%4)*1024} lds ;@skip")
            a.label(f"L_p4_nx{j}")
        a.label("L_p4_nopre")
        a(f"s_mov_b32 {sD}, {3*SLAB}\ns_mov_b32 {sW}, {3*64*7168}")
    else:
        for j in range(EARLY4, 3):
            a.ext(wdma(j, 0) + wdma(j, 1))
    a(f"s_lshl_b32 {TT}, {MI4}, 4\ns_lshl_b32 s28, {S_W}, 2\ns_add_u32 {TT}, {TT}, s28")
    a(f"s_lshl_b32 {sX}, {TT}, 15\ns_add_u32 {sX}, {sX}, {HF}\nv_mov_b32 {vx[0]}, {vl}")
    for mt in range(1, 4):
        a(f"v_add_u32 {vx[mt]}, {32768*mt}, {vl}")
    a(f"v_lshrrev_b32 {t0}, 2, {lane}\nv_and_b32 {t0}, 3, {t0}\nv_lshl_add_u32 {t0}, {g4}, 2, {t0}\nv_mul_u32_u24 {t0}, 224, {t0}\nv_and_b32 {t1}, 3, {lane}\nv_lshl_add_u32 {wa}, {t1}, 3, {t0}")
    for mt in range(4):
        for n in range(14):
            if (mt, n) not in ((2, 0), (2, 1)):
                for e in range(4):
                    a(f"v_mov_b32 {acc[mt][n][e]}, 0")
    if POLL1:
        a(f"s_cmp_eq_u32 {S_W}, 0\ns_cbranch_scc1 L_p4_w0\ns_waitcnt vmcnt(14)\ns_branch L_p4_w1\nL_p4_w0:\ns_waitcnt vmcnt(28)\nL_p4_w1:")
    else:
        a("s_waitcnt vmcnt(@p4w0)")
    poll(a, "p4", [pa, pb], [acc[2][1][0], acc[2][1][1]], 1 if POLL1 else 0)
    stamp(a, 10)
    def xload(sig):
        o = []
        if sig % 4 == 0 and sig > 0:
            o += [f"s_add_u32 {sX}, {sX}, 4096"]
        o += [f"buffer_load_dwordx4 {Xf[sig%NB][mt]}, {vx[mt]}, {WS}, {sX} offen offset:{(sig%4)*1024} {SC} ;@p4x{sig}" for mt in range(4)]
        return o
    def wreads(sig):
        s = sig % 2
        return [f"ds_read_b64_tr_b16 {Wf[sig%2][n][2*j:2*j+2]}, {wa} offset:{(32*s + 16*j)*224 + (n//7)*GU + 32*(n%7)}" for n in range(14) for j in range(2)]
    def wbump():
        return [f"s_add_u32 s44, {sR}, {SLAB}", f"s_cmp_ge_u32 s44, {RING*SLAB}\ns_cselect_b32 s44, 0, s44", f"s_sub_u32 s45, s44, {sR}",
                f"s_mov_b32 {sR}, s44", f"v_add_u32 {wa}, s45, {wa}"]
    a.ext(xload(0) + wdma(3, 0) + xload(1) + wdma(3, 1)[:0])
    a.ext(wreads(0))
    a.ext(xload(2))
    for n in range(2):
        for e in range(4):
            a(f"v_mov_b32 {acc[2][n][e]}, 0")
    side = {k: [] for k in range(32)}
    csp = aa(16, 4)
    side[24] = [f"v_lshrrev_b32 {t0}, 2, {lane}", f"v_min_u32 {t0}, 13, {t0}", f"v_lshlrev_b32 {t0}, 4, {t0}", f"v_and_b32 {t1}, 3, {lane}", f"v_mul_u32_u24 {t1}, {7168*4}, {t1}",
                f"v_add_u32 {ca}, {t0}, {t1}", f"s_mul_i32 s29, {S_W}, 224", f"s_add_u32 s29, s29, {CST}", f"v_add_u32 {t3}, s29, {t0}",
                f"s_and_b32 s29, {S_W}, 1", "s_mul_i32 s29, s29, 224", f"s_lshr_b32 s28, {S_W}, 1", f"s_mul_i32 s28, s28, {3584*4}", "s_add_u32 s28, s28, s29",
                f"s_mul_i32 s31, {FJ4}, 448", "s_add_u32 s31, s31, s28", f"s_add_u32 s31, s31, {CS}"]
    for k in range(4):
        side[25] += [f"buffer_load_dwordx4 {csp[4*k:4*k+4]}, {ca}, {WS}, s31 offen {SC} ;@p4cs", f"s_add_u32 s31, s31, {4*7168*4}"]
    q = ["s_waitcnt vmcnt(@p4cs)"] + [f"v_accvgpr_read_b32 {mq[e]}, {csp[e]}" for e in range(4)]
    for k in range(1, 4):
        for e in range(4):
            q += [f"v_accvgpr_read_b32 {t0 if e % 2 else t2}, {csp[4*k+e]}", f"v_add_f32 {mq[e]}, {mq[e]}, {t0 if e % 2 else t2}"]
    for m_ in ("quad_perm:[1,0,3,2]", "quad_perm:[2,3,0,1]"):
        q += [f"v_add_f32_dpp {mq[e]}, {mq[e]}, {mq[e]} {m_} row_mask:0xf bank_mask:0xf" for e in range(4)]
    assert mq.b % 2 == 0
    q += [f"ds_write_b128 {t3}, {mq}"]
    side[27] = q
    q = [f"v_lshlrev_b32 {t1}, 3, {t16}", f"v_lshl_add_u32 {t1}, {g4}, 16, {t1}", f"s_lshl_b32 s30, {TT}, 7", f"s_add_u32 s30, s30, {ST}"]
    for k in range(4):
        q += [f"buffer_load_dword {stt[4*mt+k]}, {t1}, {WS}, s30 offen offset:{128*mt} {SC} ;@p4st" for mt in range(4)] + ["s_add_u32 s30, s30, 16384"]
    side[24] += q[:14]; side[26] = q[14:]
    q = ["s_waitcnt vmcnt(@p4st)"]
    mq5 = mq; mq = vx
    for mt in range(4):
        q += [f"v_accvgpr_read_b32 {mq[mt]}, {stt[4*mt]}", f"v_accvgpr_read_b32 {t0}, {stt[4*mt+1]}", f"v_accvgpr_read_b32 {t1}, {stt[4*mt+2]}", f"v_accvgpr_read_b32 {t2}, {stt[4*mt+3]}",
              f"v_add_f32 {mq[mt]}, {mq[mt]}, {t0}", f"v_add_f32 {t1}, {t1}, {t2}", f"v_add_f32 {mq[mt]}, {mq[mt]}, {t1}"]
    for sw_ in ("16", "32"):
        q += [f"v_mov_b32 {ct[k]}, {mq[k]}" for k in range(4)] + ["s_nop 0"]
        q += [f"v_permlane{sw_}_swap_b32 {mq[k]}, {ct[k]}" for k in range(4)]
        q += [f"v_add_f32 {mq[k]}, {mq[k]}, {ct[k]}" for k in range(4)]
    q += [f"v_mul_f32 {mq[k]}, {f32(-1/1024)}, {mq[k]}" for k in range(4)]
    qmean = q; mean = mq; mq = mq5
    q = [f"s_and_b32 s28, {S_XCD}, 2", "s_lshr_b32 s28, s28, 1", f"s_lshl_b32 s29, {MI4}, 1", f"s_add_u32 {MI5}, s28, s29",
         f"s_lshr_b32 s28, {S_XCD}, 2", "s_lshl_b32 s28, s28, 2", f"s_lshr_b32 s29, {S_IDX}, 3", f"s_add_u32 {NB5}, s28, s29",
         f"s_lshl_b32 s28, {S_W}, 4", f"v_add_u32 {t0}, s28, {g4}", f"v_lshlrev_b32 {t0}, 11, {t0}", f"s_lshl_b32 s28, {NB5}, 8", f"v_add_u32 {t0}, s28, {t0}",
         f"v_lshlrev_b32 {t1}, 1, {g4}", f"v_xor_b32 {t1}, {t1}, {t16}", f"v_xor_b32 {t2}, 8, {t1}",
         f"v_lshl_add_u32 {VW5x[0]}, {t1}, 4, {t0}", f"v_lshl_add_u32 {t2}, {t2}, 4, {t0}",
         f"v_add_u32 {VW5x[1]}, {4*2048-1024}, {t2}", f"v_add_u32 {VW5x[2]}, {2*(4*2048-1024)}, {VW5x[0]}", f"v_add_u32 {VW5x[3]}, {3*(4*2048-1024)}, {t2}",
         f"s_mov_b32 s16, s{P_WD}", f"s_mov_b32 s17, s{P_WD+1}", f"s_mov_b32 s18, {3584*2048}", "s_mov_b32 s19, 0x20000",
         f"s_and_b32 s28, {S_XCD}, 1", f"s_mul_i32 {s5W}, s28, {KA*64*2048}", f"s_sub_u32 {s5W}, {s5W}, {64*2048}", f"s_lshl_b32 {s5M}, {S_W}, 12", f"s_add_u32 {s5M}, {s5M}, {R5}"]
    q5 = q
    if CODEPF:
        t = Asm(); codepf(t, "L_P5", "L_end", ca)
        side[26] += ["\n".join(t.lines[:2])] + t.lines[2:]
    if not TAIL4:
        side[28] = q5; side[30] = qmean
        for k in range(3):
            side[29 + k] = w5a(k) + side[29 + k]
    for sig in range(28 if TAIL4 else 32):
        i, s = divmod(sig, 2)
        if sig % 4 == 0:
            a.it("p4")
        if DBG == "p4" and (sig < 8 or sig >= 24):
            stamp(a, 16 + (sig if sig < 8 else sig - 16))
        a(f"s_waitcnt vmcnt(@p4x{sig}" + (f"&p4w{i+1}" if s == 1 and i < 15 and not (POLL1 and i < 2) else "") + ") lgkmcnt(0)")
        if s == 1 and i < 15:
            a("s_barrier")
        m = [mf16(acc[mt][n], Wf[sig % 2][n], Xf[sig % NB][mt]) for n in range(14) for mt in range(4)]
        rd = wreads(sig + 1) if sig < 31 else []
        ex = (xload(sig + 3) if sig + 3 < 32 else []) + dmas(sig) + side[sig]
        b2 = sched2(m[:50], rd, ex, 44, VG4) if VG4 else None
        if b2 is not None:
            body = b2 + (spread(m[50:], wbump()) if s == 0 else m[50:])
        elif s == 0:
            body = sched(m[:50], rd, ex, lds_end=48) + spread(m[50:], wbump())
        else:
            body = sched(m, rd, ex, lds_end=48)
        a.ext(body)
        if sig % 4 == 3:
            a.endit()
    cbuf = [ct, R("v", vw[0].b, 4)]
    assert vw[0].b % 2 == 0
    so = vw[4]
    esetup = [f"v_lshlrev_b32 {ca}, 4, {g4}", f"v_add_u32 {ca}, {CST}, {ca}", f"v_mul_u32_u24 {so}, {224*512}, {hh}", f"v_lshl_add_u32 {so}, {r32}, 4, {so}",
              f"s_mul_i32 s28, {TT}, {224*512}", f"s_mul_i32 s29, {FJ4}, {7*512}", "s_add_u32 s28, s28, s29", f"s_add_u32 s28, s28, {AF}", f"s_add_u32 s29, s28, {2*224*512}"]
    csr = lambda t, gu, tg: f"ds_read_b128 {cbuf[gu]}, {ca} offset:{gu*448 + 64*t} ;@{tg}{t}_{gu}"
    def epi(mps, pk, tg):
        o = []
        for t in range(7):
            for gu in range(2):
                o.append(f"s_waitcnt lgkmcnt(@{tg}{t}_{gu})")
                for mt in [x for mp in mps for x in (2 * mp, 2 * mp + 1)]:
                    A = acc[mt][7 * gu + t]
                    if pk:
                        o += [f"v_pk_fma_f32 {A[2*p:2*p+2]}, {cbuf[gu][2*p:2*p+2]}, {mean[(mt//2)*2:(mt//2)*2+2]}, {A[2*p:2*p+2]} op_sel:[0,{mt%2},0] op_sel_hi:[1,{mt%2},1]" for p in range(2)]
                    else:
                        o += [f"v_fmac_f32 {A[e]}, {cbuf[gu][e]}, {mean[mt]}" for e in range(4)]
                if t < 6:
                    o.append(csr(t + 1, gu, tg))
            for mp in mps:
                G = [acc[2*mp][t], acc[2*mp+1][t]]; U = [acc[2*mp][7+t], acc[2*mp+1][7+t]]
                o += [f"v_max_f32 {G[k][e]}, 0, {G[k][e]}" for k in range(2) for e in range(4)]
                if pk:
                    o += [f"v_pk_mul_f32 {G[k][2*p:2*p+2]}, {G[k][2*p:2*p+2]}, {U[k][2*p:2*p+2]}" for k in range(2) for p in range(2)]
                else:
                    o += [f"v_mul_f32 {G[k][e]}, {G[k][e]}, {U[k][e]}" for k in range(2) for e in range(4)]
                D = U[0]
                o += [f"v_cvt_pk_bf16_f32 {D[0]}, {G[0][0]}, {G[0][1]}", f"v_cvt_pk_bf16_f32 {D[2]}, {G[1][0]}, {G[1][1]}",
                      f"v_cvt_pk_bf16_f32 {D[1]}, {G[0][2]}, {G[0][3]}", f"v_cvt_pk_bf16_f32 {D[3]}, {G[1][2]}, {G[1][3]}", "s_nop 0",
                      f"v_permlane32_swap_b32 {D[0]}, {D[2]}", f"v_permlane32_swap_b32 {D[1]}, {D[3]}",
                      f"buffer_store_dwordx4 {D}, {so}, {WS}, s{28+mp} offen offset:{512*t} {SC} ;@p4out"]
        return o
    if TAIL4:
        def hreads(h):
            sg = 28 + h % 4
            return [f"ds_read_b64_tr_b16 {Wf[h%2][n][2*j:2*j+2]}, {wa} offset:{((sg//2)-14)*SLAB + (32*(sg%2) + 16*j)*224 + (n//7)*GU + 32*(n%7)} ;@h{h}_{n}" for n in range(14) for j in range(2)]
        E0 = [csr(0, 0, "ca"), csr(0, 1, "ca")] + epi([0], TAILPK, "ca")
        per = -(-len(E0) // 4)
        oth = {0: xload(31) + q5 + w5a(0), 1: w5a(1) + qmean[:30], 2: w5a(2) + qmean[30:], 3: esetup}
        for h in range(4):
            oth[4 + h] = E0[h * per:(h + 1) * per]
        for h in range(8):
            sg = 28 + h % 4
            if DBG == "p4":
                stamp(a, 16 + 8 + h if False else 16 + 8 + 4 + h // 2) if h % 2 == 0 else None
            if h == 0:
                a("s_waitcnt vmcnt(@p4x28) lgkmcnt(0)")
            elif h == 1:
                a("s_waitcnt vmcnt(@p4x29&p4w15) lgkmcnt(0)\ns_barrier")
            elif h < 4:
                a(f"s_waitcnt vmcnt(@p4x{sg}) lgkmcnt(@h{h}_3)")
            else:
                a(f"s_waitcnt lgkmcnt(@h{h}_3)")
            m = [mf16(acc[mt][n], Wf[h % 2][n], Xf[sg % NB][mt]) for n in range(14) for mt in ((0, 1) if h < 4 else (2, 3))]
            if h >= 2:
                m[8] = f"s_waitcnt lgkmcnt(@h{h}_8)\n" + m[8]
                m[18] = f"s_waitcnt lgkmcnt(@h{h}_13)\n" + m[18]
            rd = hreads(h + 1) if h < 7 else []
            body = sched(m, rd, oth[h], lds_end=24 if h == 0 else 28)
            for k_, x in enumerate(body):
                a(x)
                if x.startswith("v_pk_") and k_ + 1 < len(body) and body[k_ + 1].startswith("v_mfma"):
                    a("s_nop 0")
        stamp(a, 11)
        a.ext([csr(0, 0, "cb"), csr(0, 1, "cb")] + [x.replace("s_nop 0", "s_nop 1") for x in epi([1], True, "cb")])
    else:
        stamp(a, 11)
        a.ext(esetup + [csr(0, 0, "cb"), csr(0, 1, "cb")] + [x.replace("s_nop 0", "s_nop 1") for x in epi([0, 1], True, "cb")])
    a(f"s_lshl_b32 s47, {MI4}, 7\ns_lshl_b32 s29, {FJ4}, 2\ns_add_u32 s47, s47, s29\ns_add_u32 s47, s47, {F4}")

def phase5(a):
    va = Alloc("v", VW5x[3].b + 1, 256)
    vx = va(2); wa = va(8); wb = va(4); vwb = va(2); vpf = va(); fl = va(); fa = va()
    t0, t1, t2, t3 = va(), va(), va(), va()
    acc = [[va(4, 4) for t in range(8)] for mt in range(2)]
    Wf = [[va(4, 4) for t in range(8)] for b in range(2)]
    NB = 8
    Xf = [[va(4, 4) for mt in range(2)] for b in range(NB)]
    part = [[acc[mt][4 + t] for t in range(4)] for mt in range(2)]
    res = R("v", Wf[0][4].b, 16); stt = R("v", Wf[1][4].b, 16); r2 = wa[0:2]; u = wa[2:8]
    TT, sX, KH5, NJ5, sR, sPF = "s32", "s33", "s34", "s35", "s36", "s37"
    NA, NT = 2 * KA, 2 * (KA + KB)
    pa = Xf[7][1][0]
    a(f"s_lshr_b32 s28, {MI5}, 1\ns_lshl_b32 s28, s28, 7\ns_add_u32 s28, s28, {F4}\nv_lshlrev_b32 {pa}, 2, {r32}\nv_add_u32 {pa}, s28, {pa}")
    publish(a, ["s47"], "p4out", Xf[7][0][0:2])
    stamp(a, 12)
    for j in range(3, WLA):
        a.ext(w5a(j))
    a(f"s_and_b32 {KH5}, {S_XCD}, 1\ns_lshl_b32 {NJ5}, {NB5}, 1\ns_add_u32 {NJ5}, {NJ5}, {KH5}")
    a(f"s_lshl_b32 {TT}, {MI5}, 3\ns_lshl_b32 s28, {S_W}, 1\ns_add_u32 {TT}, {TT}, s28")
    a(f"v_lshrrev_b32 {t0}, 2, {lane}\nv_and_b32 {t0}, 3, {t0}\nv_and_b32 {t1}, 1, {g4}\nv_lshl_add_u32 {t0}, {t1}, 2, {t0}\nv_lshl_add_u32 {t1}, {hh}, 4, {t0}\nv_lshlrev_b32 {t1}, 8, {t1}")
    a(f"s_lshl_b32 s28, {KH5}, 2\nv_xor_b32 {t0}, s28, {t0}\nv_lshl_add_u32 {t1}, {t0}, 5, {t1}\nv_and_b32 {t0}, 3, {lane}\nv_lshl_add_u32 {t1}, {t0}, 3, {t1}\nv_add_u32 {wa[0]}, {R5 + 4*16384}, {t1}")
    for t in range(1, 8):
        a(f"v_xor_b32 {wa[t]}, {32*t}, {wa[0]}")
    wa35(a, wb, t0, t1, R5 + ((KA + 5) % 8) * 16384)
    w64_dma_voff(a, vwb, t0, t1, NJ5)
    a(f"s_add_u32 {sR}, {s5M}, 65536")
    a(f"s_mul_i32 {sX}, {TT}, {224*512}\ns_mul_i32 s28, {KH5}, {NA*1024}\ns_add_u32 {sX}, {sX}, s28\ns_add_u32 {sX}, {sX}, {AF}\nv_mov_b32 {vx[0]}, {vl}\nv_add_u32 {vx[1]}, {224*512}, {vl}")
    a(f"s_lshl_b32 s28, {S_IDX}, 3\ns_lshl_b32 s29, {S_W}, 1\ns_add_u32 s28, s28, s29\nv_and_b32 {vpf}, 1, {lane}\nv_add_u32 {vpf}, s28, {vpf}\nv_lshlrev_b32 {vpf}, 11, {vpf}")
    a(f"s_lshr_b32 s28, {S_XCD}, 2\ns_lshl_b32 s28, s28, 10\ns_add_u32 s28, s28, 384\ns_mul_i32 {sPF}, {KH5}, {KA*64*2048}\ns_add_u32 {sPF}, {sPF}, s28\ns_add_u32 {sPF}, {sPF}, {4*64*2048}")
    if PF3: a(f"buffer_load_dword {fl}, {vpf}, {SB}, {sPF} offen\ns_add_u32 {sPF}, {sPF}, {4*64*2048}")
    srd(a, 12, P_OUT, 2048 * 2048)
    def wreads(sig):
        s = sig % 2
        if sig < NA:
            return [f"ds_read_b64_tr_b16 {Wf[sig%2][t][2*j:2*j+2]}, {wa[t]} offset:{(((sig//2)+5)%4)*16384 + s*8192 + 2048*j} ;@r5_{sig}_{t}" for t in range(8) for j in range(2)]
        i = sig // 2 - KA
        sl = (KA + i + 5) % 8; b0 = (KA + 5) % 8
        grp = 0 if sl >= b0 and i < 8 - b0 else None
        return [f"ds_read_b64_tr_b16 {Wf[sig%2][t][2*j:2*j+2]}, {wb[t]} offset:{boff(i)*16384 + s*4096 + 1024*j} ;@r5_{sig}_{t}" for t in range(4) for j in range(2)]
    bbase = {}
    cur = (KA + 5) % 8
    for i in range(KB):
        sl = (KA + i + 5) % 8
        if not (0 <= sl - cur < 4):
            cur = sl
        bbase[i] = cur
    boff = lambda i: (KA + i + 5) % 8 - bbase[i]
    a.ext(wreads(0))
    poll(a, "p5", pa, Xf[7][0][0])
    stamp(a, 13)
    def xload(sig):
        o = []
        if sig == NA:
            o += [f"s_mul_i32 {sX}, {TT}, {224*512}", f"s_add_u32 {sX}, {sX}, {AF + 2*NA*1024}"]
        elif sig % 4 == 0 and sig > 0:
            o += [f"s_add_u32 {sX}, {sX}, 4096"]
        o += [f"buffer_load_dwordx4 {Xf[sig%NB][mt]}, {vx[mt]}, {WS}, {sX} offen offset:{(sig%4)*1024} {SC} ;@p5x{sig}" for mt in range(2)]
        return o
    def w5b(j):
        o = []
        if j == KA:
            o += [f"s_mov_b32 {s5W}, {(2*KA-1)*64*2048}", f"s_lshl_b32 s28, {S_W}, 11", f"s_sub_u32 {s5M}, {s5M}, s28"]
        o += [f"s_add_u32 m0, {s5M}, {((j+5)%8)*16384}", f"s_add_u32 {s5W}, {s5W}, {64*2048}"]
        o += [f"buffer_load_dwordx4 {vwb[i]}, {SB}, {s5W} offen offset:{1024*i} lds ;@p5w{j}" for i in range(2)]
        return o
    for sig in range(XLA):
        a.ext(xload(sig))
    side = {k: [] for k in range(NT)}
    side[NA - 1] += [f"s_xor_b32 s28, {S_WG}, 1", "s_lshl_b32 s28, s28, 14", f"s_lshl_b32 s29, {S_W}, 12", "s_add_u32 s28, s28, s29", f"s_add_u32 s30, s28, {XP}"]
    for mt in range(2):
        for p in range(2):
            A, B = acc[mt][4 + 2 * p], acc[mt][5 + 2 * p]
            side[NA + mt] += [f"v_cvt_pk_bf16_f32 {A[0]}, {A[0]}, {A[1]}", f"v_cvt_pk_bf16_f32 {A[1]}, {A[2]}, {A[3]}", f"v_cvt_pk_bf16_f32 {A[2]}, {B[0]}, {B[1]}", f"v_cvt_pk_bf16_f32 {A[3]}, {B[2]}, {B[3]}",
                              f"buffer_store_dwordx4 {A}, {vl}, {WS}, s30 offen offset:{1024*(2*mt+p)} {SC}"]
    pl = [f"buffer_load_dwordx4 {part[k//2][2*(k%2)]}, {vl}, {WS}, s30 offen offset:{1024*k} {SC}" for k in range(4)]
    side[NT - CHK5] += ["s_xor_b32 s30, s30, 16384"] + pl
    side[NA + 4] += [f"s_lshl_b32 s28, {TT}, 15", f"s_lshl_b32 s29, {NJ5}, 11", "s_add_u32 s28, s28, s29", f"s_add_u32 s28, s28, {HF}", f"v_add_u32 {t0}, 32768, {vl}"]
    side[NA + 4] += [f"buffer_load_dwordx4 {res[8*mt+4*p:8*mt+4*p+4]}, {vl if mt == 0 else t0}, {WS}, s28 offen offset:{1024*p} {SC}" for mt in range(2) for p in range(2)]
    q = [f"v_lshlrev_b32 {t1}, 3, {t16}", f"v_lshl_add_u32 {t1}, {g4}, 16, {t1}", f"s_lshl_b32 s28, {TT}, 7", f"s_add_u32 s28, s28, {ST}"]
    for k in range(4):
        q += [f"buffer_load_dwordx2 {stt[8*mt+2*k:8*mt+2*k+2]}, {t1}, {WS}, s28 offen offset:{128*mt} {SC} ;@p5st" for mt in range(2)] + ["s_add_u32 s28, s28, 16384"]
    side[NA + 5] += q[:10]; side[NA + 6] += q[10:]
    q = ["s_waitcnt vmcnt(@p5st)"]
    for mt in range(2):
        T = stt[8 * mt:8 * mt + 8]
        q += [f"v_add_f32 {T[e]}, {T[e]}, {T[2+e]}" for e in range(2)] + [f"v_add_f32 {T[4+e]}, {T[4+e]}, {T[6+e]}" for e in range(2)]
    for mt in range(2):
        q += [f"v_add_f32 {stt[8*mt+e]}, {stt[8*mt+e]}, {stt[8*mt+4+e]}" for e in range(2)]
    vals = [stt[0], stt[1], stt[8], stt[9]]; tm = [stt[2], stt[3], stt[10], stt[11]]
    for sw_ in ("16", "32"):
        q += [f"v_mov_b32 {tm[k]}, {vals[k]}" for k in range(4)] + ["s_nop 0"]
        q += [f"v_permlane{sw_}_swap_b32 {vals[k]}, {tm[k]}" for k in range(4)]
        q += [f"v_add_f32 {vals[k]}, {vals[k]}, {tm[k]}" for k in range(4)]
    for mt in range(2):
        m_, q_ = stt[8 * mt], stt[8 * mt + 1]
        q += [f"v_mul_f32 {m_}, {f32(1/1024)}, {m_}", f"v_mul_f32 {q_}, {f32(1/1024)}, {q_}", f"v_fma_f32 {q_}, -{m_}, {m_}, {q_}", f"v_max_f32 {q_}, 0, {q_}",
              f"v_add_f32 {q_}, {f32(EPS)}, {q_}", f"v_rcp_f32 {r2[mt]}, {q_}"]
    h_ = (len(q) + 2) // 3
    for k in range(3):
        side[NT - 4 + k] += q[k * h_:(k + 1) * h_]
    assert WLA == 4
    for sig in range(NT):
        i, s = divmod(sig, 2)
        inloop = 6 <= sig < 6 + 8 * ((NA - 6) // 8)
        if inloop and sig % 8 == 6:
            a.it("p5")
        if DBG == "p5" and (sig < 6 and sig % 2 == 0 or sig == 6 + 8 * ((NA - 6) // 8) or sig >= NA and sig % 2 == 0):
            stamp(a, 16 + (sig // 2 if sig < 6 else 3 if sig < NA else 4 + (sig - NA) // 2))
        last = i == KA + KB - 1
        nt = 8 if sig < NA else 4
        a(f"s_waitcnt vmcnt(@p5x{sig}" + (f"&p5w{i+1}" if s == 1 and not last else "") + f") lgkmcnt(@r5_{sig}_{nt//2-1})")
        if s == 1 and not last:
            a("s_barrier")
        m = [mf16(acc[mt][t], Wf[sig % 2][t], Xf[sig % NB][mt], 0 if sig == 0 else None) for t in range(nt) for mt in range(2)]
        rd = wreads(sig + 1) if sig < NT - 1 else []
        ex = xload(sig + XLA) if sig + XLA < NT else []
        j = i + WLA
        if j < KA:
            w_ = w5a(j, (sR, ((i + 5) % 4) * 16384) if inloop else None)
            ex += w_[:4] if s == 0 else w_[4:]
        elif j < KA + KB and s == 0:
            ex += w5b(j)
        if sig % 8 == 1 and 6 <= sig < NA - 8 and PF3:
            ex += [f"buffer_load_dword {fl}, {vpf}, {SB}, {sPF} offen", f"s_add_u32 {sPF}, {sPF}, {4*64*2048}"]
        ex += side[sig]
        upd = {}
        if s == 0 and sig < NA - 2 and (i + 5) % 4 == 3:
            upd = {2 * t + 1: f"v_xor_b32 {wa[t]}, {(R5 + 65536) ^ R5}, {wa[t]}" for t in range(8)}
        if s == 1 and inloop and (i + 5) % 4 == 3:
            ex += [f"s_xor_b32 {sR}, {sR}, {(R5 + 65536) ^ R5}"]
        if sig >= NA and s == 0 and not last and bbase[i - KA + 1] != bbase[i - KA]:
            d = (bbase[i - KA + 1] - bbase[i - KA]) * 16384
            upd = {2 * t + 1: (f"v_add_u32 {wb[t]}, {d}, {wb[t]}" if d > 0 else f"v_subrev_u32 {wb[t]}, {-d}, {wb[t]}") for t in range(4)}
        rd2 = [x + ("\n" + upd[k] if k in upd else "") for k, x in enumerate(rd)]
        ng = len(m)
        rper = -(-len(rd2) // ng) if rd2 else 0
        for g in range(ng):
            if g == ng // 2:
                a(f"s_waitcnt lgkmcnt(@r5_{sig}_{nt-1})")
            a(m[g])
            a.ext(rd2[g * rper:(g + 1) * rper])
            lo = (g * len(ex)) // ng; hi = ((g + 1) * len(ex)) // ng
            a.ext(ex[lo:hi])
        if inloop and sig % 8 == 5:
            a.endit()
    stamp(a, 14)
    tmp = R("v", Xf[0][0].b, 32); pk = R("v", Xf[4][0].b, 16)
    a(f"s_lshl_b32 s30, {S_W}, 12")
    dlayout_addr(a, t1, t0, "s30")
    for k in range(16):
        a(f"v_lshlrev_b32 {tmp[2*k]}, 16, {res[k]}\nv_and_b32 {tmp[2*k+1]}, 0xffff0000, {res[k]}")
    for mt in range(2):
        for k in range(8):
            a(f"v_pk_fma_f32 {tmp[16*mt+2*k:16*mt+2*k+2]}, {acc[mt][k//2][2*(k%2):2*(k%2)+2]}, {r2}, {tmp[16*mt+2*k:16*mt+2*k+2]} op_sel:[0,{mt},0] op_sel_hi:[1,{mt},1]")
    def pchk(o):
        P4 = [part[k // 2][2 * (k % 2)] for k in range(4)]
        o(f"s_waitcnt vmcnt(0)\nv_max3_u32 {fl}, {P4[0][0]}, {P4[0][1]}, {P4[0][2]}\nv_max3_u32 {fa}, {P4[2][0]}, {P4[2][1]}, {P4[2][2]}")
        o(f"v_max3_u32 {fl}, {fl}, {P4[0][3]}, {P4[1][0]}\nv_max3_u32 {fa}, {fa}, {P4[2][3]}, {P4[3][0]}\nv_max3_u32 {fl}, {fl}, {P4[1][1]}, {P4[1][2]}\nv_max3_u32 {fa}, {fa}, {P4[3][1]}, {P4[3][2]}")
        o(f"v_max3_u32 {fl}, {fl}, {P4[1][3]}, {P4[3][3]}\nv_max_u32 {fl}, {fl}, {fa}\nv_cmp_eq_u32 vcc, -1, {fl}\ns_nop 1\ns_cmp_lg_u64 vcc, 0")
    pchk(a)
    a("s_cbranch_scc1 L_p5x_spin\nL_p5x_back:")
    t = Asm()
    t(f"L_p5x_spin:\ns_mov_b32 s26, {SPIN_MAX}\nv_lshlrev_b32 {vpf}, 4, {lane}\nL_p5x_spin2:\ns_sleep 2")
    t(f"s_xor_b32 s27, {S_WG}, 0\ns_lshl_b32 s27, s27, 14\ns_lshl_b32 s28, {S_W}, 12\ns_add_u32 s27, s27, s28\ns_add_u32 s27, s27, {XP}")
    t.ext([x.replace("s30", "s27") for x in pl])
    pchk(t)
    t("s_cbranch_scc0 L_p5x_back\ns_sub_u32 s26, s26, 1\ns_cbranch_scc0 L_p5x_spin2\ns_branch L_p5x_back")
    tails.append(t)
    for mt in range(2):
        if True:
            for p in range(2):
                A, B = part[mt][2 * p], part[mt][2 * p + 1]
                a(f"v_lshlrev_b32 {B[0]}, 16, {A[2]}\nv_and_b32 {B[1]}, 0xffff0000, {A[2]}\nv_lshlrev_b32 {B[2]}, 16, {A[3]}\nv_and_b32 {B[3]}, 0xffff0000, {A[3]}")
                a(f"v_lshlrev_b32 {A[2]}, 16, {A[1]}\nv_and_b32 {A[3]}, 0xffff0000, {A[1]}\nv_and_b32 {A[1]}, 0xffff0000, {A[0]}\nv_lshlrev_b32 {A[0]}, 16, {A[0]}")
        for k in range(8):
            a(f"v_pk_fma_f32 {tmp[16*mt+2*k:16*mt+2*k+2]}, {part[mt][k//2][2*(k%2):2*(k%2)+2]}, {r2}, {tmp[16*mt+2*k:16*mt+2*k+2]} op_sel:[0,{mt},0] op_sel_hi:[1,{mt},1]")
        for k in range(8):
            a(f"v_cvt_pk_bf16_f32 {pk[8*mt+k]}, {tmp[16*mt+2*k]}, {tmp[16*mt+2*k+1]}")
    for t in range(4):
        a(f"v_xor_b32 {t2}, {32*t}, {t0}\nv_add_u32 {t2}, {t2}, {t1}")
        for mt in range(2):
            a(f"ds_write_b64 {t2}, {pk[8*mt+2*t:8*mt+2*t+2]} offset:{2048*mt}")
    a(f"v_add_u32 {t2}, s30, {vl}\ns_waitcnt lgkmcnt(0)")
    for i in range(4):
        a(f"ds_read_b128 {tmp[4*i:4*i+4]}, {t2} offset:{i*1024}")
    a(f"s_lshl_b32 s30, {TT}, 4")
    rowmajor_voff(a, t2, t3, t0, t1, "s30", NJ5)
    for i in range(4):
        a(f"s_mov_b32 s29, {i*8*2048}\ns_waitcnt lgkmcnt({3-i})")
        a(f"buffer_store_dwordx4 {tmp[4*i:4*i+4]}, {t2 if i%2==0 else t3}, {SA}, s29 offen {SC}")
    if DIAG:
        a("s_waitcnt vmcnt(0)\ns_memrealtime s[96:97]\ns_memtime s[98:99]\ns_waitcnt lgkmcnt(0)")
        srd(a, 20, P_DBG, 256)
        a(f"s_not_b32 s92, s92\ns_sub_u32 s98, s98, s94\nv_mov_b32 {t0}, s96\nv_mov_b32 {t1}, s92\nv_mov_b32 {t2}, s98\nv_mov_b32 {t3}, 0\ns_mov_b64 exec, 1")
        a(f"buffer_atomic_umax {t0}, {t3}, {SCc}, 0 offen offset:4\nbuffer_atomic_umax {t1}, {t3}, {SCc}, 0 offen offset:8\nbuffer_atomic_umax {t2}, {t3}, {SCc}, 0 offen offset:12\ns_mov_b64 exec, -1")
    if STAMPS:
        a("s_waitcnt vmcnt(0)")
        stamp(a, 15)
        a(f"s_add_u32 s88, s{P_WS}, {STAMP}\ns_addc_u32 s89, s{P_WS+1}, 0\ns_lshl_b32 s87, {S_WG}, 10\ns_lshl_b32 s86, {S_W}, 8\ns_add_u32 s87, s87, s86")
        a(f"v_lshlrev_b32 {t0}, 2, {lane}\nv_add_u32 {t0}, s87, {t0}\nglobal_store_dword {t0}, {vst}, s[88:89]")
CHK5, PF3, XLA, WLA = 3, False, 6, 4
CORR = 'fmac'

KN = "sequential_preLN__mha_block__glu_gated_reglu__prompt_kernel"
def build(path):
    hdr = open("sequential_preLN__mha_block__glu_gated_reglu__prompt.s.ref").read().split("\n")
    hdr = [l for l in hdr if l.startswith(";") and "@launch" not in l]
    a = Prog()
    a(f"s_cmp_ge_u32 s2, 256\ns_cbranch_scc1 L_end")
    entry(a)
    a.label("L_P1")
    phase1(a)
    a.label("L_P2")
    sxr = phase2(a)
    a.label("L_P3")
    phase3(a, sxr)
    a.label("L_P4")
    phase4(a)
    a.label("L_P5")
    phase5(a)
    a.resolve()
    a.fold()
    errs = check(a.lines, "main")
    a.label("L_end")
    a("s_endpgm")
    for t in tails:
        errs += check(t.lines, "tail")
        a.lines += t.lines
    for e in errs:
        print(e)
    out = list(hdr)
    out.append("; @launch grid=(256,1,1) block=(256,1,1) lds=163840")
    out.append('.amdgcn_target "amdgcn-amd-amdhsa--gfx950"\n.text')
    out.append(f".globl {KN}\n.p2align 8\n.type {KN},@function\n{KN}:")
    out.append(a.text())
    out.append(f""".section .rodata,"a"
.p2align 6
.amdhsa_kernel {KN}
  .amdhsa_next_free_vgpr 512
  .amdhsa_next_free_sgpr 102
  .amdhsa_accum_offset 256
  .amdhsa_group_segment_fixed_size 0
  .amdhsa_kernarg_size 80
  .amdhsa_user_sgpr_count 2
  .amdhsa_user_sgpr_kernarg_segment_ptr 1
  .amdhsa_system_sgpr_workgroup_id_x 1
.end_amdhsa_kernel""")
    open(path, "w").write("\n".join(out) + "\n")
    print(f"wrote {path}: {len(errs)} checker errors")

if __name__ == "__main__":
    import argparse
    ap = argparse.ArgumentParser()
    ap.add_argument("-o", default="v2.s")
    ap.add_argument("--stamps", action="store_true")
    ap.add_argument("--slow", action="store_true")
    ap.add_argument("--spin", type=int, default=None)
    ap.add_argument("--dbg", default=None)
    ap.add_argument("--set", action="append", default=[])
    args = ap.parse_args()
    DBG = args.dbg
    for kv in args.set:
        k, v = kv.split("=")
        globals()[k] = eval(v)
    STAMPS = args.stamps; FORCE_SLOW = args.slow
    if args.spin: SPIN_MAX = args.spin
    build(args.o)
```
